```python
import torch

def _softmax(x, axis=-1):
    return torch.softmax(x, dim=axis)

def _gelu(x):
    return torch.nn.functional.gelu(x, approximate='tanh')

def _silu(x):
    return torch.nn.functional.silu(x)

def _sigmoid(x):
    return torch.sigmoid(x)

def _layernorm(x, axis=-1, eps=1e-05):
    m = x.mean(dim=axis, keepdim=True)
    v = x.var(dim=axis, keepdim=True, unbiased=False)
    return (x - m) / torch.sqrt(v + eps)

def _scatter_add(tgt, idx, src, axis=0):
    return tgt.clone().index_add_(axis, idx, src)

def _segment_sum(src, seg, n):
    out = torch.zeros((n,) + src.shape[1:], dtype=src.dtype)
    return out.index_add_(0, seg, src)

def _pad(x, pw):
    flat = tuple((v for pair in reversed(pw) for v in pair))
    return torch.nn.functional.pad(x, flat)
kernel_name = 'gated_mix__memory_aug_recurrent_mem_tr__ssm_conv_h3__prompt'

def setup_inputs():

    _w = lambda a: (lambda t: t.to(torch.bfloat16) if t.is_floating_point() else t)(torch.as_tensor(a))

    def _A_setup():
        B, S, Dm = (1, 2048, 512)
        H, Dh = (32, 128)
        M, seg = (8, 32)
        seg = min(seg, S)
        S = S // seg * seg
        return {'x': _w((lambda *s: torch.randn(*s, dtype=torch.bfloat16) * 0.05)(B, S, Dm)), 'mem0': _w((lambda *s: torch.randn(*s, dtype=torch.bfloat16) * 0.4)(B, M, Dm)), 'Wq': _w((lambda *s: torch.randn(*s, dtype=torch.bfloat16) * 6.4)(Dm, H, Dh) * Dm ** (-0.5)), 'Wk': _w((lambda *s: torch.randn(*s, dtype=torch.bfloat16) * 6.4)(Dm, H, Dh) * Dm ** (-0.5)), 'Wv': _w((lambda *s: torch.randn(*s, dtype=torch.bfloat16) * 0.4)(Dm, H, Dh) * Dm ** (-0.5)), 'Wo': _w((lambda *s: torch.randn(*s, dtype=torch.bfloat16) * 0.4)(H, Dh, Dm) * (H * Dh) ** (-0.5)), 'seg_len': seg}
    _A_in = _A_setup()

    def _B_setup():
        B, S, D = (1, 2048, 512)
        ks = 4
        return {'q': _w((lambda *s: torch.randn(*s, dtype=torch.bfloat16) * 0.05)(B, S, D)), 'k': _w((lambda *s: torch.randn(*s, dtype=torch.bfloat16) * 0.4)(B, S, D)), 'v': _w((lambda *s: torch.randn(*s, dtype=torch.bfloat16) * 0.4)(B, S, D)), 'shift_k': _w((lambda *s: torch.randn(*s, dtype=torch.bfloat16) * 0.4)(D, ks) * 0.5), 'ssm_k': _w((lambda *s: torch.randn(*s, dtype=torch.bfloat16) * 0.4)(D, S) * (1.0 / S ** 0.5)), 'ssm_D': _w((lambda *s: torch.randn(*s, dtype=torch.bfloat16) * 0.4)(D))}
    _B_in = _B_setup()
    return {'A_x': _A_in['x'], 'A_mem0': _A_in['mem0'], 'A_Wq': _A_in['Wq'], 'A_Wk': _A_in['Wk'], 'A_Wv': _A_in['Wv'], 'A_Wo': _A_in['Wo'], 'A_seg_len': _A_in['seg_len'], 'B_q': _B_in['q'], 'B_k': _B_in['k'], 'B_v': _B_in['v'], 'B_shift_k': _B_in['shift_k'], 'B_ssm_k': _B_in['ssm_k'], 'B_ssm_D': _B_in['ssm_D'], 'gate_w': _w((lambda *s: torch.randn(*s, dtype=torch.bfloat16) * 0.05)(512) * 16.0)}

def reference(A_x, A_mem0, A_Wq, A_Wk, A_Wv, A_Wo, A_seg_len, B_q, B_k, B_v, B_shift_k, B_ssm_k, B_ssm_D, gate_w):

    def _A_ref(x, mem0, Wq, Wk, Wv, Wo, seg_len):
        B, S, Dm = x.shape
        H, Dh = (Wq.shape[1], Wq.shape[2])
        M = mem0.shape[1]
        scale = Dh ** (-0.5)
        n_seg = S // seg_len
        L = M + seg_len
        idx = torch.arange(L)
        mask = (idx[:, None] < M) | (idx[:, None] >= idx[None, :])
        mem = mem0
        outs = []
        for s in range(n_seg):
            xs = x[:, s * seg_len:(s + 1) * seg_len, :].clone()
            h = torch.concatenate([mem, xs], axis=1)
            q = torch.einsum('btd,dhe->bhte', h, Wq)
            k = torch.einsum('btd,dhe->bhte', h, Wk)
            v = torch.einsum('btd,dhe->bhte', h, Wv)
            scores = torch.einsum('bhqe,bhke->bhqk', q, k) * scale
            scores = torch.where(mask[None, None], scores, -1000000000.0)
            p = _softmax(scores, axis=-1)
            o = torch.einsum('bhqk,bhke->bhqe', p, v)
            o = torch.einsum('bhte,hed->btd', o, Wo)
            mem = o[:, :M, :].clone()
            outs.append(o[:, M:, :])
        return torch.concatenate(outs, axis=1)

    def _B_ref(q, k, v, shift_k, ssm_k, ssm_D):
        B, S, D = q.shape
        ks = shift_k.shape[-1]
        k_pad = _pad(k, ((0, 0), (ks - 1, 0), (0, 0)))
        k_shift = torch.zeros_like(k)
        for t in range(ks):
            k_shift = k_shift + k_pad[:, t:t + S, :] * shift_k[:, ks - 1 - t][None, None, :]
        kv = k_shift * v
        L = 2 * S
        kv_pad = _pad(kv, ((0, 0), (0, S), (0, 0)))
        kf_pad = _pad(ssm_k, ((0, 0), (0, S)))
        kv_f = (lambda x, axes=(-2, -1): torch.fft.rfft2(x.float(), dim=axes))(kv_pad[:, None, :, :], axes=(1, 2))
        kf_f = (lambda x, axes=(-2, -1): torch.fft.rfft2(x.float(), dim=axes))(kf_pad[:, None, :], axes=(1, 2))
        kf_f = (lambda x, *d: x.permute(*d))(kf_f, 1, 2, 0)
        y_f = kv_f * kf_f[None, :, :, :]
        y = (lambda x, s, axes=(-2, -1): torch.fft.irfft2(x, s=s, dim=axes).to(torch.bfloat16))(y_f, (1, L), axes=(1, 2))[:, 0, :S, :]
        y = y + kv * ssm_D[None, None, :]
        return q * y
    x = A_x
    g = _sigmoid((x * gate_w).sum(-1, keepdims=True))
    a = _A_ref(x, A_mem0, A_Wq, A_Wk, A_Wv, A_Wo, A_seg_len)
    b = _B_ref(x, B_k, B_v, B_shift_k, B_ssm_k, B_ssm_D)
    return g * a + (1 - g) * b
```

```python
import re

class Asm:
    def __init__(self):
        self.lines = []
        self._lab = 0
    def __call__(self, s):
        for ln in s.split("\n"):
            ln = ln.strip()
            if ln:
                self.lines.append(ln)
    def label(self, name):
        self.lines.append(name + ":")
    def newlabel(self, base="L"):
        self._lab += 1
        return f"{base}_{self._lab}"
    def nop(self, n):
        while n > 0:
            k = min(n, 16)
            self.lines.append(f"s_nop {k-1}")
            n -= k
    def text(self):
        out = []
        for ln in self.lines:
            out.append(ln if ln.endswith(":") or ln.startswith(".") else "  " + ln)
        return "\n".join(out) + "\n"

def R(kind, a, n=1):
    return f"{kind}{a}" if n == 1 else f"{kind}[{a}:{a+n-1}]"
def v(a, n=1): return R("v", a, n)
def a_(a, n=1): return R("a", a, n)
def s(a, n=1): return R("s", a, n)

_reg = re.compile(r"^(-|abs\(|\|)?([vas])(\d+|\[(\d+):(\d+)\])\)?\|?$")
def parse_operand(op):
    op = op.strip()
    if op in ("vcc",): return [("s", "vcc")]
    if op in ("vcc_lo", "vcc_hi"): return [("s", "vcc")]
    if op in ("exec", "exec_lo", "exec_hi"): return [("s", "exec")]
    if op == "m0": return [("s", "m0")]
    m = _reg.match(op)
    if not m: return []
    k = m.group(2)
    if m.group(4) is not None:
        return [(k, i) for i in range(int(m.group(4)), int(m.group(5)) + 1)]
    return [(k, int(m.group(3)))]

TRANS = ("v_exp_f32", "v_log_f32", "v_rcp_f32", "v_rsq_f32", "v_sqrt_f32", "v_sin_f32", "v_cos_f32", "v_rcp_iflag_f32")

class Ins:
    def __init__(self, text):
        self.text = text
        t = text.split(";")[0].strip()
        parts = t.split(None, 1)
        self.op = parts[0]
        rest = parts[1] if len(parts) > 1 else ""
        ops, depth, cur = [], 0, ""
        for ch in rest:
            if ch in "[(": depth += 1
            if ch in "])": depth -= 1
            if ch == "," and depth == 0:
                ops.append(cur); cur = ""
            else: cur += ch
        if cur.strip(): ops.append(cur)
        mods = ""
        if ops:
            last = ops[-1].strip().split(None, 1)
            ops[-1] = last[0]
            mods = last[1] if len(last) > 1 else ""
        self.ops = [o.strip() for o in ops]
        self.mods = mods
        op = self.op
        self.is_mfma = op.startswith("v_mfma") or op.startswith("v_smfmac")
        self.is_smfmac = op.startswith("v_smfmac")
        self.is_valu = op.startswith("v_") and not self.is_mfma
        self.is_vmem = op.startswith(("global_", "buffer_", "flat_", "scratch_"))
        self.is_ds = op.startswith("ds_")
        self.is_salu = op.startswith("s_")
        self.is_dpp = "_dpp" in op or "row_" in mods or "quad_perm" in mods
        self.is_perm = op.startswith("v_permlane")
        self.is_trans = op.replace("_e32", "").replace("_e64", "") in TRANS
        self.is_ldsdma = self.is_vmem and ("_lds_" in op or re.search(r"\blds\b", mods) is not None)
        P = [parse_operand(o) for o in self.ops]
        W, Rd = [], []
        self.srcC = []; self.srcAB = []
        if self.is_mfma:
            W = P[0]
            self.srcAB = P[1] + P[2]
            if self.is_smfmac:
                self.srcC = P[0]; self.srcAB += P[3]
            else:
                self.srcC = P[3]
            Rd = self.srcAB + self.srcC
            if "32x32" in op: self.passes = 8
            elif "4x4" in op: self.passes = 2
            else: self.passes = 4
        elif self.is_vmem:
            if "store" in op or self.is_ldsdma or op in ("buffer_wbl2", "buffer_inv"):
                Rd = sum(P, [])
            elif "atomic" in op:
                if "sc0" in mods.split():
                    if op.startswith("buffer"): W = P[0]; Rd = sum(P, [])
                    else: W = P[0]; Rd = sum(P[1:], [])
                else: Rd = sum(P, [])
            else:
                W = P[0]; Rd = sum(P[1:], [])
            if self.is_ldsdma: Rd = Rd + [("s", "m0")]
        elif self.is_ds:
            if op.startswith(("ds_read", "ds_bpermute", "ds_permute", "ds_swizzle")) or "_rtn" in op:
                W = P[0]; Rd = sum(P[1:], [])
            else: Rd = sum(P, [])
        elif self.is_valu:
            if self.is_perm or op.startswith("v_swap"):
                W = P[0] + P[1]; Rd = P[0] + P[1]
            elif op.startswith(("v_add_co", "v_sub_co", "v_addc_co", "v_subb_co", "v_subrev_co", "v_div_scale", "v_mad_u64_u32")):
                W = P[0] + P[1]; Rd = sum(P[2:], [])
            elif op == "v_nop": pass
            else:
                W = P[0]; Rd = sum(P[1:], [])
                if op.startswith(("v_fmac", "v_pk_fmac", "v_dot2c", "v_writelane")) or self.is_dpp or "op_sel" in mods and op.startswith("v_cvt"):
                    Rd = Rd + P[0]
                if op.startswith("v_cmpx"): W = W + [("s", "exec")]
                if op.startswith("v_cndmask") and len(P) == 3: Rd = Rd + [("s", "vcc")]
        elif self.is_salu:
            if op.startswith(("s_cmp", "s_cbranch", "s_branch", "s_waitcnt", "s_nop", "s_barrier", "s_endpgm", "s_sleep", "s_setprio", "s_bitcmp")):
                Rd = sum(P, [])
            else:
                W = P[0] if P else []; Rd = sum(P[1:], [])
                if "saveexec" in op: W = W + [("s", "exec")]
        self.W = set(W); self.R = set(Rd)
        self.store_data = set()
        if self.is_vmem and "store" in op and ("x4" in op or "x3" in op):
            self.store_data = set(P[0] if op.startswith("buffer") else P[1])
        self.states = 1
        if op == "s_nop": self.states = int(self.ops[0], 0) + 1

def need(p, c):
    n = 0
    vw = {r for r in p.W if r[0] in "va"}
    sw = {r for r in p.W if r[0] == "s"}
    if p.is_valu:
        if c.is_mfma and vw & c.R: n = max(n, 2)
        if c.is_perm and vw & c.R: n = max(n, 2)
        if c.is_valu and c.is_dpp and vw & c.R: n = max(n, 2)
        if c.op.startswith(("v_readlane", "v_readfirstlane")) and vw & c.R: n = max(n, 1)
        if p.is_trans and c.is_valu and not c.is_trans and vw & c.R: n = max(n, 1)
        if p.is_trans and (c.is_vmem or c.is_ds) and vw & c.R: n = max(n, 1)
        if sw & c.R:
            if c.is_valu: n = max(n, 4 if c.op.startswith(("v_readlane", "v_writelane", "v_div_fmas")) else 2)
            if c.is_vmem: n = max(n, 5)
        if ("s", "exec") in sw:
            if c.is_dpp: n = max(n, 5)
            if c.is_mfma or c.is_perm or c.op.startswith(("v_read", "v_writelane")): n = max(n, 4)
        if p.op.startswith("v_dot") and (vw & (c.R | c.W)) and not (c.op == p.op and not (vw & set(sum([parse_operand(o) for o in c.ops[1:3]], [])))):
            n = max(n, 3)
    if p.is_mfma:
        big = {2: 5, 4: 8, 8: 12, 16: 20}[p.passes]
        if c.is_mfma:
            if vw & set(c.srcAB): n = max(n, big)
            if vw & set(c.srcC):
                if set(c.srcC) == vw and c.op == p.op: n = max(n, 2 if p.passes == 2 else 0)
                else: n = max(n, big - 2 if p.passes != 2 else 4)
            elif vw & c.W: n = max(n, big - 2)
        elif (c.is_valu or c.is_vmem or c.is_ds) and vw & (c.R | c.W): n = max(n, big)
        if c.is_valu and set(p.srcC) & c.W: n = max(n, {2: 1, 4: 3, 8: 7, 16: 15}[p.passes])
    if p.store_data & c.W:
        n = max(n, 2 if (c.is_valu or c.is_mfma) else 1)
    if p.is_salu and ("s", "m0") in p.W and (c.is_ldsdma or "addtid" in c.op): n = max(n, 1)
    return n

def check_seq(seq, errs, tag=""):
    for i, p in enumerate(seq):
        t = 0; last = (0, p.passes, p.is_smfmac) if p.is_mfma else None
        prev = p
        for j in range(i + 1, min(len(seq), i + 24)):
            c = seq[j]
            t += 4*prev.states
            if c.is_mfma:
                if last is not None: t = max(t, last[0] + 4*last[1])
                last = (t, c.passes, c.is_smfmac)
            elif c.is_valu and last is not None and last[1] >= 4:
                t = max(t, last[0] + (12 if last[2] else 8))
            n = need(p, c)
            if n and t < 4*(n + 1):
                errs.add((tag, p.text, c.text, n, t//4 - 1))
            prev = c
            if t > 100: break

def check(lines):
    ins, labels = [], {}
    for ln in lines:
        t = ln.split(";")[0].strip()
        if not t or t.startswith("."): continue
        if t.endswith(":"):
            labels[t[:-1]] = len(ins); continue
        ins.append(Ins(t))
    errs = set()
    start = 0
    for i, x in enumerate(ins):
        if x.op in ("s_branch", "s_endpgm", "s_setpc_b64"):
            check_seq(ins[start:i+1], errs); start = i + 1
    check_seq(ins[start:], errs)
    for i, x in enumerate(ins):
        if x.op.startswith(("s_cbranch", "s_branch")):
            tgt = labels.get(x.ops[0])
            if tgt is None: continue
            lo = max(0, i - 22)
            for q in range(i - 1, lo - 1, -1):
                if ins[q].op in ("s_branch", "s_endpgm"):
                    lo = q + 1; break
            hi = tgt
            while hi < len(ins) and hi < tgt + 22 and ins[hi].op not in ("s_branch", "s_endpgm"): hi += 1
            check_seq(ins[lo:i+1] + ins[tgt:hi], errs, "br:" + x.ops[0])
    return sorted(errs)
```

```python
from asmlib import *
from layout import *
import struct, math

def fbits(x): return struct.unpack("<I", struct.pack("<f", x))[0]

M0_, S0_ = 0, 32
AQ = [64, 68]; AK = [72, 76]; AV = [80, 84]; PA = 64
KX, VX = 88, 96
PB = 104
SELT, SELR = 120, 124
IDX, SMW, PST, PLD, MST, MOWN = 128, 129, 130, 131, 132, 133
L16 = 15
MX = [None, 134, 135, 136]
SMR, SW, WL = 137, 138, 139
SENT = 140
SRD = 4
sH, sW = 10, 11
sPc, sPp, sMc, sMn, sKV, sStep, sSpin, sPc2, sMH = 12, 13, 14, 15, 16, 17, 18, 19, 20
sEx1, sEx2 = 22, 24
sC = 26
SRDW = 28
sF = 32
sT = 36
sOne = 58
sRdy = 21
sTM = 44
LDS_SC = 8192
LDS_W = 16384
WPW = 36864

LDS_CH = [("Q", 2), ("Q", 3), ("K", 2), ("K", 6), ("V", 6), ("V", 7), ("O", 1, 1), ("O", 2, 1), ("O", 3, 1)]
ALL_CH = [(m, i) for m in "QKV" for i in range(8)] + [("O", j, i) for j in range(4) for i in range(2)]
REG_CH = [c for c in ALL_CH if c not in LDS_CH]
ORDER = REG_CH + LDS_CH
def reg_of(ch, t):
    n = REG_CH.index(ch)*2 + t
    if n < 32: return a_(8*n, 8), ("a", 8*n)
    return v(144 + 8*(n-32), 8), ("v", 144 + 8*(n-32))
def lds_off(ch, t):
    n = ORDER.index(ch)
    return (n % 9)*4096 + t*2048

def sm(A, acc, afrag, b):
    A(f"v_smfmac_f32_16x16x64_bf16 {v(acc,4)}, {v(afrag,4)}, {b}, v{IDX}")

def emit_chain_init(A, dbg_team_off=DBG_TEAM):
    A(f"""
    s_load_dwordx2 s[{SRD}:{SRD+1}], s[0:1], {KA['ws']}
    s_load_dwordx2 s[8:9], s[0:1], {KA['dbg']}
    s_load_dwordx4 s[48:51], s[0:1], {KA['Wq']}
    s_load_dwordx4 s[52:55], s[0:1], {KA['Wv']}
    s_load_dwordx2 s[56:57], s[0:1], {KA['mem0']}
    v_lshrrev_b32 v1, 6, v0
    v_and_b32 v2, 63, v0
    v_readfirstlane_b32 s{sW}, v1
    v_and_b32 v3, 15, v2
    v_lshrrev_b32 v4, 4, v2
    v_lshlrev_b32 v{L16}, 4, v2
    s_mov_b32 s{SRD+2}, {WS_SIZE}
    s_mov_b32 s{SRD+3}, 0x00020000
    s_mov_b32 s{SRDW+2}, {4*MB}
    s_mov_b32 s{SRDW+3}, 0x00020000
    """)
    A(f"""
    v_mov_b32 v5, 0x4444
    v_mov_b32 v6, 0xeeee
    v_cmp_gt_u32 vcc, 8, v3
    s_nop 1
    v_cndmask_b32 v{IDX}, v6, v5, vcc
    """)
    A(f"""
    v_lshrrev_b32 v5, 1, v4
    v_lshlrev_b32 v5, 2, v5
    v_lshrrev_b32 v6, 3, v3
    v_lshl_add_u32 v5, v6, 1, v5
    v_and_b32 v6, 1, v4
    v_add_u32 v5, v5, v6
    s_lshl_b32 s{sT}, s{sW}, 3
    v_add_u32 v5, s{sT}, v5
    v_lshlrev_b32 v5, 12, v5
    v_and_b32 v8, 7, v3
    v_lshl_add_u32 v5, v8, 4, v5
    s_lshl_b32 s{sT}, s{sH}, 7
    v_add_u32 v{PST}, s{sT}, v5
    """)
    A(f"""
    s_lshr_b32 s{sT}, s{sW}, 1
    s_lshl_b32 s{sT}, s{sT}, 5
    s_add_u32 s{sT}, s{sT}, s{sH}
    s_lshl_b32 s{sT}, s{sT}, 1
    s_and_b32 s{sT+1}, s{sW}, 1
    s_add_u32 s{sT}, s{sT}, s{sT+1}
    s_lshl_b32 s{sT}, s{sT}, 11
    v_add_u32 v{PLD}, s{sT}, v{L16}
    """)
    A(f"""
    s_lshr_b32 s{sT}, s{sW}, 1
    s_lshl_b32 s{sT}, s{sT}, 2
    s_lshr_b32 s{sT+1}, s{sH}, 3
    s_add_u32 s{sT}, s{sT}, s{sT+1}
    s_lshl_b32 s{sT}, s{sT}, 10
    s_and_b32 s{sT+1}, s{sH}, 1
    s_lshl_b32 s{sT+1}, s{sT+1}, 6
    s_add_u32 s{sT}, s{sT}, s{sT+1}
    s_and_b32 s{sT+1}, s{sH}, 6
    s_lshl_b32 s{sT+1}, s{sT+1}, 7
    s_add_u32 s{sT}, s{sT}, s{sT+1}
    v_lshlrev_b32 v5, 3, v8
    v_lshrrev_b32 v7, 1, v4
    v_lshl_add_u32 v5, v7, 2, v5
    v_and_b32 v7, 1, v4
    v_lshl_add_u32 v5, v7, 7, v5
    v_add_u32 v{MST}, s{sT}, v5
    """)
    A(f"""
    s_lshl_b32 s{sT}, s{sW}, 11
    v_add_u32 v{MOWN}, s{sT}, v{L16}
    v_xor_b32 v{MX[1]}, 2048, v{MOWN}
    v_xor_b32 v{MX[2]}, 4096, v{MOWN}
    v_xor_b32 v{MX[3]}, 6144, v{MOWN}
    """)
    A(f"""
    v_and_b32 v5, 31, v2
    v_lshlrev_b32 v{SMR}, 3, v5
    v_lshrrev_b32 v7, 3, v3
    s_lshl_b32 s{sT}, s{sW}, 11
    v_lshlrev_b32 v5, 7, v4
    v_lshl_add_u32 v5, v8, 4, v5
    v_add_u32 v{SW}, s{sT}, v5
    v_xor_b32 v5, 32, v2
    v_lshlrev_b32 v5, 3, v5
    v_add_u32 v{SMW}, s{sT}, v5
    s_mul_i32 s{sT+2}, s{sW}, {WPW}
    s_add_u32 s{sT+2}, s{sT+2}, {LDS_W}
    v_add_u32 v{WL}, s{sT+2}, v{L16}
    v_mov_b32 v{SENT}, -1
    v_mov_b32 v{SENT+1}, -1
    v_mov_b32 v{SENT+2}, -1
    v_mov_b32 v{SENT+3}, -1
    """)
    A(f"""
    v_and_b32 v5, 1, v8
    v_lshlrev_b32 v5, 4, v5
    v_mov_b32 v6, 0x3f80
    v_lshlrev_b32 v5, v5, v6
    v_lshrrev_b32 v6, 1, v8
    """)
    for r in range(4):
        A(f"v_cmp_eq_u32 vcc, {r}, v6\ns_nop 1\nv_cndmask_b32 v{SELR+r}, 0, v5, vcc")
    A(f"""
    v_lshrrev_b32 v6, 1, v3
    v_and_b32 v6, 1, v6
    v_lshl_add_u32 v6, v7, 1, v6
    v_lshrrev_b32 v9, 2, v3
    v_xor_b32 v9, v9, v4
    v_and_b32 v9, 1, v9
    v_lshl_add_u32 v6, v9, 3, v6
    """)
    for r in range(4):
        A(f"v_cmp_eq_u32 vcc, {r}, v6\ns_nop 1\nv_cndmask_b32 v{SELT+r}, 0, v5, vcc")
    A(f"""
    s_mov_b32 s{sEx1}, 0x00ff00ff
    s_mov_b32 s{sEx1+1}, 0x00ff00ff
    s_bitcmp1_b32 s{sW}, 0
    s_cselect_b64 s[{sEx2}:{sEx2+1}], 0, s[{sEx1}:{sEx1+1}]
    s_mov_b32 s{sC}, {fbits(128**-0.5 * math.log2(math.e))}
    s_mov_b32 s{sOne}, 0x3f803f80
    s_mov_b32 s{sOne+1}, 0x3e803e80
    s_mov_b32 s{sPc}, {WS_P}
    s_mov_b32 s{sPp}, {WS_P + P_SLOT}
    s_mov_b32 s{sPc2}, {WS_P + 131072}
    s_mov_b32 s{sMc}, {WS_M}
    s_mov_b32 s{sMn}, {WS_M + 8192}
    s_mov_b32 s{sMH}, {WS_MH}
    s_lshl_b32 s{sKV}, s{sH}, 3
    s_add_u32 s{sKV}, s{sKV}, s{sW}
    s_lshl_b32 s{sKV}, s{sKV}, 11
    s_mov_b32 s{sStep}, 0
    s_mov_b32 s{sSpin}, {SPIN}
    """)
    for j in range(4):
        A(f"""
        s_xor_b32 s{sT}, s{sW}, {j}
        s_and_b32 s{sT+1}, s{sT}, 1
        s_lshl_b32 s{sT+1}, s{sT+1}, 2
        s_lshr_b32 s{sT}, s{sT}, 1
        s_add_u32 s{sT}, s{sT}, s{sT+1}
        s_lshl_b32 s{sF+j}, s{sT}, 19
        """)
    A(f"""
    v_lshrrev_b32 v5, 2, v2
    v_lshlrev_b32 v5, 13, v5
    v_and_b32 v6, 3, v2
    v_lshl_add_u32 v5, v6, 4, v5
    s_lshl_b32 s{sT}, s{sH}, 8
    s_lshl_b32 s{sT+1}, s{sW}, 6
    s_add_u32 s{sT}, s{sT}, s{sT+1}
    v_add_u32 v10, s{sT}, v5
    v_lshrrev_b32 v5, 3, v2
    v_lshlrev_b32 v5, 10, v5
    v_and_b32 v7, 7, v2
    v_lshl_add_u32 v5, v7, 4, v5
    s_lshl_b32 s{sT}, s{sH}, 17
    s_lshl_b32 s{sT+1}, s{sW}, 8
    s_add_u32 s{sT}, s{sT}, s{sT+1}
    v_add_u32 v11, s{sT}, v5
    v_lshrrev_b32 v5, 1, v4
    v_and_b32 v7, 1, v4
    v_lshrrev_b32 v8, 3, v3
    v_lshrrev_b32 v9, 2, v3
    v_and_b32 v9, 1, v9
    v_lshlrev_b32 v12, 4, v5
    v_lshl_add_u32 v12, v8, 3, v12
    v_lshl_add_u32 v12, v7, 2, v12
    v_add_u32 v12, v12, v9
    v_lshlrev_b32 v12, 6, v12
    v_lshl_add_u32 v12, v6, 4, v12
    v_add_u32 v12, s{sT+2}, v12
    v_lshlrev_b32 v13, 3, v5
    v_lshl_add_u32 v13, v7, 2, v13
    v_add_u32 v13, v13, v9
    v_lshlrev_b32 v13, 7, v13
    v_lshl_add_u32 v13, v8, 6, v13
    v_lshl_add_u32 v13, v6, 4, v13
    v_add_u32 v13, s{sT+2}, v13
    """)
    A(f"""
    v_and_b32 v14, 7, v3
    v_lshlrev_b32 v14, 10, v14
    v_lshl_add_u32 v14, v4, 5, v14
    v_lshl_add_u32 v14, v8, 4, v14
    s_lshr_b32 s{sT}, s{sF}, 12
    v_add_u32 v14, s{sT}, v14
    s_waitcnt lgkmcnt(0)
    """)
    for so in (sPc, sPp):
        A(f"buffer_store_dwordx4 {v(SENT,4)}, v{PLD}, s[{SRD}:{SRD+3}], s{so} offen")
        A(f"buffer_store_dwordx4 {v(SENT,4)}, v{PLD}, s[{SRD}:{SRD+3}], s{so} offen offset:1024")
    for so in (sMc, sMn):
        A(f"buffer_store_dword v{SENT}, v{MST}, s[{SRD}:{SRD+3}], s{so} offen")
    base = {"Q": 48, "K": 50, "V": 52, "O": 54}
    cur = [None]
    def issue(n):
        ch = ORDER[n]
        if cur[0] != ch[0]:
            cur[0] = ch[0]
            A(f"s_mov_b32 s{SRDW}, s{base[ch[0]]}\ns_mov_b32 s{SRDW+1}, s{base[ch[0]]+1}")
        if ch[0] == "O":
            A(f"s_xor_b32 s{sT}, s{sW}, {ch[1]}\ns_lshl_b32 s{sT}, s{sT}, 15")
        for q in range(4):
            A(f"s_add_u32 m0, s{sT+2}, {(n % 9)*4096 + q*1024}")
            if ch[0] == "O":
                A(f"s_add_u32 s{sT+1}, s{sT}, {q*8192 + ch[2]*128}")
                A(f"buffer_load_dwordx4 v11, s[{SRDW}:{SRDW+3}], s{sT+1} offen lds")
            else:
                i = ch[1]
                A(f"s_add_u32 s{sT+1}, s{sF + (i >> 1)}, {(2*(i & 1)*64 + 16*q)*8192}")
                A(f"buffer_load_dwordx4 v10, s[{SRDW}:{SRDW+3}], s{sT+1} offen lds")
    for n in range(9): issue(n)
    for n in range(32):
        ch = ORDER[n]
        outstanding_after = 4*(min(n + 9, 32) - n - 1)
        A(f"s_waitcnt vmcnt({outstanding_after})")
        if n == 0:
            L = A.newlabel("Lann")
            A(f"""
            s_barrier
            s_cmp_lg_u32 s{sW}, 0
            s_cbranch_scc1 {L}
            v_mov_b32 v5, {dbg_team_off}
            v_mov_b32 v6, 1
            s_mov_b64 exec, 1
            global_atomic_add v5, v6, s[8:9]
            s_mov_b64 exec, -1
            """)
            A.label(L)
        for t in range(2):
            if ch in LDS_CH: kind, r0 = "v", 16 + 8*t
            else: kind, r0 = reg_of(ch, t)[1]
            for u in range(4):
                if ch[0] == "O": off = (16*(u >> 1) + 2*(u & 1))*128 + 8*t; ad = 13
                else: off = (32*(u >> 1) + 2*(u & 1))*64 + 8*t; ad = 12
                A(f"ds_read_b64_tr_b16 {R(kind, r0 + 2*u, 2)}, v{ad} offset:{(n % 9)*4096 + off}")
        A("s_waitcnt lgkmcnt(0)")
        if ch in LDS_CH:
            for k in range(4):
                A(f"ds_write_b128 v{WL}, {v(16 + 4*k, 4)} offset:{(n % 9)*4096 + 1024*k}")
            A("s_waitcnt lgkmcnt(0)")
        if n + 9 < 32: issue(n + 9)
    L = A.newlabel("Lteam")
    A(f"v_mov_b32 v5, {dbg_team_off}")
    A.label(L)
    A(f"""
    global_load_dword v6, v5, s[8:9] sc1
    s_sub_u32 s{sSpin}, s{sSpin}, 1
    s_cbranch_scc1 {L}x
    s_waitcnt vmcnt(0)
    v_readfirstlane_b32 s{sT}, v6
    s_cmp_lt_u32 s{sT}, 32
    s_cbranch_scc1 {L}
    """)
    A.label(L + "x")
    A(f"s_max_i32 s{sSpin}, s{sSpin}, 0")


def ldsw_reads(ch, dst):
    return [f"ds_read_b128 {v(dst + 4*k, 4)}, v{WL} offset:{lds_off(ch, 0) + 1024*k}" for k in range(4)]

MARKS = []
STREAM = {("Q", 2): S0_, ("Q", 3): S0_ + 16, ("K", 2): PB, ("K", 6): PB, ("V", 6): S0_, ("V", 7): S0_ + 16,
          ("O", 1, 1): S0_, ("O", 2, 1): S0_ + 16, ("O", 3, 1): M0_}

def emit_chain_loop(A, nsteps=63, diag=False, pre1=0, gap1=0, pre2=0, pre2o=0, gap2=24, nvown=4, barpos=6, nopub=0, kvfix=0, rpos=0, trace=None, pvord=1, single1=0, single2=0, bar0=0, ackw=0, estore=5, back2=0, timing=0, jfirst=0, full=0):
    srd = f"s[{SRD}:{SRD+3}]"
    def stamp(k):
        MARKS.append(k)
        if diag and diag[0] == k: A(f"s_memtime s[{sTM}:{sTM+1}]")
        if diag and diag[1] == k: A(f"s_memtime s[{sTM+2}:{sTM+3}]")
        if trace and k in trace:
            r = 72 + 2*trace.index(k)
            A(f"s_memrealtime s[{r}:{r+1}]")
    def lg(n): A(f"s_waitcnt lgkmcnt({n})")
    del MARKS[:]
    rd = lambda ch: ldsw_reads(ch, STREAM[ch])
    cv = lambda d, a, b: A(f"v_cvt_pk_bf16_f32 v{d}, v{a}, v{b}")
    pk = lambda op, d, a, b: A(f"v_pk_{op}_f32 {v(d,2)}, {v(a,2)}, {v(b,2)}")
    def junk():
        for x in rd(("Q", 2)) + rd(("Q", 3)) + rd(("K", 2)): A(x)
        A(f"v_mov_b32 v{PA}, 0\nv_mov_b32 v{PA+1}, 0")
        for k in range(2, 24, 2): A(f"v_pk_mov_b32 {v(PA+k,2)}, {v(PA,2)}, {v(PA,2)} op_sel:[0,1]")
    def mload(r):
        A(f"""
        buffer_load_dwordx4 {v(r,4)}, v{MOWN}, {srd}, s{sMc} offen sc1
        buffer_load_dwordx4 {v(r+4,4)}, v{MOWN}, {srd}, s{sMc} offen offset:1024 sc1
        """)
    CK = KX
    def mcheck(r, t0, t1):
        A(f"""
        v_max3_u32 v{t0}, v{r}, v{r+1}, v{r+2}
        v_max3_u32 v{t1}, v{r+3}, v{r+4}, v{r+5}
        v_max3_u32 v{t0}, v{t0}, v{r+6}, v{r+7}
        v_max_u32 v{t0}, v{t0}, v{t1}
        v_cmp_eq_u32 vcc, -1, v{t0}
        """)
    def kvpoll(tag):
        A.label(f"Lkv{tag}")
        A(f"""
        v_mbcnt_lo_u32_b32 v0, -1, 0
        v_min_u32 v0, 4, v0
        v_lshlrev_b32 v0, 5, v0
        v_add_u32 v0, s{sH}, v0
        global_load_ubyte v1, v0, s[8:9] offset:{DBG_PROG} sc1
        s_waitcnt vmcnt(0)
        v_readlane_b32 s{sRdy}, v1, 0
        v_readlane_b32 s{sT}, v1, 1
        v_readlane_b32 s{sT+1}, v1, 2
        s_min_u32 s{sRdy}, s{sRdy}, s{sT}
        s_min_u32 s{sRdy}, s{sRdy}, s{sT+1}
        v_readlane_b32 s{sT}, v1, 3
        v_readlane_b32 s{sT+1}, v1, 4
        s_min_u32 s{sRdy}, s{sRdy}, s{sT}
        s_min_u32 s{sRdy}, s{sRdy}, s{sT+1}
        s_mul_i32 s{sRdy}, s{sRdy}, 5
        s_sub_u32 s{sRdy}, s{sRdy}, 1
        s_cmp_gt_i32 s{sRdy}, s{sStep}
        s_cbranch_scc1 Lkv{tag}ret
        s_sleep 2
        s_sub_u32 s{sSpin}, s{sSpin}, 1
        s_cbranch_scc0 Lkv{tag}
        s_mov_b32 s{sSpin}, 0
        s_mov_b32 s{sRdy}, 100
        """)
    if diag: A("s_mov_b32 s70, 0")
    if full:
        kvpoll("A"); A.label("LkvAret")
    A(f"""
    global_load_dwordx4 {v(0,4)}, v14, s[56:57]
    global_load_dwordx4 {v(4,4)}, v14, s[56:57] offset:256
    buffer_load_dwordx4 {v(KX,4)}, v{MOWN}, {srd}, s{sKV} offen sc1
    buffer_load_dwordx4 {v(KX+4,4)}, v{MOWN}, {srd}, s{sKV} offen offset:1024 sc1
    """)
    junk()
    A(f"""
    s_waitcnt vmcnt(0) lgkmcnt(0)
    ds_write_b128 v{MOWN}, {v(0,4)}
    s_branch Lstep
    """)
    A(".p2align 6")
    A.label("Lp2")
    if trace: stamp("p2_issue")
    if single2:
        mload(0)
        A(f"""
        s_sub_u32 s{sSpin}, s{sSpin}, 1
        s_cbranch_scc1 Lp2giveup
        s_waitcnt vmcnt(0)
        """)
        mcheck(0, 8, 9)
        A(f"""
        ds_write_b128 v{MOWN}, {v(0,4)}
        s_cbranch_vccnz {"Lp2back" if back2 else "Lp2"}
        """)
    else:
        mload(0)
        A.nop(gap2)
        mload(VX)
        A("s_branch Lp2a")
        A.label("Lp2b")
        mload(0)
        A(f"""
        s_sub_u32 s{sSpin}, s{sSpin}, 1
        s_cbranch_scc1 Lp2giveup
        s_waitcnt vmcnt(2)
        """)
        mcheck(VX, 8, 9)
        A(f"""
        ds_write_b128 v{MOWN}, {v(VX,4)}
        s_cbranch_vccz Lp2bok
        """)
        mload(VX)
        A.label("Lp2a")
        A("s_waitcnt vmcnt(2)")
        mcheck(0, 8, 9)
        A(f"""
        ds_write_b128 v{MOWN}, {v(0,4)}
        s_cbranch_vccnz Lp2b
        """)
    A.label("Lstep")
    stamp("m_in")
    def B(ch, t):
        if ch in STREAM: return v(STREAM[ch] + 8*t, 8)
        return reg_of(ch, t)[0]
    def QK(i): return [(AQ[0], 4*i, B(("Q", i), 0)), (AQ[1], 4*i, B(("Q", i), 1)), (AK[0], 4*i, B(("K", i), 0)), (AK[1], 4*i, B(("K", i), 1))]
    def VV(i): return [(AV[0], 4*i, B(("V", i), 0)), (AV[1], 4*i, B(("V", i), 1))]
    rs0 = f"buffer_store_dwordx4 {v(SENT,4)}, v{PLD}, {srd}, s{sPp} offen"
    rs1 = f"buffer_store_dwordx4 {v(SENT,4)}, v{PLD}, {srd}, s{sPp} offen offset:1024"
    rsm = [f"s_mov_b64 exec, s[{sEx2}:{sEx2+1}]", f"buffer_store_dword v{SENT}, v{MST}, {srd}, s{sMn} offen", "s_mov_b64 exec, -1"]
    vown = VV(0) + VV(1)
    seq = QK(0) + QK(1) + vown[:nvown]
    mreads = [f"ds_read_b128 {v(8*j + 4*ii, 4)}, v{MX[j]} offset:{1024*ii}" for j in (1, 2, 3) for ii in range(2)]
    fill = {k: [] for k in range(40)}
    fill[0] += [f"ds_write_b128 v{MOWN}, {v(4,4)} offset:1024"]
    fill[1] += [f"s_cmp_ge_u32 s{sStep}, {nsteps}", "s_cbranch_scc1 Lexit"]
    fill[barpos] += ["s_waitcnt lgkmcnt(0)", "s_barrier", mreads[0]]
    nA = len(seq)
    for k in range(1, 6): fill[min(barpos + k, nA - 1)] += [mreads[k]]
    for k, x in enumerate(seq):
        sm(A, *x)
        for y in fill[k]: A(y)
    stamp("A_end")
    if trace: A(f"s_cmp_eq_u32 s{sStep}, 31\ns_cbranch_scc1 Lexit2")
    strm = {3: rd(("K", 6)), 4: rd(("V", 6)), 5: rd(("V", 7))}
    waits = {2: 5, 3: 4, 4: 7, 5: 10, 6: 8}
    fb = {(i, k): [] for i in range(2, 8) for k in range(4)}
    fb[2, 0] += [f"buffer_load_dwordx4 {v(VX,4)}, v{MOWN}, {srd}, s{sKV} offen offset:2048 sc1"]
    fb[2, 2] += [f"buffer_load_dwordx4 {v(VX+4,4)}, v{MOWN}, {srd}, s{sKV} offen offset:3072 sc1", f"s_add_u32 s{sKV}, s{sKV}, {0 if kvfix else 32*4*4096}"]
    if timing: fb[3, 0] += [f"s_cmp_eq_u32 s{sStep}, 3", "s_cbranch_scc1 Ltm", "Ltmret:"]
    fb[7, 0] += [f"s_cmp_eq_u32 s{sH}, {99 if nopub else 0}", "s_cbranch_scc1 Lpub", "Lpubret:"]
    if rpos == 0:
        fb[6, 0] += [rs0]; fb[7, 2] += [rs1]; fb[2, 3] += rsm
    for i in strm:
        for k in range(4): fb[i, k] += [strm[i][k]]
    for i in range(2, 8):
        if i in waits: A(f"s_waitcnt lgkmcnt({waits[i]})")
        if i == 2: stamp("B_start")
        for k, x in enumerate(QK(i)):
            sm(A, *x)
            for y in fb[i, k]: A(y)
    stamp("QK_end")
    vq = VV(6) + VV(7) + VV(4) + VV(5) + VV(2) + VV(3) + vown[nvown:]
    def vf(*after):
        sm(A, *vq.pop(0))
        for y in after: A(y)
    cv(PB+0, AQ[0], AQ[0]+1); cv(PB+1, AQ[0]+2, AQ[0]+3); cv(PB+4, AQ[1], AQ[1]+1); cv(PB+5, AQ[1]+2, AQ[1]+3)
    cv(PB+2, AK[0], AK[0]+1); cv(PB+3, AK[0]+2, AK[0]+3); cv(PB+6, AK[1], AK[1]+1); cv(PB+7, AK[1]+2, AK[1]+3)
    A(f"v_mfma_f32_16x16x32_bf16 {v(PA,4)}, {v(PB,4)}, {v(SELT,4)}, 0")
    A("s_waitcnt lgkmcnt(0)")
    A(f"v_mfma_f32_16x16x32_bf16 {v(PA+4,4)}, {v(PB+4,4)}, {v(SELT,4)}, 0")
    vf()
    T = PB + 8
    stamp("T_mfma")
    cv(T, PA, PA+1); cv(T+1, PA+2, PA+3); cv(T+2, PA+4, PA+5); cv(T+3, PA+6, PA+7)
    A.nop(2)
    A(f"v_mfma_f32_16x16x32_bf16 {v(PA,4)}, {v(KX,4)}, {v(T,4)}, 0")
    A(f"v_mfma_f32_16x16x32_bf16 {v(PA+4,4)}, {v(KX+4,4)}, {v(T,4)}, 0")
    A(f"v_mfma_f32_16x16x32_bf16 {v(PA+8,4)}, {v(T,4)}, {v(T,4)}, 0")
    stamp("S_mfma")
    kl = [f"buffer_load_dwordx4 {v(KX,4)}, v{MOWN}, {srd}, s{sKV} offen sc1", f"buffer_load_dwordx4 {v(KX+4,4)}, v{MOWN}, {srd}, s{sKV} offen offset:1024 sc1"]
    A.nop(4)
    for g in range(4): A(f"v_mov_b32_dpp v{PA+g}, v{PA+4+g} row_ror:8 row_mask:0xf bank_mask:0xc")
    A(f"ds_write_b128 v{MOWN}, {v(PA,4)} offset:{LDS_SC}")
    for g in range(2): A(f"v_mov_b32_dpp v{PA+8+g}, v{PA+10+g} row_ror:8 row_mask:0xf bank_mask:0xc")
    A(f"ds_write_b64 v{SMW}, {v(PA+8,2)} offset:{LDS_SC+1024}")
    stamp("S_written")
    if rpos == 1:
        vf(rs0); vf(rs1); vf(*rsm)
    else:
        vf(kl[0]); vf(kl[1]); vf()
    stamp("preB2")
    A("s_waitcnt lgkmcnt(0)")
    A("s_barrier")
    stamp("B2")
    xr = [f"ds_read_b128 {v(PA+4*j,4)}, v{MX[j]} offset:{LDS_SC}" for j in (1, 2, 3)]
    mr = [f"ds_read_b64 {v(PB+2*src,2)}, v{SMR} offset:{LDS_SC+2048*src+1024}" for src in range(4)]
    wo = rd(("O", 1, 1)) + rd(("O", 2, 1))
    WA = [16, 20, 24, 28]
    A(xr[0]); A(mr[0]); A(mr[1])
    vf(xr[1], mr[2]); vf(xr[2], mr[3])
    extra = kl if rpos == 1 else ["", ""]
    vf(wo[0], extra[0], "v_mov_b32 v24, 0")
    vf(wo[1], extra[1], "v_mov_b32 v25, 0")
    nw = 2
    zs = [26, 27, 28, 29, 30, 31]
    while vq:
        z = f"v_mov_b32 v{zs.pop(0)}, 0" if zs else ""
        if nw < 8: vf(wo[nw], z); nw += 1
        else: vf(z)
    stamp("V_end")
    lg(nw)
    stamp("S_read")
    pk("add", PA, PA, PA+4); pk("add", PA+2, PA+2, PA+6); pk("add", PB, PB, PB+2)
    pk("add", PA+8, PA+8, PA+12); pk("add", PA+10, PA+10, PA+14); pk("add", PB+4, PB+4, PB+6)
    pk("add", PA, PA, PA+8); pk("add", PA+2, PA+2, PA+10); pk("add", PB, PB, PB+4)
    stamp("adds")
    X, Y = PB+2, PB+3
    assert len(zs) % 2 == 0
    zm = [f"v_pk_mov_b32 {v(r,2)}, v[24:25], v[24:25] op_sel:[0,1]" for r in [16, 18, 20, 22] + zs[::2]] + [""]*4
    ON, SU = PA + 4, PA + 8
    VM = PB + 12
    A(f"""
    v_max3_f32 v{X}, v{PA}, v{PA+1}, v{PA+2}
    v_max3_f32 v{Y}, v{PA+3}, v{PB}, v{PB+1}
    v_max_f32 v{X}, v{X}, v{Y}
    """)
    cv(VM, AV[0], AV[0]+1); cv(VM+1, AV[0]+2, AV[0]+3)
    A(f"""
    v_max_f32_dpp v{Y}, v{X}, v{X} row_ror:8 row_mask:0xf bank_mask:0xf
    v_max_f32_dpp v{X}, v{X}, v{X} row_ror:8 row_mask:0xf bank_mask:0xf
    """)
    cv(VM+2, AV[1], AV[1]+1); cv(VM+3, AV[1]+2, AV[1]+3)
    A(f"""
    v_permlane16_swap_b32 v{X}, v{Y}
    v_max_f32 v{PB+4}, v{X}, v{Y}
    v_max_f32 v{PB+5}, v{X}, v{Y}
    v_pk_mov_b32 {v(ON,2)}, s[{sOne}:{sOne+1}], s[{sOne}:{sOne+1}] op_sel:[0,0]
    v_pk_mov_b32 {v(ON+2,2)}, s[{sOne}:{sOne+1}], s[{sOne}:{sOne+1}] op_sel:[1,1]
    v_permlane32_swap_b32 v{PB+4}, v{PB+5}
    v_max_f32 v{X}, v{PB+4}, v{PB+5}
    v_mul_f32 v{X}, s{sC}, v{X}
    """)
    stamp("max")
    for r in (PA, PA+2, PB):
        A(f"v_pk_fma_f32 {v(r,2)}, {v(r,2)}, s[{sC}:{sC+1}], {v(X,2)} op_sel_hi:[1,0,0] neg_lo:[0,0,1] neg_hi:[0,0,1]")
    for r in [PB, PB+1, PA, PA+1, PA+2, PA+3]: A(f"v_exp_f32 v{r}, v{r}")
    stamp("exp")
    PX, PM = PB + 4, PB + 8
    cv(PM, PB, PB+1); cv(PM+1, PB, PB+1); cv(PX+2, PA, PA+1); cv(PX+3, PA+2, PA+3); cv(PX, PA, PA+1); cv(PX+1, PA+2, PA+3)
    rest = wo[nw:] + [""]*8
    A(f"""
    v_mfma_f32_16x16x32_bf16 {v(SU,4)}, {v(ON,4)}, {v(PX+2,4)}, 0
    s_waitcnt vmcnt(2)
    v_mov_b32_dpp v{PX+2}, v{PX+2} row_ror:8 row_mask:0xf bank_mask:0x3
    v_mov_b32_dpp v{PX+3}, v{PX+3} row_ror:8 row_mask:0xf bank_mask:0x3
    v_mov_b32_dpp v{PX}, v{PX} row_ror:8 row_mask:0xf bank_mask:0xc
    v_mov_b32_dpp v{PX+1}, v{PX+1} row_ror:8 row_mask:0xf bank_mask:0xc
    v_mov_b32_dpp v{PM}, v{PM} row_ror:8 row_mask:0xf bank_mask:0xc
    v_mov_b32_dpp v{PM+1}, v{PM+1} row_ror:8 row_mask:0xf bank_mask:0x3
    """)
    stamp("Pcvt")
    pv = [f"v_mfma_f32_16x16x16_bf16 {v(AV[0],4)}, {v(VM,2)}, {v(PM,2)}, {v(AV[0],4)}", f"v_mfma_f32_16x16x32_bf16 {v(AV[1],4)}, {v(VX+4,4)}, {v(PX,4)}, 0"]
    if pvord: pv = pv[::-1]
    A(f"""
    v_mfma_f32_16x16x32_bf16 {v(AV[0],4)}, {v(VX,4)}, {v(PX,4)}, 0
    {rest[0]}
    v_add_f32_dpp v{X}, v{SU}, v{SU} row_ror:8 row_mask:0xf bank_mask:0xf
    {pv[0]}
    {rest[1]}
    v_rcp_f32 v{X}, v{X}
    {pv[1]}
    {rest[2]}
    v_xor_b32 v{VX}, 2048, v{SW}
    v_mfma_f32_16x16x16_bf16 {v(AV[1],4)}, {v(VM+2,2)}, {v(PM,2)}, {v(AV[1],4)}
    """)
    if pvord: A.nop(4)
    OF = [PB+4, VX, VX+4, PB+8]
    for k in range(4): A(f"v_mul_f32 v{AV[0]+k}, v{AV[0]+k}, v{X}")
    cv(OF[0], AV[0], AV[0]+1); cv(OF[0]+1, AV[0]+2, AV[0]+3)
    A(f"v_xor_b32 v{VX+4}, 4096, v{SW}")
    stamp("rcp")
    for k in range(2):
        A(f"v_pk_mul_f32 {v(AV[1]+2*k,2)}, {v(AV[1]+2*k,2)}, {v(X,2)} op_sel_hi:[1,0]")
    cv(OF[0]+2, AV[1], AV[1]+1); cv(OF[0]+3, AV[1]+2, AV[1]+3)
    A(f"ds_write_b128 v{SW}, {v(OF[0],4)} offset:{LDS_SC+1536}")
    stamp("o_written")
    for z in zm: A(z)
    A(f"v_xor_b32 v{PB+8}, 6144, v{SW}")
    A.nop(1)
    def OO(j, i): return [(WA[2*i+t], OF[j], B(("O", j, i), t)) for t in range(2)]
    sm(A, *OO(0, 1)[0])
    A("s_waitcnt lgkmcnt(0)")
    A("s_barrier")
    stamp("B3")
    for j in (1, 2, 3): A(f"ds_read_b128 {v(OF[j],4)}, v{OF[j]} offset:{LDS_SC+1536}")
    wo3 = rd(("O", 3, 1))
    sm(A, *OO(0, 1)[1]); A(wo3[0])
    sm(A, *OO(0, 0)[0]); A(wo3[1])
    sm(A, *OO(0, 0)[1])
    for j in (1, 2, 3):
        lg([0, 4, 5, 4][j])
        if j == 1: stamp("o_read")
        for t, x in enumerate(OO(j, 0)):
            sm(A, *x)
            if j == 1: A(wo3[2 + t])
    stamp("early_end")
    PK0, PK1 = AV[0], AV[1]
    late = OO(1, 1) + OO(2, 1) + OO(3, 1)
    sm(A, *late[0])
    sm(A, *late[1]); cv(PK0, WA[0], WA[1])
    sm(A, *late[2]); cv(PK0+1, WA[0]+1, WA[1]+1); cv(PK0+2, WA[0]+2, WA[1]+2)
    sm(A, *late[3]); A("s_waitcnt lgkmcnt(0)"); cv(PK0+3, WA[0]+3, WA[1]+3)
    est = f"buffer_store_dwordx4 {v(PK0,4)}, v{PST}, {srd}, s{sPc} offen"
    if estore == 3: A(est)
    sm(A, *late[4])
    if estore == 4: A(est)
    sm(A, *late[5])
    if estore == 5: A(est)
    else: A.nop(1)
    stamp("late_end")
    A(f"""
    s_add_u32 s{sStep}, s{sStep}, 1
    s_xor_b32 s{sMc}, s{sMc}, 8192
    s_xor_b32 s{sMn}, s{sMn}, 8192
    s_xor_b32 s{sPc}, s{sPc}, {WS_P ^ (WS_P + P_SLOT)}
    s_xor_b32 s{sPp}, s{sPp}, {WS_P ^ (WS_P + P_SLOT)}
    s_cmp_gt_i32 s{sRdy}, s{sStep}
    s_nop 0
    """)
    for g in range(4): cv(PK1+g, WA[2]+g, WA[3]+g)
    A(f"buffer_store_dwordx4 {v(PK1,4)}, v{PST}, {srd}, s{sPc2} offen")
    stamp("stored")
    if full:
        A("s_cbranch_scc0 LkvB")
        A.label("LkvBret")
    A(f"s_bitcmp1_b32 s{sW}, 0")
    A("s_cbranch_scc1 Lodd")
    RA = VX
    def pload(r):
        for k in range(4): A(f"buffer_load_dwordx4 {v(r+4*k,4)}, v{PLD}, {srd}, s{sPp} offen offset:{1024*k} sc1")
    def pproc(r, base):
        for k in range(4):
            A(f"s_waitcnt vmcnt({base + 3 - k})")
            A(f"v_mfma_f32_16x16x32_bf16 {v(RA,4)}, {v(r+4*k,4)}, {v(SELR,4)}, {v(RA,4) if k else 0}")
        if trace: stamp("p1_data")
        A(f"""
        s_nop 7
        v_permlane32_swap_b32 v{RA}, v{RA+2}
        v_permlane32_swap_b32 v{RA+1}, v{RA+3}
        s_mov_b64 exec, s[{sEx1}:{sEx1+1}]
        v_pk_add_f32 {v(RA,2)}, {v(RA,2)}, {v(RA+2,2)}
        v_cvt_pk_bf16_f32 v{RA+4}, v{RA}, v{RA+1}
        v_cmpx_o_f32 vcc, v{RA}, v{RA+1}
        buffer_store_dword v{RA+4}, v{MST}, {srd}, s{sMc} offen
        s_cmp_eq_u64 vcc, s[{sEx1}:{sEx1+1}]
        s_mov_b64 exec, -1
        """)
    A.nop(pre1)
    stamp("p1_start")
    if single1:
        junk()
        A(f"s_xor_b32 s{sPc2}, s{sPc2}, {WS_P ^ (WS_P + P_SLOT)}")
        if ackw: A(f"s_waitcnt vmcnt({ackw-1})")
        A.nop(gap1)
        if trace: stamp("p1_first")
        A.label("Lp1")
        if trace: stamp("p1_issue")
        pload(0)
        A(f"s_sub_u32 s{sSpin}, s{sSpin}, 1\ns_cbranch_scc1 Lp1giveup")
        pproc(0, 0)
        A("s_cbranch_scc0 Lp1")
    else:
        if jfirst:
            junk(); A.nop(jfirst - 1)
        if trace: stamp("p1_first")
        pload(0)
        if not jfirst: junk()
        A.nop(gap1)
        pload(16)
        A(f"s_xor_b32 s{sPc2}, s{sPc2}, {WS_P ^ (WS_P + P_SLOT)}")
        pproc(0, 4)
        A("s_cbranch_scc1 Lp1done")
        A.label("Lp1")
        pload(0)
        pproc(16, 5)
        A("s_cbranch_scc1 Lp1done")
        pload(16)
        A(f"s_sub_u32 s{sSpin}, s{sSpin}, 1\ns_cbranch_scc1 Lp1giveup")
        pproc(0, 5)
        A("s_cbranch_scc0 Lp1")
    A.label("Lp1done")
    stamp("p1_done")
    if diag:
        A(f"s_waitcnt lgkmcnt(0)\ns_sub_u32 s{sT+2}, s{sTM+2}, s{sTM}\ns_add_u32 s70, s70, s{sT+2}")
    if bar0: A("s_barrier")
    A.nop(pre2)
    if trace: stamp("p2_first")
    A("s_branch Lp2")
    A.label("Lodd")
    A(f"s_xor_b32 s{sPc2}, s{sPc2}, {WS_P ^ (WS_P + P_SLOT)}")
    junk()
    if diag:
        A(f"s_waitcnt lgkmcnt(0)\ns_sub_u32 s{sT+2}, s{sTM+2}, s{sTM}\ns_add_u32 s70, s70, s{sT+2}")
    if bar0: A("s_barrier")
    A.nop(pre2o)
    if trace: stamp("p2_first")
    A("s_branch Lp2")
    if back2:
        A.label("Lp2back")
        A.nop(back2)
        A("s_branch Lp2")
    A.label("Lp2bok")
    for k in range(0, 8, 2): A(f"v_pk_mov_b32 {v(k,2)}, {v(VX+k,2)}, {v(VX+k,2)} op_sel:[0,1]")
    A("s_nop 0\ns_branch Lstep")
    A.label("Lp2giveup")
    A(f"""
    s_mov_b32 s{sSpin}, 0
    s_waitcnt vmcnt(0)
    ds_write_b128 v{MOWN}, {v(0,4)}
    s_branch Lstep
    """)
    A.label("Lp1giveup")
    A(f"""
    s_mov_b32 s{sSpin}, 0
    v_mov_b32 v{RA+4}, 0x7fc07fc0
    s_waitcnt vmcnt(0)
    buffer_store_dword v{RA+4}, v{MST}, {srd}, s{sMc} offen
    s_branch Lp1done
    """)
    if timing:
        A.label("Ltm")
        A(f"s_memtime s[96:97]\ns_mov_b32 s98, s{sSpin}\ns_branch Ltmret")
    A.label("Lpub")
    A(f"""
    buffer_store_dwordx4 {v(0,4)}, v{MOWN}, {srd}, s{sMH} offen sc1
    buffer_store_dwordx4 {v(4,4)}, v{MOWN}, {srd}, s{sMH} offen offset:1024 sc1
    s_add_u32 s{sMH}, s{sMH}, 8192
    s_cmp_lg_u32 s{sW}, 0
    s_cbranch_scc1 Lpubret
    v_mov_b32 v{PB+14}, {DBG_MPROG}
    v_mov_b32 v{PB+15}, s{sStep}
    s_mov_b64 exec, 1
    global_store_dword v{PB+14}, v{PB+15}, s[8:9] sc1
    s_mov_b64 exec, -1
    s_branch Lpubret
    """)
    if full:
        kvpoll("B"); A("s_branch LkvBret")
    A.label("Lexit")
    L = A.newlabel("Lfin")
    A(f"""
    s_cmp_lg_u32 s{sH}, 0
    s_cbranch_scc1 {L}
    buffer_store_dwordx4 {v(0,4)}, v{MOWN}, {srd}, s{sMH} offen sc1
    buffer_store_dwordx4 {v(4,4)}, v{MOWN}, {srd}, s{sMH} offen offset:1024 sc1
    v_mov_b32 v{PB+14}, {DBG_MPROG}
    v_mov_b32 v{PB+15}, 64
    s_waitcnt vmcnt(0)
    s_barrier
    s_cmp_lg_u32 s{sW}, 0
    s_cbranch_scc1 {L}
    s_mov_b64 exec, 1
    global_store_dword v{PB+14}, v{PB+15}, s[8:9] sc1
    s_mov_b64 exec, -1
    """)
    A.label(L)
    if trace: A.label("Lexit2")
```

```python
from asmlib import *
from layout import *
import struct, math
def fbits(x): return struct.unpack("<I", struct.pack("<f", x))[0]

SRD = 4; sU, sW, sJ, sSig = 10, 11, 12, 13
sS, sSpin = 14, 18
SRDW = 28; sT = 36
L16 = 1
UROW = 4608
KROW = 4160
L_U, L_K, L_Y = 0, 8*UROW, 8*UROW + 8*KROW
L_RED = 0

def emit_conv_out(A):
    srd = f"s[{SRD}:{SRD+3}]"; srw = f"s[{SRDW}:{SRDW+3}]"
    cv = lambda d, a, b: A(f"v_cvt_pk_bf16_f32 v{d}, v{a}, v{b}")
    lo = lambda d, a: A(f"v_lshlrev_b32 v{d}, 16, v{a}")
    hi = lambda d, a: A(f"v_and_b32 v{d}, 0xffff0000, v{a}")
    A(f"""
    s_load_dwordx2 s[{SRD}:{SRD+1}], s[0:1], {KA['ws']}
    s_load_dwordx2 s[8:9], s[0:1], {KA['dbg']}
    s_load_dwordx4 s[48:51], s[0:1], {KA['Bk']}
    s_load_dwordx4 s[52:55], s[0:1], {KA['shift']}
    s_load_dwordx4 s[56:59], s[0:1], {KA['ssmD']}
    s_load_dwordx2 s[60:61], s[0:1], {KA['x']}
    s_load_dwordx2 s[62:63], s[0:1], {KA['Wo']}
    s_load_dwordx2 s[64:65], s[0:1], {KA['out']}
    v_lshrrev_b32 v5, 6, v0
    v_and_b32 v2, 63, v0
    v_readfirstlane_b32 s{sW}, v5
    v_and_b32 v3, 15, v2
    v_lshrrev_b32 v4, 4, v2
    v_lshlrev_b32 v{L16}, 4, v2
    s_mov_b32 s{SRD+2}, {WS_SIZE}
    s_mov_b32 s{SRD+3}, 0x00020000
    s_mov_b32 s{SRDW+2}, {2*MB}
    s_mov_b32 s{SRDW+3}, 0x00020000
    s_mov_b32 s66, {2*MB}
    s_mov_b32 s67, 0x00020000
    s_mov_b32 s{sSpin}, {SPIN}
    s_and_b32 s{sJ}, s{sU}, 15
    s_lshr_b32 s{sSig}, s{sU}, 4
    s_lshl_b32 s{sT}, s{sJ}, 2
    s_add_u32 s{sT}, s{sT}, s{sSig}
    s_lshl_b32 s{sT+1}, s{sT}, 4
    s_lshl_b32 s{sT+2}, s{sT}, 6
    s_waitcnt lgkmcnt(0)
    s_add_u32 s52, s52, s{sT+2}
    s_addc_u32 s53, s53, 0
    s_add_u32 s56, s56, s{sT+1}
    s_addc_u32 s57, s57, 0
    s_load_dwordx16 s[80:95], s[52:53], 0
    s_load_dwordx4 s[96:99], s[56:57], 0
    """)
    KR, VR, KV = 16, 60, 92
    A(f"""
    v_lshlrev_b32 v6, 13, v0
    v_add_u32 v6, s{sT+1}, v6
    v_subrev_u32 v7, 3072, v6
    v_add_u32 v8, 4096, v6
    s_mov_b32 s{SRDW}, s48
    s_mov_b32 s{SRDW+1}, s49
    """)
    for r in range(3): A(f"buffer_load_dwordx4 {v(KR + 4*r, 4)}, v7, {srw}, 0 offen offset:{r*1024}")
    for r in range(8): A(f"buffer_load_dwordx4 {v(KR + 12 + 4*r, 4)}, v{6 if r < 4 else 8}, {srw}, 0 offen offset:{(r & 3)*1024}")
    A(f"s_mov_b32 s{SRDW}, s50\ns_mov_b32 s{SRDW+1}, s51")
    for r in range(8): A(f"buffer_load_dwordx4 {v(VR + 4*r, 4)}, v{6 if r < 4 else 8}, {srw}, 0 offen offset:{(r & 3)*1024}")
    A(f"""
    s_mov_b32 s{SRDW}, s54
    s_mov_b32 s{SRDW+1}, s55
    s_lshl_b32 s{sT+2}, s{sT}, 15
    s_lshl_b32 s{sT+3}, s{sW}, 13
    s_add_u32 s{sT+2}, s{sT+2}, s{sT+3}
    s_mul_i32 s{sT+3}, s{sW}, {2*KROW}
    """)
    for c in range(2):
        for q in range(4):
            A(f"""
            s_add_u32 m0, s{sT+3}, {L_K + c*KROW + 64 + q*1024}
            s_add_u32 s{sT+4}, s{sT+2}, {c*4096 + q*1024}
            buffer_load_dwordx4 v{L16}, {srw}, s{sT+4} offen lds
            """)
    A(f"""
    v_mov_b32 v124, 0
    v_mov_b32 v125, 0
    v_mov_b32 v126, 0
    v_mov_b32 v127, 0
    v_lshrrev_b32 v9, 5, v0
    v_mul_u32_u24 v10, {UROW}, v9
    v_and_b32 v11, 31, v0
    v_lshl_add_u32 v10, v11, 4, v10
    ds_write_b128 v10, v[124:127] offset:{L_U}
    v_mul_u32_u24 v10, {KROW}, v9
    v_and_b32 v11, 3, v0
    v_lshl_add_u32 v10, v11, 4, v10
    ds_write_b128 v10, v[124:127] offset:{L_K}
    """)
    GX, GW = 128, 160
    A(f"""
    s_lshl_b32 s{sT+2}, s{sU}, 15
    s_lshl_b32 s{sT+3}, s{sW}, 13
    s_add_u32 s{sT+2}, s{sT+2}, s{sT+3}
    v_add_u32 v9, s{sT+2}, v{L16}
    v_add_u32 v10, 4096, v9
    global_load_dwordx4 {v(GW,4)}, v{L16}, s[58:59]
    """)
    for r in range(8): A(f"global_load_dwordx4 {v(GX + 4*r, 4)}, v{9 if r < 4 else 10}, s[60:61] offset:{(r & 3)*1024}")
    A("s_waitcnt vmcnt(0) lgkmcnt(0)")
    W8 = 164
    for k in range(4): lo(W8 + 2*k, GW + k); hi(W8 + 2*k + 1, GW + k)
    T0 = 172
    for r in range(8):
        for k in range(4):
            lo(T0, GX + 4*r + k); hi(T0 + 1, GX + 4*r + k)
            A(f"v_mul_f32 v{T0}, v{T0}, v{W8 + 2*k}\nv_mul_f32 v{T0+1}, v{T0+1}, v{W8 + 2*k + 1}")
            cv(T0 + 2, T0, T0 + 1)
            lo(T0, T0 + 2); hi(T0 + 1, T0 + 2)
            if k == 0: A(f"v_add_f32 v{180 + r}, v{T0}, v{T0+1}")
            else: A(f"v_add_f32 v{T0}, v{T0}, v{T0+1}\nv_add_f32 v{180 + r}, v{180 + r}, v{T0}")
    A.nop(2)
    for mod in ("quad_perm:[1,0,3,2]", "quad_perm:[2,3,0,1]", "row_ror:4", "row_ror:8"):
        for r in range(8): A(f"v_add_f32_dpp v{180+r}, v{180+r}, v{180+r} {mod} row_mask:0xf bank_mask:0xf")
    A(f"v_and_b32 v{T0}, 7, v3\nv_mov_b32 v{T0+1}, v180")
    for r in range(1, 8): A(f"v_cmp_eq_u32 vcc, {r}, v{T0}\ns_nop 1\nv_cndmask_b32 v{T0+1}, v{T0+1}, v{180+r}, vcc")
    A(f"""
    v_mov_b32 v{T0+2}, v{T0+1}
    s_nop 1
    v_permlane16_swap_b32 v{T0+1}, v{T0+2}
    v_add_f32 v{T0+3}, v{T0+1}, v{T0+2}
    v_add_f32 v{T0+4}, v{T0+1}, v{T0+2}
    s_nop 1
    v_permlane32_swap_b32 v{T0+3}, v{T0+4}
    v_add_f32 v{T0+1}, v{T0+3}, v{T0+4}
    v_cvt_pk_bf16_f32 v{T0+1}, v{T0+1}, v{T0+1}
    v_and_b32 v{T0+1}, 0xffff0000, v{T0+1}
    v_mul_f32 v{T0+1}, {fbits(-math.log2(math.e))}, v{T0+1}
    v_exp_f32 v{T0+1}, v{T0+1}
    s_nop 0
    v_add_f32 v{T0+1}, 1.0, v{T0+1}
    v_rcp_f32 v{T0+1}, v{T0+1}
    s_nop 0
    v_cvt_pk_bf16_f32 v{T0+1}, v{T0+1}, v{T0+1}
    v_and_b32 v{T0+1}, 0xffff0000, v{T0+1}
    s_lshr_b32 s{sT+2}, s{sT+2}, 8
    s_add_u32 s{sT+2}, s{sT+2}, {WS_G}
    v_lshlrev_b32 v{T0}, 2, v{T0}
    s_mov_b64 exec, 0xff
    buffer_store_dword v{T0+1}, v{T0}, {srd}, s{sT+2} offen sc1
    s_mov_b64 exec, -1
    """)
    XR = 128
    for r in range(8): A(f"global_load_dwordx4 {v(XR + 4*r, 4)}, v{6 if r < 4 else 8}, s[60:61] offset:{(r & 3)*1024}")
    KU, SH, P0, AC = 160, 100, 172, 176
    A(f"v_lshlrev_b32 v9, 4, v0\nv_add_u32 v9, {L_U + 512}, v9")
    shs = [100, 101, 68, 69]
    for ch in range(8):
        un = lo if ch % 2 == 0 else hi
        for r in range(11): un(KU + r, KR + 4*r + ch//2)
        A(f"""
        s_lshl_b32 s{shs[0]}, s{80 + 2*ch}, 16
        s_and_b32 s{shs[1]}, s{80 + 2*ch}, 0xffff0000
        s_lshl_b32 s{shs[2]}, s{81 + 2*ch}, 16
        s_and_b32 s{shs[3]}, s{81 + 2*ch}, 0xffff0000
        """)
        for p in range(4):
            for j in (3, 2, 1, 0):
                for e in range(2): A(f"v_mul_f32 v{P0+e}, s{shs[j]}, v{KU + 3 + 2*p + e - j}")
                cv(P0 + 2, P0, P0 + 1)
                if j == 3:
                    lo(AC, P0 + 2); hi(AC + 1, P0 + 2)
                else:
                    lo(P0, P0 + 2); hi(P0 + 1, P0 + 2)
                    for e in range(2): A(f"v_add_f32 v{AC+e}, v{AC+e}, v{P0+e}")
                    cv(P0 + 2, AC, AC + 1)
                    lo(AC, P0 + 2); hi(AC + 1, P0 + 2)
            for e in range(2):
                un(P0 + e, VR + 4*(2*p + e) + ch//2)
                A(f"v_mul_f32 v{P0+e}, v{P0+e}, v{AC+e}")
            cv(KV + 4*ch + 3 - p, P0 + 1, P0)
        A(f"ds_write_b128 v9, {v(KV + 4*ch, 4)} offset:{ch*UROW}")
    A("s_waitcnt lgkmcnt(0)\ns_barrier")
    AF, BF, CA = 16, 48, 160
    A(f"""
    v_lshlrev_b32 v10, 3, v4
    v_sub_u32 v10, v3, v10
    v_lshlrev_b32 v10, 1, v10
    s_mul_i32 s{sT+2}, s{sW}, {2*KROW}
    s_add_u32 s{sT+2}, s{sT+2}, {L_K + 64 + 18}
    v_add_u32 v10, s{sT+2}, v10
    v_lshl_add_u32 v11, v3, 1, v4
    v_lshlrev_b32 v11, 4, v11
    s_mul_i32 s{sT+2}, s{sW}, {2*UROW}
    s_add_u32 s{sT+2}, s{sT+2}, {L_U + 512 - 32}
    v_add_u32 v11, s{sT+2}, v11
    v_lshlrev_b32 v12, 5, v3
    v_lshl_add_u32 v12, v4, 3, v12
    s_lshl_b32 s{sT+2}, s{sW}, 13
    s_add_u32 s{sT+2}, s{sT+2}, {L_Y}
    v_add_u32 v12, s{sT+2}, v12
    s_mov_b32 s{sT+2}, 0
    """)
    A.label("Cch")
    for k in range(32): A(f"v_mov_b32 v{CA+k}, 0")
    A(f"s_mov_b32 s{sT+3}, 0")
    A.label("Crho")
    for n in range(8): A(f"ds_read_b128 {v(BF + 4*n, 4)}, v11 offset:{512*n}")
    A("s_waitcnt lgkmcnt(4)")
    for m in range(8): A(f"ds_read_b128 {v(AF + 4*m, 4)}, v10 offset:{512*m}")
    for m in range(8):
        A(f"s_waitcnt lgkmcnt({7 - m})")
        for tau in range(m, 8):
            A(f"v_mfma_f32_16x16x32_bf16 {v(CA + 4*tau, 4)}, {v(AF + 4*m, 4)}, {v(BF + 4*(tau - m), 4)}, {v(CA + 4*tau, 4)}")
    A(f"""
    v_add_u32 v10, 64, v10
    v_subrev_u32 v11, 64, v11
    s_add_u32 s{sT+3}, s{sT+3}, 1
    s_cmp_lt_u32 s{sT+3}, 8
    s_cbranch_scc1 Crho
    s_nop 4
    """)
    for tau in range(8):
        cv(AF + 2*tau, CA + 4*tau, CA + 4*tau + 1); cv(AF + 2*tau + 1, CA + 4*tau + 2, CA + 4*tau + 3)
        A(f"ds_write_b64 v12, {v(AF + 2*tau, 2)} offset:{512*tau}")
    A(f"""
    v_add_u32 v10, {KROW - 512}, v10
    v_add_u32 v11, {UROW + 512}, v11
    v_add_u32 v12, 4096, v12
    s_waitcnt lgkmcnt(0)
    s_add_u32 s{sT+2}, s{sT+2}, 1
    s_cmp_lt_u32 s{sT+2}, 2
    s_cbranch_scc1 Cch
    s_barrier
    v_lshlrev_b32 v9, 4, v0
    v_add_u32 v9, {L_Y}, v9
    """)
    YR, BO = 16, 48
    for ch in range(8): A(f"ds_read_b128 {v(YR + 4*ch, 4)}, v9 offset:{4096*ch}")
    A("s_waitcnt lgkmcnt(0) vmcnt(0)")
    for cp in range(4):
        A(f"s_lshl_b32 s100, s{96+cp}, 16\ns_and_b32 s101, s{96+cp}, 0xffff0000")
        for r in range(8):
            for e in range(2):
                ch = 2*cp + e
                (hi if r % 2 == 0 else lo)(P0 + e, KV + 4*ch + 3 - r//2)
                A(f"v_mul_f32 v{P0+e}, s{100+e}, v{P0+e}")
            cv(P0 + 2, P0, P0 + 1)
            lo(P0, P0 + 2); hi(P0 + 1, P0 + 2)
            for e in range(2):
                (lo if r % 2 == 0 else hi)(AC + e, YR + 4*(2*cp + e) + r//2)
                A(f"v_add_f32 v{P0+e}, v{P0+e}, v{AC+e}")
            cv(P0 + 2, P0, P0 + 1)
            lo(P0, P0 + 2); hi(P0 + 1, P0 + 2)
            lo(AC, XR + 4*r + cp); hi(AC + 1, XR + 4*r + cp)
            for e in range(2): A(f"v_mul_f32 v{P0+e}, v{P0+e}, v{AC+e}")
            cv(BO + 4*r + cp, P0, P0 + 1)
    A(f"""
    s_lshl_b32 s{sT+2}, s{sJ}, 17
    s_lshl_b32 s{sT+3}, s{sSig}, 4
    s_add_u32 s{sT+2}, s{sT+2}, s{sT+3}
    s_add_u32 s{sT+2}, s{sT+2}, {WS_B}
    v_lshlrev_b32 v9, 9, v0
    """)
    for r in range(8): A(f"buffer_store_dwordx4 {v(BO + 4*r, 4)}, v9, {srd}, s{sT+2} offen offset:{64*r} sc1")
    A(f"""
    s_waitcnt vmcnt(0)
    s_barrier
    s_cmp_lg_u32 s{sW}, 0
    s_cbranch_scc1 Cnf
    v_mov_b32 v9, {DBG_CONV}
    v_mov_b32 v10, 1
    s_mov_b64 exec, 1
    global_atomic_add v9, v10, s[8:9]
    s_mov_b64 exec, -1
    """)
    A.label("Cnf")
    A(f"""
    s_mov_b32 s{SRDW}, s62
    s_mov_b32 s{SRDW+1}, s63
    s_mov_b32 s{SRDW+2}, {4*MB}
    v_lshrrev_b32 v5, 2, v2
    v_lshlrev_b32 v5, 10, v5
    v_and_b32 v6, 3, v2
    v_lshl_add_u32 v5, v6, 4, v5
    s_lshl_b32 s{sT}, s{sW}, 20
    s_lshl_b32 s{sT+1}, s{sJ}, 6
    s_add_u32 s{sT}, s{sT}, s{sT+1}
    v_add_u32 v10, s{sT}, v5
    s_lshl_b32 s{sT+2}, s{sW}, 15
    v_lshrrev_b32 v5, 2, v3
    v_lshl_add_u32 v5, v4, 3, v5
    v_lshlrev_b32 v5, 6, v5
    v_lshl_add_u32 v5, v6, 4, v5
    v_add_u32 v12, s{sT+2}, v5
    """)
    def issue(n):
        for q in range(4):
            A(f"""
            s_add_u32 m0, s{sT+2}, {(n % 8)*4096 + q*1024}
            s_mov_b32 s{sT+1}, {(64*n + 16*q)*1024}
            buffer_load_dwordx4 v10, {srw}, s{sT+1} offen lds
            """)
    for n in range(8): issue(n)
    for n in range(16):
        A(f"s_waitcnt vmcnt({4*(min(n + 8, 16) - n - 1)})")
        for kk in range(2):
            for t in range(2):
                for u in range(2):
                    A(f"ds_read_b64_tr_b16 {a_(((2*n + kk)*2 + t)*4 + 2*u, 2)}, v12 offset:{(n % 8)*4096 + kk*2048 + u*256 + 8*t}")
        A("s_waitcnt lgkmcnt(0)")
        if n + 8 < 16: issue(n + 8)
    A(f"v_mov_b32 v9, {DBG_CONV}")
    A.label("Ocw")
    A(f"""
    global_load_dword v14, v9, s[8:9] sc1
    s_sub_u32 s{sSpin}, s{sSpin}, 1
    s_cbranch_scc1 Ocg
    s_waitcnt vmcnt(0)
    v_readfirstlane_b32 s{sT}, v14
    s_cmp_ge_u32 s{sT}, 64
    s_cbranch_scc1 Ocd
    s_sleep 4
    s_branch Ocw
    """)
    A.label("Ocg")
    A(f"s_mov_b32 s{sSpin}, 0")
    A.label("Ocd")
    A(f"""
    s_barrier
    s_and_b32 s{sT}, s{sW}, 1
    s_lshl_b32 s{sT}, s{sT}, 2
    v_lshrrev_b32 v5, 2, v3
    v_lshlrev_b32 v5, 3, v5
    v_add_u32 v5, v5, v6
    v_add_u32 v5, s{sT}, v5
    v_lshlrev_b32 v7, 2, v5
    s_lshr_b32 s{sT}, s{sW}, 1
    s_lshl_b32 s{sT}, s{sT}, 3
    v_lshlrev_b32 v8, 4, v4
    v_add_u32 v8, s{sT}, v8
    v_lshl_add_u32 v9, v5, 6, v8
    v_lshl_add_u32 v8, v5, 10, v8
    s_lshl_b32 s{sT}, s{sJ}, 6
    v_add_u32 v8, s{sT}, v8
    s_lshl_b32 s{sT}, s{sW}, 12
    v_add_u32 v10, s{sT}, v{L16}
    s_lshl_b32 s{sT}, s{sW}, 10
    v_add_u32 v11, s{sT}, v{L16}
    v_and_b32 v13, 7, v2
    s_lshl_b32 s{sT}, s{sW}, 3
    s_add_u32 s{sT}, s{sT}, {DBG_PROG}
    v_add_u32 v13, s{sT}, v13
    s_mov_b32 s{sS}, s{sSig}
    """)
    OB, NB = 32, 48
    OA, RD, EB, EG = 16, 224, 240, 242
    A.label("Otop")
    A(f"""
    s_mul_i32 s{sT}, s{sS}, 52
    s_lshr_b32 s{sT}, s{sT}, 8
    s_mul_i32 s{sT+1}, s{sT}, 5
    s_sub_u32 s{sT+1}, s{sS}, s{sT+1}
    s_lshl_b32 s{sT+1}, s{sT+1}, 5
    v_add_u32 v15, s{sT+1}, v13
    s_add_u32 s{sT}, s{sT}, 14
    s_lshl_b32 s{sT+1}, s{sS}, 7
    s_add_u32 s{sT+1}, s{sT+1}, {WS_G}
    buffer_load_dword v{EG}, v7, {srd}, s{sT+1} offen sc1
    s_lshl_b32 s{sT+1}, s{sS}, 11
    s_lshl_b32 s{sT+2}, s{sJ}, 17
    s_add_u32 s{sT+1}, s{sT+1}, s{sT+2}
    s_add_u32 s{sT+1}, s{sT+1}, {WS_B}
    buffer_load_dwordx2 {v(EB,2)}, v9, {srd}, s{sT+1} offen sc1
    """)
    A.label("Opoll")
    A(f"""
    global_load_ubyte v14, v15, s[8:9] sc1
    s_sub_u32 s{sSpin}, s{sSpin}, 1
    s_cbranch_scc1 Ogv
    s_waitcnt vmcnt(0)
    v_cmp_gt_u32 vcc, s{sT}, v14
    s_cbranch_vccz Ogo
    s_sleep 2
    s_branch Opoll
    """)
    A.label("Ogv")
    A(f"s_mov_b32 s{sSpin}, 0\ns_waitcnt vmcnt(0)")
    A.label("Ogo")
    A(f"""
    s_lshl_b32 s{sT}, s{sS}, 18
    s_lshl_b32 s{sT+1}, s{sW}, 16
    s_add_u32 s{sT}, s{sT}, s{sT+1}
    s_add_u32 s{sT}, s{sT}, {WS_O}
    """)
    def oload(n):
        if n % 4 == 0 and n: A(f"s_add_u32 s{sT}, s{sT}, 4096")
        A(f"buffer_load_dwordx4 {v(OB + 4*(n % NB), 4)}, v{L16}, {srd}, s{sT} offen offset:{(n & 3)*1024} sc1")
    for n in range(NB): oload(n)
    for n in range(64):
        ks, qt = n >> 1, n & 1
        issued = min(64, NB + n)
        A(f"s_waitcnt vmcnt({issued - n - 1})")
        for t in range(2):
            d = v(OA + (t*2 + qt)*4, 4)
            A(f"v_mfma_f32_16x16x32_bf16 {d}, {a_((ks*2 + t)*4, 4)}, {v(OB + 4*(n % NB), 4)}, {d if ks else 0}")
        if NB + n < 64: oload(NB + n)
    A.nop(8)
    for k in range(4): A(f"ds_write_b128 v10, {v(OA + 4*k, 4)} offset:{L_RED + 1024*k}")
    A("s_waitcnt lgkmcnt(0)\ns_barrier")
    for k in range(4): A(f"ds_read_b128 {v(RD + 4*k, 4)}, v11 offset:{L_RED + 4096*k}")
    G1 = EG + 1
    A(f"""
    v_sub_f32 v{G1}, 1.0, v{EG}
    v_cvt_pk_bf16_f32 v{G1}, v{G1}, v{G1}
    v_and_b32 v{G1}, 0xffff0000, v{G1}
    """)
    BU = 244
    lo(BU, EB); hi(BU + 1, EB); lo(BU + 2, EB + 1); hi(BU + 3, EB + 1)
    for k in range(4): A(f"v_mul_f32 v{BU+k}, v{BU+k}, v{G1}")
    cv(EB, BU, BU + 1); cv(EB + 1, BU + 2, BU + 3)
    lo(BU, EB); hi(BU + 1, EB); lo(BU + 2, EB + 1); hi(BU + 3, EB + 1)
    A("s_waitcnt lgkmcnt(0)\ns_barrier")
    for k in range(4): A(f"v_add_f32 v{RD+k}, v{RD+k}, v{RD+4+k}\nv_add_f32 v{RD+8+k}, v{RD+8+k}, v{RD+12+k}")
    for k in range(4): A(f"v_add_f32 v{RD+k}, v{RD+k}, v{RD+8+k}")
    def rnd():
        cv(RD + 4, RD, RD + 1); cv(RD + 5, RD + 2, RD + 3)
        lo(RD, RD + 4); hi(RD + 1, RD + 4); lo(RD + 2, RD + 5); hi(RD + 3, RD + 5)
    rnd()
    for k in range(4): A(f"v_mul_f32 v{RD+k}, v{RD+k}, v{EG}")
    rnd()
    for k in range(4): A(f"v_add_f32 v{RD+k}, v{RD+k}, v{BU+k}")
    cv(RD + 4, RD, RD + 1); cv(RD + 5, RD + 2, RD + 3)
    A(f"""
    s_lshl_b32 s{sT}, s{sS}, 15
    buffer_store_dwordx2 {v(RD+4,2)}, v8, s[64:67], s{sT} offen
    s_add_u32 s{sS}, s{sS}, 4
    s_cmp_lt_u32 s{sS}, 64
    s_cbranch_scc1 Otop
    s_branch Lend
    """)

if __name__ == "__main__":
    A = Asm(); emit_conv_out(A); A.label("Lend")
    for e in check(A.lines): print("HAZARD", e)
    print(len(A.lines), L_Y + 32768)
    assert all((s*52) >> 8 == s//5 for s in range(64))
```

```python
from asmlib import *
from layout import *
import struct, math
def fbits(x): return struct.unpack("<I", struct.pack("<f", x))[0]

SRD = 4; sH, sW, sI, sS = 10, 11, 12, 13
sCnt, sSpin, sKV, sQ, sC, sXB = 14, 18, 16, 17, 26, 19
SRDW = 28; sT = 36
sMask = 60
L16 = 1
def KW(ks, t): return a_((ks*2 + t)*4, 4)
def VW(ks, t): return a_(128 + (ks*2 + t)*4, 4)
def QW(ks, t): return v(128 + (ks*2 + t)*4, 4)
XB0 = 131072

def emit_head_worker(A):
    srd = f"s[{SRD}:{SRD+3}]"; srw = f"s[{SRDW}:{SRDW+3}]"
    cv = lambda d, a, b: A(f"v_cvt_pk_bf16_f32 v{d}, v{a}, v{b}")
    A(f"""
    s_load_dwordx2 s[{SRD}:{SRD+1}], s[0:1], {KA['ws']}
    s_load_dwordx2 s[8:9], s[0:1], {KA['dbg']}
    s_load_dwordx4 s[48:51], s[0:1], {KA['Wq']}
    s_load_dwordx2 s[52:53], s[0:1], {KA['Wv']}
    s_load_dwordx2 s[56:57], s[0:1], {KA['x']}
    v_lshrrev_b32 v5, 6, v0
    v_and_b32 v2, 63, v0
    v_readfirstlane_b32 s{sW}, v5
    v_and_b32 v3, 15, v2
    v_lshrrev_b32 v4, 4, v2
    v_lshlrev_b32 v{L16}, 4, v2
    s_mov_b32 s{SRD+2}, {WS_SIZE}
    s_mov_b32 s{SRD+3}, 0x00020000
    s_mov_b32 s{SRDW+2}, {4*MB}
    s_mov_b32 s{SRDW+3}, 0x00020000
    s_mov_b32 s58, {2*MB}
    s_mov_b32 s59, 0x00020000
    s_mov_b32 s{sSpin}, {SPIN}
    s_mov_b32 s{sC}, {fbits(128**-0.5 * math.log2(math.e))}
    """)
    A(f"""
    v_lshlrev_b32 v5, 2, v4
    v_xor_b32 v5, v5, v3
    v_lshlrev_b32 v5, 4, v5
    v_lshl_add_u32 v5, v4, 13, v5
    s_lshl_b32 s{sT}, s{sH}, 8
    s_lshl_b32 s{sT+1}, s{sW}, 18
    s_add_u32 s{sT}, s{sT}, s{sT+1}
    v_add_u32 v10, s{sT}, v5
    v_lshrrev_b32 v5, 2, v3
    v_lshl_add_u32 v12, v4, 3, v5
    v_lshlrev_b32 v12, 8, v12
    v_xor_b32 v5, s{sW}, v5
    v_and_b32 v11, 3, v3
    v_lshl_add_u32 v5, v5, 2, v11
    v_lshl_add_u32 v12, v5, 4, v12
    v_add_u32 v13, 65536, v12
    v_xor_b32 v5, v4, v3
    v_lshlrev_b32 v11, 10, v3
    v_add_u32 v11, {XB0}, v11
    """)
    for b in range(4):
        A(f"v_xor_b32 v14, {4*b}, v5\nv_lshl_add_u32 v{6+b}, v14, 4, v11")
    A(f"""
    s_lshl_b32 s{sT+2}, s{sW}, 13
    s_mov_b32 s{sS}, s{sI}
    s_mov_b32 s{sXB}, {XB0}
    s_waitcnt lgkmcnt(0)
    """)
    def xdma():
        A(f"""
        s_lshl_b32 s{sT}, s{sS}, 15
        s_and_b32 s{sT+1}, s{sW}, 1
        s_lshl_b32 s{sT+3}, s{sT+1}, 14
        s_add_u32 s{sT}, s{sT}, s{sT+3}
        s_lshr_b32 s{sT+3}, s{sW}, 1
        s_lshl_b32 s{sT+3}, s{sT+3}, 12
        s_add_u32 s{sT}, s{sT}, s{sT+3}
        s_lshl_b32 s{sT+1}, s{sT+1}, 7
        s_add_u32 s{sT+4}, s{sXB}, s{sT+2}
        """)
        for q in range(8):
            A(f"""
            s_xor_b32 s{sT+3}, s{sT+1}, {q*16}
            v_xor_b32 v14, s{sT+3}, v{L16}
            s_add_u32 m0, s{sT+4}, {q*1024}
            s_add_u32 s{sT+3}, s{sT}, {(8*(q >> 2) + (q & 3))*1024}
            buffer_load_dwordx4 v14, s[56:59], s{sT+3} offen lds
            """)
    xdma()
    base = [50, 52, 48]
    dst = [lambda ks, t: ("a", (ks*2 + t)*4), lambda ks, t: ("a", 128 + (ks*2 + t)*4), lambda ks, t: ("v", 128 + (ks*2 + t)*4)]
    def wdma(n):
        if n % 4 == 0: A(f"s_mov_b32 s{SRDW}, s{base[n//4]}\ns_mov_b32 s{SRDW+1}, s{base[n//4]+1}")
        for q in range(8):
            A(f"""
            s_add_u32 m0, s{sT+2}, {(n % 4)*32768 + q*1024}
            s_mov_b32 s{sT+1}, {(128*(n % 4) + 4*q)*8192}
            buffer_load_dwordx4 v10, {srw}, s{sT+1} offen lds
            """)
    for n in range(3): wdma(n)
    for n in range(12):
        A(f"s_waitcnt vmcnt({8*(min(n + 3, 12) - n - 1)})")
        A("s_barrier")
        if n + 3 < 12: wdma(n + 3)
        for kk in range(4):
            for t in range(2):
                k, r0 = dst[n//4](4*(n % 4) + kk, t)
                for u in range(2):
                    A(f"ds_read_b64_tr_b16 {R(k, r0 + 2*u, 2)}, v{12 + ((n % 4) >> 1)} offset:{(n & 1)*32768 + kk*8192 + u*1024 + 8*t}")
            if kk == 1: A("s_waitcnt lgkmcnt(0)")
        A("s_waitcnt lgkmcnt(0)")
    XF = 16
    ACC = 40
    PK = 88
    A(f"""
    s_lshl_b32 s{sT}, s{sI}, 5
    s_add_u32 s{sT}, s{sT}, s{sH}
    s_add_u32 s{sT}, s{sT}, {DBG_PROG}
    v_mov_b32 v15, s{sT}
    s_mov_b32 s{sCnt}, 0
    """)
    A.label("H1top")
    A(f"""
    s_waitcnt vmcnt(6)
    s_barrier
    s_cmp_lt_u32 s{sCnt}, 2
    s_cbranch_scc1 H1nf
    s_cmp_lg_u32 s{sW}, 0
    s_cbranch_scc1 H1nf
    s_sub_u32 s{sT}, s{sCnt}, 1
    v_mov_b32 v14, s{sT}
    s_mov_b64 exec, 1
    global_store_byte v15, v14, s[8:9] sc1
    s_mov_b64 exec, -1
    """)
    A.label("H1nf")
    A(f"""
    s_lshl_b32 s{sKV}, s{sS}, 5
    s_add_u32 s{sKV}, s{sKV}, s{sH}
    s_lshl_b32 s{sKV}, s{sKV}, 2
    s_add_u32 s{sKV}, s{sKV}, s{sW}
    s_lshl_b32 s{sQ}, s{sKV}, 11
    s_add_u32 s{sQ}, s{sQ}, {WS_Q}
    s_lshl_b32 s{sKV}, s{sKV}, 12
    s_add_u32 s{sS}, s{sS}, 5
    s_xor_b32 s{sXB}, s{sXB}, {XB0}
    s_cmp_ge_u32 s{sS}, 64
    s_cbranch_scc1 H1nx
    """)
    xdma()
    A.label("H1nx")
    def xread(ks):
        for kt in range(2):
            A(f"ds_read_b128 {v(XF + (ks % 3)*8 + 4*kt, 4)}, v{6 + (ks & 3)} offset:{(ks >> 2)*256 + kt*16384}")
    xread(0); xread(1)
    for ks in range(16):
        if ks + 2 < 16:
            xread(ks + 2); A("s_waitcnt lgkmcnt(4)")
        else: A(f"s_waitcnt lgkmcnt({2*(15 - ks)})")
        for kt in range(2):
            xf = v(XF + (ks % 3)*8 + 4*kt, 4)
            for t in range(2):
                for m in range(3):
                    d = v(ACC + m*16 + (kt*2 + t)*4, 4)
                    c = d if ks else "0"
                    if m == 0: A(f"v_mfma_f32_16x16x32_bf16 {d}, {KW(ks,t)}, {xf}, {c}")
                    if m == 1: A(f"v_mfma_f32_16x16x32_bf16 {d}, {xf}, {VW(ks,t)}, {c}")
                    if m == 2: A(f"v_mfma_f32_16x16x32_bf16 {d}, {QW(ks,t)}, {xf}, {c}")
    for b in range(4): A(f"v_xor_b32 v{6+b}, {XB0}, v{6+b}")
    A.nop(4)
    ac = lambda m, kt, t: ACC + m*16 + (kt*2 + t)*4
    for kt in range(2):
        for t in range(2):
            cv(PK + kt*4 + 2*t, ac(0,kt,t), ac(0,kt,t)+1); cv(PK + kt*4 + 2*t + 1, ac(0,kt,t)+2, ac(0,kt,t)+3)
        A(f"buffer_store_dwordx4 {v(PK + kt*4, 4)}, v{L16}, {srd}, s{sKV} offen offset:{kt*1024} sc1")
    for t in range(2):
        for kt in range(2):
            cv(PK + 8 + t*4 + 2*kt, ac(1,kt,t), ac(1,kt,t)+1); cv(PK + 8 + t*4 + 2*kt + 1, ac(1,kt,t)+2, ac(1,kt,t)+3)
        A(f"buffer_store_dwordx4 {v(PK + 8 + t*4, 4)}, v{L16}, {srd}, s{sKV} offen offset:{2048 + t*1024} sc1")
    for kt in range(2):
        for t in range(2):
            cv(PK + 16 + kt*4 + 2*t, ac(2,kt,t), ac(2,kt,t)+1); cv(PK + 16 + kt*4 + 2*t + 1, ac(2,kt,t)+2, ac(2,kt,t)+3)
        A(f"buffer_store_dwordx4 {v(PK + 16 + kt*4, 4)}, v{L16}, {srd}, s{sQ} offen offset:{kt*1024} sc1")
    A(f"""
    s_add_u32 s{sCnt}, s{sCnt}, 1
    s_cmp_lt_u32 s{sS}, 64
    s_cbranch_scc1 H1top
    s_mov_b32 s{sCnt}, 13
    s_mov_b32 s{sS}, s{sI}
    """)
    QF, KF, VF, MF = 16, 32, 64, 128
    SX, SM = 80, 88
    AK_, AV_ = 92, 100
    KM, VMr = 108, 192
    PX, PM, OA, OP = 200, 204, 208, 224
    X, Y = 124, 125
    EX = 65536
    A(f"""
    v_lshrrev_b32 v5, 2, v3
    v_sub_u32 v5, v5, v4
    v_lshlrev_b32 v5, 3, v5
    v_and_b32 v11, 3, v3
    v_add_u32 v5, v5, v11
    s_and_b32 s{sT}, s{sW}, 1
    s_lshl_b32 s{sT}, s{sT}, 2
    v_add_u32 v5, s{sT}, v5
    """)
    for k in range(8): A(f"v_cmp_le_i32 s[{sMask+2*k}:{sMask+2*k+1}], {k}, v5")
    A(f"""
    v_cmp_gt_u32 s[76:77], 2, v4
    v_and_b32 v6, 7, v3
    v_lshl_add_u32 v6, v4, 3, v6
    v_lshlrev_b32 v6, 4, v6
    s_lshl_b32 s{sT}, s{sW}, 11
    v_add_u32 v7, s{sT}, v{L16}
    v_add_u32 v7, {EX}, v7
    v_add_u32 v8, {EX}, v{L16}
    s_lshr_b32 s{sT}, s{sW}, 1
    s_lshl_b32 s{sT}, s{sT}, 12
    v_add_u32 v9, s{sT}, v8
    v_mov_b32 v10, {DBG_MPROG}
    v_mov_b32 v11, 0xff800000
    """)
    A.label("H3top")
    A(f"""
    s_waitcnt vmcnt(0)
    s_barrier
    s_cmp_lg_u32 s{sW}, 0
    s_cbranch_scc1 H3nf
    v_mov_b32 v14, s{sCnt}
    s_mov_b64 exec, 1
    global_store_byte v15, v14, s[8:9] sc1
    s_mov_b64 exec, -1
    """)
    A.label("H3nf")
    A(f"""
    s_cmp_ge_u32 s{sS}, 64
    s_cbranch_scc1 Lend
    s_lshl_b32 s{sKV}, s{sS}, 5
    s_add_u32 s{sKV}, s{sKV}, s{sH}
    s_lshl_b32 s{sQ}, s{sKV}, 13
    s_lshl_b32 s{sKV}, s{sKV}, 14
    s_and_b32 s{sT}, s{sW}, 1
    s_lshl_b32 s{sT}, s{sT}, 10
    s_add_u32 s{sQ}, s{sQ}, s{sT}
    s_add_u32 s{sT+1}, s{sQ}, {WS_Q}
    s_add_u32 s{sT+3}, s{sT+1}, 4096
    """)
    for sl in range(4):
        A(f"buffer_load_dwordx4 {v(QF + 4*sl, 4)}, v{L16}, {srd}, s{sT + (1 if sl < 2 else 3)} offen offset:{(sl & 1)*2048} sc1")
    for sl in range(4):
        A(f"s_add_u32 s{sT+1}, s{sKV}, {sl*4096}")
        for kt in range(2):
            A(f"buffer_load_dwordx4 {v(KF + 8*sl + 4*kt, 4)}, v{L16}, {srd}, s{sT+1} offen offset:{kt*1024} sc1")
    A(f"""
    s_lshr_b32 s{sT}, s{sW}, 1
    s_lshl_b32 s{sT+4}, s{sT}, 12
    s_lshl_b32 s{sT}, s{sT}, 13
    s_add_u32 s{sT+1}, s{sKV}, s{sT}
    s_add_u32 s{sT+3}, s{sT+1}, 4096
    s_add_u32 s{sQ}, s{sQ}, s{sT+4}
    s_add_u32 s{sQ}, s{sQ}, {WS_O}
    """)
    for sl in range(2):
        for t in range(2):
            A(f"buffer_load_dwordx4 {v(VF + 8*sl + 4*t, 4)}, v{L16}, {srd}, s{sT + 1 + 2*sl} offen offset:{2048 + t*1024} sc1")
    A("s_waitcnt vmcnt(4)")
    for sl in range(4):
        for kt in range(2):
            d = v(SX + 4*kt, 4)
            A(f"v_mfma_f32_16x16x32_bf16 {d}, {v(KF + 8*sl + 4*kt, 4)}, {v(QF + 4*sl, 4)}, {d if sl else 0}")
    A.nop(8)
    for k in range(8): A(f"v_cndmask_b32 v{SX+k}, v11, v{SX+k}, s[{sMask+2*k}:{sMask+2*k+1}]")
    A(f"""
    v_max3_f32 v{X}, v{SX}, v{SX+1}, v{SX+2}
    v_max3_f32 v{X}, v{X}, v{SX+3}, v{SX+4}
    v_max3_f32 v{X}, v{X}, v{SX+5}, v{SX+6}
    v_max_f32 v{X}, v{X}, v{SX+7}
    s_cmp_lg_u32 s{sW}, 0
    s_cbranch_scc1 H3go
    """)
    A.label("H3poll")
    A(f"""
    global_load_dword v14, v10, s[8:9] sc1
    s_sub_u32 s{sSpin}, s{sSpin}, 1
    s_cbranch_scc1 H3gv
    s_waitcnt vmcnt(0)
    v_readfirstlane_b32 s{sT}, v14
    s_cmp_gt_u32 s{sT}, s{sS}
    s_cbranch_scc1 H3go
    s_sleep 2
    s_branch H3poll
    """)
    A.label("H3gv")
    A(f"s_mov_b32 s{sSpin}, 0")
    A.label("H3go")
    A(f"""
    s_barrier
    s_lshl_b32 s{sT}, s{sS}, 13
    s_add_u32 s{sT}, s{sT}, {WS_MH}
    s_add_u32 s{sT+1}, s{sT}, 4096
    """)
    for ks in range(16):
        off = f_to_pos(ks >> 1)*1024 + (ks & 1)*512
        A(f"buffer_load_dwordx4 {v(MF + 4*ks, 4)}, v6, {srd}, s{sT + (off >> 12)} offen offset:{off & 4095} sc1")
    for ks in range(16):
        A(f"s_waitcnt vmcnt({15 - ks})")
        mf = v(MF + 4*ks, 4)
        for t in range(2):
            d = v(AK_ + 4*t, 4); A(f"v_mfma_f32_16x16x32_bf16 {d}, {KW(ks,t)}, {mf}, {d if ks else 0}")
        for t in range(2):
            d = v(AV_ + 4*t, 4); A(f"v_mfma_f32_16x16x32_bf16 {d}, {mf}, {VW(ks,t)}, {d if ks else 0}")
    A.nop(4)
    for k in range(4): cv(KM + k, AK_ + 2*k, AK_ + 2*k + 1)
    for k in range(4): cv(KM + 4 + k, AV_ + 2*k, AV_ + 2*k + 1)
    A(f"""
    ds_write_b128 v7, {v(KM,4)}
    ds_write_b128 v7, {v(KM+4,4)} offset:1024
    s_waitcnt lgkmcnt(0)
    s_barrier
    """)
    for sl in range(4): A(f"ds_read_b128 {v(KM + 4*sl, 4)}, v8 offset:{2048*sl}")
    for sl in range(2): A(f"ds_read_b128 {v(VMr + 4*sl, 4)}, v9 offset:{2048*sl + 1024}")
    for sl in range(4):
        A(f"s_waitcnt lgkmcnt({5 - sl})")
        A(f"v_mfma_f32_16x16x32_bf16 {v(SM,4)}, {v(KM + 4*sl, 4)}, {v(QF + 4*sl, 4)}, {v(SM,4) if sl else 0}")
    A.nop(8)
    for k in range(4): A(f"v_cndmask_b32 v{SM+k}, v11, v{SM+k}, s[76:77]")
    A(f"""
    v_max3_f32 v{X}, v{X}, v{SM}, v{SM+1}
    v_max3_f32 v{Y}, v{X}, v{SM+2}, v{SM+3}
    v_max3_f32 v{X}, v{X}, v{SM+2}, v{SM+3}
    s_nop 1
    v_permlane16_swap_b32 v{X}, v{Y}
    v_max_f32 v126, v{X}, v{Y}
    v_max_f32 v127, v{X}, v{Y}
    s_nop 1
    v_permlane32_swap_b32 v126, v127
    v_max_f32 v{X}, v126, v127
    v_mul_f32 v{X}, s{sC}, v{X}
    """)
    for k in range(12): A(f"v_fma_f32 v{SX+k}, v{SX+k}, s{sC}, -v{X}")
    for k in range(12): A(f"v_exp_f32 v{SX+k}, v{SX+k}")
    for k in range(6): cv(PX + k, SX + 2*k, SX + 2*k + 1)
    A("s_waitcnt lgkmcnt(0)\ns_nop 0")
    for sl in range(2):
        for t in range(2):
            A(f"v_mfma_f32_16x16x32_bf16 {v(OA + 8*sl + 4*t, 4)}, {v(VF + 8*sl + 4*t, 4)}, {v(PX,4)}, 0")
    for sl in range(2):
        for t in range(2):
            d = v(OA + 8*sl + 4*t, 4)
            A(f"v_mfma_f32_16x16x16_bf16 {d}, {v(VMr + 4*sl + 2*t, 2)}, {v(PM,2)}, {d}")
    for k in range(0, 12, 2): A(f"v_add_f32 v{SX+k}, v{SX+k}, v{SX+k+1}")
    for k in range(0, 12, 4): A(f"v_add_f32 v{SX+k}, v{SX+k}, v{SX+k+2}")
    A(f"""
    v_add_f32 v{X}, v{SX}, v{SX+4}
    v_add_f32 v{Y}, v{X}, v{SX+8}
    v_add_f32 v{X}, v{X}, v{SX+8}
    s_nop 1
    v_permlane16_swap_b32 v{X}, v{Y}
    v_add_f32 v126, v{X}, v{Y}
    v_add_f32 v127, v{X}, v{Y}
    s_nop 1
    v_permlane32_swap_b32 v126, v127
    v_add_f32 v{X}, v126, v127
    v_rcp_f32 v{X}, v{X}
    s_nop 0
    """)
    for k in range(16): A(f"v_mul_f32 v{OA+k}, v{OA+k}, v{X}")
    for k in range(8): cv(OP + k, OA + 2*k, OA + 2*k + 1)
    for sl in range(2):
        A(f"buffer_store_dwordx4 {v(OP + 4*sl, 4)}, v{L16}, {srd}, s{sQ} offen offset:{2048*sl} sc1")
    A(f"""
    s_add_u32 s{sCnt}, s{sCnt}, 1
    s_add_u32 s{sS}, s{sS}, 5
    s_branch H3top
    """)

if __name__ == "__main__":
    A = Asm(); emit_head_worker(A); A.label("Lend")
    for e in check(A.lines): print("HAZARD", e)
    print(len(A.lines))
```

```python
MB = 1 << 20
WS_KV = 0
WS_Q  = 32*MB
WS_O  = 48*MB
WS_Y  = 64*MB
WS_P  = 72*MB
P_SLOT = 128*32*64
WS_M  = 73*MB
WS_MH = 74*MB
WS_FL = 75*MB
WS_DBG = 76*MB
WS_SIZE = 256*MB
KA = dict(x=0, mem0=8, Wq=16, Wk=24, Wv=32, Wo=40, seg=48, Bq=56, Bk=64, Bv=72, shift=80, ssmk=88, ssmD=96, gate=104, out=112, dbg=120, ws=128)
def pos_to_f(pos):
    ww, ii = pos >> 1, pos & 1
    i = ww >> 1; wp = 2*(ww & 1) + ii
    return 2*wp + i
def f_to_pos(f):
    wp, i = f >> 1, f & 1
    return 2*(2*i + (wp >> 1)) + (wp & 1)
assert all(f_to_pos(pos_to_f(p)) == p for p in range(8))
DBG_XCC = 0
DBG_TEAM = 32
DBG_CONV = 36
DBG_MPROG = 40
DBG_PROG = 64
WS_B = WS_Y
WS_G = WS_Y + 4*MB
SPIN = 0x40000
```

```python
import sys
from asmlib import *
from layout import *
import chain, headw, convout
NAME = "gated_mix__memory_aug_recurrent_mem_tr__ssm_conv_h3__prompt"
CHAIN_CFG = dict(jfirst=32, gap1=28, bar0=1, pre2=0, pre2o=0)
def body(stamps=False, roles="CHO", **kw):
    A = Asm()
    A(f"""
    s_cmp_ge_u32 s2, 256
    s_cbranch_scc1 Lend2
    s_load_dwordx2 s[8:9], s[0:1], {KA['dbg']}
    s_getreg_b32 s3, hwreg(HW_REG_XCC_ID, 0, 3)
    """)
    if stamps: A("s_memrealtime s[78:79]")
    A(f"""
    s_lshl_b32 s4, s3, 2
    v_mov_b32 v1, s4
    v_mov_b32 v2, 1
    v_mov_b32 v4, 0
    v_cmp_eq_u32 vcc, 0, v0
    s_and_saveexec_b64 s[20:21], vcc
    s_cbranch_execz Lnoat
    s_waitcnt lgkmcnt(0)
    global_atomic_add v3, v1, v2, s[8:9] sc0
    s_waitcnt vmcnt(0)
    ds_write_b32 v4, v3
    s_waitcnt lgkmcnt(0)
    """)
    A.label("Lnoat")
    A(f"""
    s_mov_b64 exec, s[20:21]
    s_barrier
    ds_read_b32 v3, v4
    s_waitcnt lgkmcnt(0)
    v_readfirstlane_b32 s10, v3
    s_barrier
    s_cmp_ge_u32 s10, 32
    s_cbranch_scc1 Lend2
    s_lshl_b32 s2, s3, 5
    s_add_u32 s2, s2, s10
    s_cmp_eq_u32 s3, 0
    s_cbranch_scc1 Rchain
    s_sub_u32 s10, s2, 32
    s_cmp_ge_u32 s10, 160
    s_cbranch_scc1 Rconv
    s_mul_i32 s4, s10, 205
    s_lshr_b32 s4, s4, 10
    s_mul_i32 s5, s4, 5
    s_sub_u32 s12, s10, s5
    s_mov_b32 s10, s4
    """)
    assert all((r*205) >> 10 == r//5 for r in range(160))
    if "H" in roles: headw.emit_head_worker(A)
    else: A("s_branch Lend2")
    A.label("Rconv")
    A("s_sub_u32 s10, s10, 160")
    if "O" in roles: convout.emit_conv_out(A)
    else: A("s_branch Lend2")
    A.label("Rchain")
    if "C" in roles:
        chain.emit_chain_init(A)
        if stamps: A("s_memrealtime s[76:77]")
        chain.emit_chain_loop(A, full=1, **dict(CHAIN_CFG, **kw))
    else: A("s_branch Lend2")
    A.label("Lend")
    if stamps:
        A(f"""
        s_memrealtime s[74:75]
        s_waitcnt vmcnt(0) lgkmcnt(0)
        s_nop 15
        s_lshl_b32 s36, s2, 4
        s_add_u32 s36, s36, {WS_DBG}
        v_mov_b32 v0, s78
        v_mov_b32 v1, s76
        v_mov_b32 v2, s74
        v_mov_b32 v3, s18
        buffer_store_dwordx4 v[0:3], off, s[4:7], s36
        """)
    A.label("Lend2")
    errs = check(A.lines)
    for e in errs: print("HAZARD", e, file=sys.stderr)
    return A.text()
def full_file(**kw):
    ref = open(f"cdna_kernels/{NAME}.s.ref").read() if len(sys.argv) < 0 else None
    hdr = open("header.txt").read()
    return hdr + f"""; @launch grid=(256,1,1) block=(256,1,1) lds=163840
.amdgcn_target "amdgcn-amd-amdhsa--gfx950"
.text
.globl {NAME}_kernel
.p2align 8
.type {NAME}_kernel,@function
{NAME}_kernel:
""" + body(**kw) + f"""s_endpgm
.section .rodata,"a"
.p2align 6
.amdhsa_kernel {NAME}_kernel
  .amdhsa_next_free_vgpr 512
  .amdhsa_next_free_sgpr 102
  .amdhsa_accum_offset 256
  .amdhsa_group_segment_fixed_size 0
  .amdhsa_kernarg_size 136
  .amdhsa_user_sgpr_count 2
  .amdhsa_user_sgpr_kernarg_segment_ptr 1
  .amdhsa_system_sgpr_workgroup_id_x 1
  .amdhsa_float_denorm_mode_32 3
.end_amdhsa_kernel
"""
if __name__ == "__main__":
    out = sys.argv[1] if len(sys.argv) > 1 else f"cdna_kernels/{NAME}.s"
    open(out, "w").write(full_file())
    print("written", out)
```

```python
from asmlib import *
from layout import *
import struct, math

def fbits(x): return struct.unpack("<I", struct.pack("<f", x))[0]

M0_, S0_ = 0, 32
AQ = [64, 68]; AK = [72, 76]; AV = [80, 84]; PA = 64
KX, VX = 88, 96
PB = 104
SELT, SELR = 120, 124
IDX, SMW, PST, PLD, MST, MOWN = 128, 129, 130, 131, 132, 133
L16 = 15
MX = [None, 134, 135, 136]
SMR, SW, WL = 137, 138, 139
SENT = 140
SRD = 4
sH, sW = 10, 11
sPc, sPp, sMc, sMn, sKV, sStep, sSpin, sPc2, sMH = 12, 13, 14, 15, 16, 17, 18, 19, 20
sEx1, sEx2 = 22, 24
sC = 26
SRDW = 28
sF = 32
sT = 36
sOne = 58
sRdy = 21
sTM = 44
LDS_SC = 8192
LDS_W = 16384
WPW = 36864

LDS_CH = [("Q", 2), ("Q", 3), ("K", 2), ("K", 6), ("V", 6), ("V", 7), ("O", 1, 1), ("O", 2, 1), ("O", 3, 1)]
ALL_CH = [(m, i) for m in "QKV" for i in range(8)] + [("O", j, i) for j in range(4) for i in range(2)]
REG_CH = [c for c in ALL_CH if c not in LDS_CH]
ORDER = REG_CH + LDS_CH
def reg_of(ch, t):
    n = REG_CH.index(ch)*2 + t
    if n < 32: return a_(8*n, 8), ("a", 8*n)
    return v(144 + 8*(n-32), 8), ("v", 144 + 8*(n-32))
def lds_off(ch, t):
    return LDS_CH.index(ch)*4096 + t*2048

def sm(A, acc, afrag, b):
    A(f"v_smfmac_f32_16x16x64_bf16 {v(acc,4)}, {v(afrag,4)}, {b}, v{IDX}")

def emit_chain_init(A, dbg_team_off=DBG_TEAM, nzero=0):
    A(f"""
    s_load_dwordx2 s[{SRD}:{SRD+1}], s[0:1], {KA['ws']}
    s_load_dwordx2 s[8:9], s[0:1], {KA['dbg']}
    s_load_dwordx4 s[48:51], s[0:1], {KA['Wq']}
    s_load_dwordx4 s[52:55], s[0:1], {KA['Wv']}
    s_load_dwordx2 s[56:57], s[0:1], {KA['mem0']}
    v_lshrrev_b32 v1, 6, v0
    v_and_b32 v2, 63, v0
    v_readfirstlane_b32 s{sW}, v1
    v_and_b32 v3, 15, v2
    v_lshrrev_b32 v4, 4, v2
    v_lshlrev_b32 v{L16}, 4, v2
    s_mov_b32 s{SRD+2}, {WS_SIZE}
    s_mov_b32 s{SRD+3}, 0x00020000
    s_mov_b32 s{SRDW+2}, {4*MB}
    s_mov_b32 s{SRDW+3}, 0x00020000
    """)
    A(f"""
    v_mov_b32 v5, 0x4444
    v_mov_b32 v6, 0xeeee
    v_cmp_gt_u32 vcc, 8, v3
    s_nop 1
    v_cndmask_b32 v{IDX}, v6, v5, vcc
    """)
    A(f"""
    v_lshrrev_b32 v5, 1, v4
    v_lshlrev_b32 v5, 2, v5
    v_lshrrev_b32 v6, 3, v3
    v_lshl_add_u32 v5, v6, 1, v5
    v_and_b32 v6, 1, v4
    v_add_u32 v5, v5, v6
    s_lshl_b32 s{sT}, s{sW}, 3
    v_add_u32 v5, s{sT}, v5
    v_lshlrev_b32 v5, 12, v5
    v_and_b32 v8, 7, v3
    v_lshl_add_u32 v5, v8, 4, v5
    s_lshl_b32 s{sT}, s{sH}, 7
    v_add_u32 v{PST}, s{sT}, v5
    """)
    A(f"""
    s_lshr_b32 s{sT}, s{sW}, 1
    s_lshl_b32 s{sT}, s{sT}, 5
    s_add_u32 s{sT}, s{sT}, s{sH}
    s_lshl_b32 s{sT}, s{sT}, 1
    s_and_b32 s{sT+1}, s{sW}, 1
    s_add_u32 s{sT}, s{sT}, s{sT+1}
    s_lshl_b32 s{sT}, s{sT}, 11
    v_add_u32 v{PLD}, s{sT}, v{L16}
    """)
    A(f"""
    s_lshr_b32 s{sT}, s{sW}, 1
    s_lshl_b32 s{sT}, s{sT}, 2
    s_lshr_b32 s{sT+1}, s{sH}, 3
    s_add_u32 s{sT}, s{sT}, s{sT+1}
    s_lshl_b32 s{sT}, s{sT}, 10
    s_and_b32 s{sT+1}, s{sH}, 1
    s_lshl_b32 s{sT+1}, s{sT+1}, 6
    s_add_u32 s{sT}, s{sT}, s{sT+1}
    s_and_b32 s{sT+1}, s{sH}, 6
    s_lshl_b32 s{sT+1}, s{sT+1}, 7
    s_add_u32 s{sT}, s{sT}, s{sT+1}
    v_lshlrev_b32 v5, 3, v8
    v_lshrrev_b32 v7, 1, v4
    v_lshl_add_u32 v5, v7, 2, v5
    v_and_b32 v7, 1, v4
    v_lshl_add_u32 v5, v7, 7, v5
    v_add_u32 v{MST}, s{sT}, v5
    """)
    A(f"""
    s_lshl_b32 s{sT}, s{sW}, 11
    v_add_u32 v{MOWN}, s{sT}, v{L16}
    v_xor_b32 v{MX[1]}, 2048, v{MOWN}
    v_xor_b32 v{MX[2]}, 4096, v{MOWN}
    v_xor_b32 v{MX[3]}, 6144, v{MOWN}
    """)
    A(f"""
    v_and_b32 v5, 31, v2
    v_lshlrev_b32 v{SMR}, 3, v5
    v_lshrrev_b32 v7, 3, v3
    s_lshl_b32 s{sT}, s{sW}, 11
    v_lshlrev_b32 v5, 7, v4
    v_lshl_add_u32 v5, v8, 4, v5
    v_add_u32 v{SW}, s{sT}, v5
    v_xor_b32 v5, 32, v2
    v_lshlrev_b32 v5, 3, v5
    v_add_u32 v{SMW}, s{sT}, v5
    s_mul_i32 s{sT+2}, s{sW}, {WPW}
    s_add_u32 s{sT+2}, s{sT+2}, {LDS_W}
    v_add_u32 v{WL}, s{sT+2}, v{L16}
    v_mov_b32 v{SENT}, -1
    v_mov_b32 v{SENT+1}, -1
    v_mov_b32 v{SENT+2}, -1
    v_mov_b32 v{SENT+3}, -1
    """)
    A(f"""
    v_and_b32 v5, 1, v8
    v_lshlrev_b32 v5, 4, v5
    v_mov_b32 v6, 0x3f80
    v_lshlrev_b32 v5, v5, v6
    v_lshrrev_b32 v6, 1, v8
    """)
    for r in range(4):
        A(f"v_cmp_eq_u32 vcc, {r}, v6\ns_nop 1\nv_cndmask_b32 v{SELR+r}, 0, v5, vcc")
    A(f"""
    v_lshrrev_b32 v6, 1, v3
    v_and_b32 v6, 1, v6
    v_lshl_add_u32 v6, v7, 1, v6
    v_lshrrev_b32 v9, 2, v3
    v_xor_b32 v9, v9, v4
    v_and_b32 v9, 1, v9
    v_lshl_add_u32 v6, v9, 3, v6
    """)
    for r in range(4):
        A(f"v_cmp_eq_u32 vcc, {r}, v6\ns_nop 1\nv_cndmask_b32 v{SELT+r}, 0, v5, vcc")
    A(f"""
    s_mov_b32 s{sEx1}, 0x00ff00ff
    s_mov_b32 s{sEx1+1}, 0x00ff00ff
    s_bitcmp1_b32 s{sW}, 0
    s_cselect_b64 s[{sEx2}:{sEx2+1}], 0, s[{sEx1}:{sEx1+1}]
    s_mov_b32 s{sC}, {fbits(128**-0.5 * math.log2(math.e))}
    s_mov_b32 s{sOne}, 0x3f803f80
    s_mov_b32 s{sOne+1}, 0x3e803e80
    s_mov_b32 s{sPc}, {WS_P}
    s_mov_b32 s{sPp}, {WS_P + P_SLOT}
    s_mov_b32 s{sPc2}, {WS_P + 131072}
    s_mov_b32 s{sMc}, {WS_M}
    s_mov_b32 s{sMn}, {WS_M + 8192}
    s_mov_b32 s{sMH}, {WS_MH}
    s_lshl_b32 s{sKV}, s{sH}, 3
    s_add_u32 s{sKV}, s{sKV}, s{sW}
    s_lshl_b32 s{sKV}, s{sKV}, 11
    s_mov_b32 s{sStep}, 0
    s_mov_b32 s{sSpin}, {SPIN}
    """)
    for j in range(4):
        A(f"""
        s_xor_b32 s{sT}, s{sW}, {j}
        s_and_b32 s{sT+1}, s{sT}, 1
        s_lshl_b32 s{sT+1}, s{sT+1}, 2
        s_lshr_b32 s{sT}, s{sT}, 1
        s_add_u32 s{sT}, s{sT}, s{sT+1}
        s_lshl_b32 s{sF+j}, s{sT}, 19
        """)
    A(f"""
    v_lshrrev_b32 v5, 1, v4
    v_and_b32 v7, 1, v4
    v_lshl_add_u32 v6, v5, 3, v7
    v_lshlrev_b32 v6, 13, v6
    v_lshlrev_b32 v8, 2, v4
    v_xor_b32 v8, v8, v3
    v_lshl_add_u32 v6, v8, 4, v6
    s_lshl_b32 s{sT}, s{sH}, 8
    v_add_u32 v0, s{sT}, v6
    v_lshrrev_b32 v6, 3, v2
    v_lshlrev_b32 v6, 10, v6
    v_and_b32 v8, 7, v2
    v_lshl_add_u32 v6, v8, 4, v6
    s_lshl_b32 s{sT}, s{sH}, 17
    s_lshl_b32 s{sT+1}, s{sW}, 8
    s_add_u32 s{sT}, s{sT}, s{sT+1}
    v_add_u32 v1, s{sT}, v6
    v_lshrrev_b32 v9, 2, v3
    v_and_b32 v6, 3, v3
    v_lshl_add_u32 v12, v4, 3, v9
    v_lshlrev_b32 v12, 8, v12
    v_xor_b32 v10, s{sW}, v9
    v_lshl_add_u32 v10, v10, 2, v6
    v_lshl_add_u32 v12, v10, 4, v12
    v_lshrrev_b32 v8, 3, v3
    v_and_b32 v9, 1, v9
    v_lshlrev_b32 v13, 3, v5
    v_lshl_add_u32 v13, v7, 2, v13
    v_add_u32 v13, v13, v9
    v_lshlrev_b32 v13, 7, v13
    v_lshl_add_u32 v13, v8, 6, v13
    v_lshl_add_u32 v13, v6, 4, v13
    v_and_b32 v14, 7, v3
    v_lshlrev_b32 v14, 10, v14
    v_lshl_add_u32 v14, v4, 5, v14
    v_lshl_add_u32 v14, v8, 4, v14
    s_lshr_b32 s{sT}, s{sF}, 12
    v_add_u32 v4, s{sT}, v14
    v_mov_b32 v2, v12
    v_mov_b32 v3, v13
    s_lshl_b32 s{sT+2}, s{sW}, 13
    s_lshl_b32 s{sT+3}, s{sW}, 12
    s_waitcnt lgkmcnt(0)
    """)
    srw = f"s[{SRDW}:{SRDW+3}]"
    base = {"Q": 48, "K": 50, "V": 52, "O": 54}
    HELD = {ch: 8 + 16*k for k, ch in enumerate(LDS_CH[:7])}
    STG = [(m, ii, hf) for m in "QKV" for ii in range(2) for hf in range(2)] + [("O", 0, 0), ("O", 0, 2), ("O", 1, 0)]
    NS = len(STG)
    cur = [None]
    def setm(m):
        if cur[0] != m:
            cur[0] = m
            A(f"s_mov_b32 s{SRDW}, s{base[m]}\ns_mov_b32 s{SRDW+1}, s{base[m]+1}")
    def ochunk(j, i, sreg, off):
        A(f"s_xor_b32 s{sT}, s{sW}, {j}\ns_lshl_b32 s{sT}, s{sT}, 15")
        for q in range(4):
            A(f"""
            s_add_u32 m0, s{sreg}, {off + q*1024}
            s_add_u32 s{sT+1}, s{sT}, {q*8192 + i*128}
            buffer_load_dwordx4 v1, {srw}, s{sT+1} offen lds
            """)
    def issue(n):
        st = STG[n]; buf = LDS_W + (n % 4)*32768
        setm(st[0])
        if st[0] == "O":
            for jj in range(2): ochunk(st[2] + jj, st[1], sT+2, buf + jj*4096)
        else:
            for q in range(8):
                gb = q >> 1
                d = 128*st[1] + 32*st[2] + 16*(gb >> 1) + 4*(gb & 1) + 2*(q & 1)
                A(f"""
                s_add_u32 m0, s{sT+2}, {buf + q*1024}
                s_add_u32 s{sT+1}, s{sF}, {d*8192}
                buffer_load_dwordx4 v0, {srw}, s{sT+1} offen lds
                """)
    def dest(ch, t):
        if ch in HELD: return "v", HELD[ch] + 8*t
        return reg_of(ch, t)[1]
    def oread(ch, kind_r0, ad, off):
        for t in range(2):
            kind, r0 = kind_r0(t)
            for u in range(4):
                A(f"ds_read_b64_tr_b16 {R(kind, r0 + 2*u, 2)}, v{ad} offset:{off + (16*(u >> 1) + 2*(u & 1))*128 + 8*t}")
    for n in range(3): issue(n)
    for so in (sPc, sPp):
        A(f"buffer_store_dwordx4 {v(SENT,4)}, v{PLD}, s[{SRD}:{SRD+3}], s{so} offen")
        A(f"buffer_store_dwordx4 {v(SENT,4)}, v{PLD}, s[{SRD}:{SRD+3}], s{so} offen offset:1024")
    for so in (sMc, sMn):
        A(f"buffer_store_dword v{SENT}, v{MST}, s[{SRD}:{SRD+3}], s{so} offen")
    for n in range(NS):
        st = STG[n]; buf = LDS_W + (n % 4)*32768
        younger = 8*(min(n + 3, NS + 1) - n - 1) + (6 if n < 3 else 0)
        A(f"s_waitcnt vmcnt({younger})")
        A("s_barrier")
        if n == 3:
            L = A.newlabel("Lann")
            A(f"""
            s_cmp_lg_u32 s{sW}, 0
            s_cbranch_scc1 {L}
            v_mov_b32 v5, {dbg_team_off}
            v_mov_b32 v6, 1
            s_mov_b64 exec, 1
            global_atomic_add v5, v6, s[8:9]
            s_mov_b64 exec, -1
            """)
            A.label(L)
        if n + 3 < NS: issue(n + 3)
        if n + 3 == NS:
            ochunk(2, 1, sT+3, 147456); ochunk(3, 1, sT+3, 0)
        if st[0] == "O":
            A(f"s_add_u32 s{sT}, s{sT+2}, {buf}\nv_add_u32 v5, s{sT}, v3")
            for jj in range(2):
                ch = ("O", st[2] + jj, st[1])
                oread(ch, lambda t: dest(ch, t), 5, jj*4096)
                A("s_waitcnt lgkmcnt(0)")
        else:
            for j in range(4):
                A(f"""
                s_xor_b32 s{sT}, s{sW}, {j}
                s_lshl_b32 s{sT}, s{sT}, 13
                s_add_u32 s{sT}, s{sT}, {buf}
                v_add_u32 v{5 + (j & 1)}, s{sT}, v2
                """)
                ch = (st[0], 2*j + st[1])
                for t in range(2):
                    kind, r0 = dest(ch, t)
                    for u in range(2):
                        A(f"ds_read_b64_tr_b16 {R(kind, r0 + 4*st[2] + 2*u, 2)}, v{5 + (j & 1)} offset:{u*1024 + 8*t}")
                if j == 1: A("s_waitcnt lgkmcnt(0)")
            A("s_waitcnt lgkmcnt(0)")
    def wr(slot, r0):
        for k in range(4): A(f"ds_write_b128 v{WL}, {v(r0 + 4*k, 4)} offset:{slot*4096 + 1024*k}")
    A("s_barrier")
    wr(0, 8); wr(1, 24)
    A(f"""
    s_add_u32 s{sT}, s{sT+3}, 147456
    v_add_u32 v5, s{sT}, v3
    v_add_u32 v6, s{sT+3}, v3
    s_waitcnt vmcnt(0) lgkmcnt(0)
    """)
    oread(None, lambda t: ("v", 8 + 8*t), 5, 0)
    A("s_waitcnt lgkmcnt(0)")
    oread(None, lambda t: ("v", 24 + 8*t), 6, 0)
    A("s_waitcnt lgkmcnt(0)")
    wr(2, 40); wr(3, 56); wr(4, 72)
    A("s_barrier\ns_waitcnt lgkmcnt(0)")
    wr(5, 88); wr(6, 104); wr(7, 8)
    A("s_waitcnt lgkmcnt(0)")
    wr(8, 24)
    A("v_mov_b32 v14, v4\ns_waitcnt lgkmcnt(0)")
    L = A.newlabel("Lteam")
    A(f"v_mov_b32 v5, {dbg_team_off}")
    A.label(L)
    A(f"""
    global_load_dwordx3 v[6:8], v5, s[8:9] sc1
    s_sub_u32 s{sSpin}, s{sSpin}, 1
    s_cbranch_scc1 {L}x
    s_waitcnt vmcnt(0)
    v_readfirstlane_b32 s{sT}, v6
    v_readfirstlane_b32 s{sT+1}, v8
    s_add_u32 s{sT}, s{sT}, s{sT+1}
    s_cmp_lt_u32 s{sT}, {32 + nzero}
    s_cbranch_scc1 {L}
    """)
    A.label(L + "x")
    A(f"s_max_i32 s{sSpin}, s{sSpin}, 0")


def ldsw_reads(ch, dst):
    return [f"ds_read_b128 {v(dst + 4*k, 4)}, v{WL} offset:{lds_off(ch, 0) + 1024*k}" for k in range(4)]

MARKS = []
STREAM = {("Q", 2): S0_, ("Q", 3): S0_ + 16, ("K", 2): PB, ("K", 6): PB, ("V", 6): S0_, ("V", 7): S0_ + 16,
          ("O", 1, 1): S0_, ("O", 2, 1): S0_ + 16, ("O", 3, 1): M0_}

def emit_chain_loop(A, nsteps=63, diag=False, pre1=0, gap1=0, pre2=0, pre2o=0, gap2=24, nvown=4, barpos=6, nopub=0, kvfix=0, rpos=0, trace=None, pvord=1, single1=0, single2=0, bar0=0, ackw=0, estore=5, back2=0, timing=0, jfirst=0, full=0, steplog=0):
    srd = f"s[{SRD}:{SRD+3}]"
    def stamp(k):
        MARKS.append(k)
        if diag and diag[0] == k: A(f"s_memtime s[{sTM}:{sTM+1}]")
        if diag and diag[1] == k: A(f"s_memtime s[{sTM+2}:{sTM+3}]")
        if trace and k in trace:
            r = 72 + 2*trace.index(k)
            A(f"s_memrealtime s[{r}:{r+1}]")
    def lg(n): A(f"s_waitcnt lgkmcnt({n})")
    del MARKS[:]
    rd = lambda ch: ldsw_reads(ch, STREAM[ch])
    cv = lambda d, a, b: A(f"v_cvt_pk_bf16_f32 v{d}, v{a}, v{b}")
    pk = lambda op, d, a, b: A(f"v_pk_{op}_f32 {v(d,2)}, {v(a,2)}, {v(b,2)}")
    def junk():
        for x in rd(("Q", 2)) + rd(("Q", 3)) + rd(("K", 2)): A(x)
        A(f"v_mov_b32 v{PA}, 0\nv_mov_b32 v{PA+1}, 0")
        for k in range(2, 24, 2): A(f"v_pk_mov_b32 {v(PA+k,2)}, {v(PA,2)}, {v(PA,2)} op_sel:[0,1]")
    def mload(r):
        A(f"""
        buffer_load_dwordx4 {v(r,4)}, v{MOWN}, {srd}, s{sMc} offen sc1
        buffer_load_dwordx4 {v(r+4,4)}, v{MOWN}, {srd}, s{sMc} offen offset:1024 sc1
        """)
    CK = KX
    def mcheck(r, t0, t1):
        A(f"""
        v_max3_u32 v{t0}, v{r}, v{r+1}, v{r+2}
        v_max3_u32 v{t1}, v{r+3}, v{r+4}, v{r+5}
        v_max3_u32 v{t0}, v{t0}, v{r+6}, v{r+7}
        v_max_u32 v{t0}, v{t0}, v{t1}
        v_cmp_eq_u32 vcc, -1, v{t0}
        """)
    def kvpoll(tag):
        A.label(f"Lkv{tag}")
        A(f"""
        v_mbcnt_lo_u32_b32 v0, -1, 0
        s_lshl_b32 s{sT}, s{sH}, 7
        v_and_b32 v0, 7, v0
        s_add_u32 s{sT}, s{sT}, {WS_KVF}
        v_lshlrev_b32 v0, 2, v0
        buffer_load_dword v1, v0, {srd}, s{sT} offen sc1
        s_waitcnt vmcnt(0)
        v_readlane_b32 s{sRdy}, v1, 0
        v_readlane_b32 s{sT}, v1, 1
        v_readlane_b32 s{sT+1}, v1, 2
        s_min_u32 s{sRdy}, s{sRdy}, s{sT}
        s_min_u32 s{sRdy}, s{sRdy}, s{sT+1}
        v_readlane_b32 s{sT}, v1, 3
        v_readlane_b32 s{sT+1}, v1, 4
        s_min_u32 s{sRdy}, s{sRdy}, s{sT}
        s_min_u32 s{sRdy}, s{sRdy}, s{sT+1}
        s_mul_i32 s{sRdy}, s{sRdy}, 5
        s_sub_u32 s{sRdy}, s{sRdy}, 1
        s_cmp_gt_i32 s{sRdy}, s{sStep}
        s_cbranch_scc1 Lkv{tag}ret
        s_sleep 2
        s_sub_u32 s{sSpin}, s{sSpin}, 1
        s_cbranch_scc0 Lkv{tag}
        s_mov_b32 s{sSpin}, 0
        s_mov_b32 s{sRdy}, 100
        """)
    if diag: A("s_mov_b32 s70, 0")
    if full:
        kvpoll("A"); A.label("LkvAret")
        if steplog: A("s_memrealtime s[86:87]")
    A(f"""
    global_load_dwordx4 {v(0,4)}, v14, s[56:57]
    global_load_dwordx4 {v(4,4)}, v14, s[56:57] offset:256
    buffer_load_dwordx4 {v(KX,4)}, v{MOWN}, {srd}, s{sKV} offen sc1
    buffer_load_dwordx4 {v(KX+4,4)}, v{MOWN}, {srd}, s{sKV} offen offset:1024 sc1
    """)
    junk()
    A(f"""
    s_waitcnt vmcnt(0) lgkmcnt(0)
    ds_write_b128 v{MOWN}, {v(0,4)}
    s_branch Lstep
    """)
    A(".p2align 6")
    A.label("Lp2")
    if trace: stamp("p2_issue")
    if single2:
        mload(0)
        A(f"""
        s_sub_u32 s{sSpin}, s{sSpin}, 1
        s_cbranch_scc1 Lp2giveup
        s_waitcnt vmcnt(0)
        """)
        mcheck(0, 8, 9)
        A(f"""
        ds_write_b128 v{MOWN}, {v(0,4)}
        s_cbranch_vccnz {"Lp2back" if back2 else "Lp2"}
        """)
    else:
        mload(0)
        A.nop(gap2)
        mload(VX)
        A("s_branch Lp2a")
        A.label("Lp2b")
        mload(0)
        A(f"""
        s_sub_u32 s{sSpin}, s{sSpin}, 1
        s_cbranch_scc1 Lp2giveup
        s_waitcnt vmcnt(2)
        """)
        mcheck(VX, 8, 9)
        A(f"""
        ds_write_b128 v{MOWN}, {v(VX,4)}
        s_cbranch_vccz Lp2bok
        """)
        mload(VX)
        A.label("Lp2a")
        A("s_waitcnt vmcnt(2)")
        mcheck(0, 8, 9)
        A(f"""
        ds_write_b128 v{MOWN}, {v(0,4)}
        s_cbranch_vccnz Lp2b
        """)
    A.label("Lstep")
    stamp("m_in")
    def B(ch, t):
        if ch in STREAM: return v(STREAM[ch] + 8*t, 8)
        return reg_of(ch, t)[0]
    def QK(i): return [(AQ[0], 4*i, B(("Q", i), 0)), (AQ[1], 4*i, B(("Q", i), 1)), (AK[0], 4*i, B(("K", i), 0)), (AK[1], 4*i, B(("K", i), 1))]
    def VV(i): return [(AV[0], 4*i, B(("V", i), 0)), (AV[1], 4*i, B(("V", i), 1))]
    rs0 = f"buffer_store_dwordx4 {v(SENT,4)}, v{PLD}, {srd}, s{sPp} offen"
    rs1 = f"buffer_store_dwordx4 {v(SENT,4)}, v{PLD}, {srd}, s{sPp} offen offset:1024"
    rsm = [f"s_mov_b64 exec, s[{sEx2}:{sEx2+1}]", f"buffer_store_dword v{SENT}, v{MST}, {srd}, s{sMn} offen", "s_mov_b64 exec, -1"]
    vown = VV(0) + VV(1)
    seq = QK(0) + QK(1) + vown[:nvown]
    mreads = [f"ds_read_b128 {v(8*j + 4*ii, 4)}, v{MX[j]} offset:{1024*ii}" for j in (1, 2, 3) for ii in range(2)]
    fill = {k: [] for k in range(40)}
    fill[0] += [f"ds_write_b128 v{MOWN}, {v(4,4)} offset:1024"]
    fill[1] += [f"s_cmp_ge_u32 s{sStep}, {nsteps}", "s_cbranch_scc1 Lexit"]
    fill[barpos] += ["s_waitcnt lgkmcnt(0)", "s_barrier", mreads[0]]
    nA = len(seq)
    for k in range(1, 6): fill[min(barpos + k, nA - 1)] += [mreads[k]]
    for k, x in enumerate(seq):
        sm(A, *x)
        for y in fill[k]: A(y)
    stamp("A_end")
    if trace: A(f"s_cmp_eq_u32 s{sStep}, 31\ns_cbranch_scc1 Lexit2")
    strm = {3: rd(("K", 6)), 4: rd(("V", 6)), 5: rd(("V", 7))}
    waits = {2: 5, 3: 4, 4: 7, 5: 10, 6: 8}
    fb = {(i, k): [] for i in range(2, 8) for k in range(4)}
    fb[2, 0] += [f"buffer_load_dwordx4 {v(VX,4)}, v{MOWN}, {srd}, s{sKV} offen offset:2048 sc1"]
    fb[2, 2] += [f"buffer_load_dwordx4 {v(VX+4,4)}, v{MOWN}, {srd}, s{sKV} offen offset:3072 sc1", f"s_add_u32 s{sKV}, s{sKV}, {0 if kvfix else 32*4*4096}"]
    if timing: fb[3, 0] += [f"s_cmp_eq_u32 s{sStep}, 3", "s_cbranch_scc1 Ltm", "Ltmret:"]
    fb[7, 0] += [f"s_cmp_eq_u32 s{sH}, {99 if nopub else 0}", "s_cbranch_scc1 Lpub", "Lpubret:"]
    if rpos == 0:
        fb[6, 0] += [rs0]; fb[7, 2] += [rs1]; fb[2, 3] += rsm
    for i in strm:
        for k in range(4): fb[i, k] += [strm[i][k]]
    for i in range(2, 8):
        if i in waits: A(f"s_waitcnt lgkmcnt({waits[i]})")
        if i == 2: stamp("B_start")
        for k, x in enumerate(QK(i)):
            sm(A, *x)
            for y in fb[i, k]: A(y)
    stamp("QK_end")
    vq = VV(6) + VV(7) + VV(4) + VV(5) + VV(2) + VV(3) + vown[nvown:]
    def vf(*after):
        sm(A, *vq.pop(0))
        for y in after: A(y)
    cv(PB+0, AQ[0], AQ[0]+1); cv(PB+1, AQ[0]+2, AQ[0]+3); cv(PB+4, AQ[1], AQ[1]+1); cv(PB+5, AQ[1]+2, AQ[1]+3)
    cv(PB+2, AK[0], AK[0]+1); cv(PB+3, AK[0]+2, AK[0]+3); cv(PB+6, AK[1], AK[1]+1); cv(PB+7, AK[1]+2, AK[1]+3)
    A(f"v_mfma_f32_16x16x32_bf16 {v(PA,4)}, {v(PB,4)}, {v(SELT,4)}, 0")
    A("s_waitcnt lgkmcnt(0)")
    A(f"v_mfma_f32_16x16x32_bf16 {v(PA+4,4)}, {v(PB+4,4)}, {v(SELT,4)}, 0")
    vf()
    T = PB + 8
    stamp("T_mfma")
    cv(T, PA, PA+1); cv(T+1, PA+2, PA+3); cv(T+2, PA+4, PA+5); cv(T+3, PA+6, PA+7)
    A.nop(2)
    A(f"v_mfma_f32_16x16x32_bf16 {v(PA,4)}, {v(KX,4)}, {v(T,4)}, 0")
    A(f"v_mfma_f32_16x16x32_bf16 {v(PA+4,4)}, {v(KX+4,4)}, {v(T,4)}, 0")
    A(f"v_mfma_f32_16x16x32_bf16 {v(PA+8,4)}, {v(T,4)}, {v(T,4)}, 0")
    stamp("S_mfma")
    kl = [f"buffer_load_dwordx4 {v(KX,4)}, v{MOWN}, {srd}, s{sKV} offen sc1", f"buffer_load_dwordx4 {v(KX+4,4)}, v{MOWN}, {srd}, s{sKV} offen offset:1024 sc1"]
    A.nop(4)
    for g in range(4): A(f"v_mov_b32_dpp v{PA+g}, v{PA+4+g} row_ror:8 row_mask:0xf bank_mask:0xc")
    A(f"ds_write_b128 v{MOWN}, {v(PA,4)} offset:{LDS_SC}")
    for g in range(2): A(f"v_mov_b32_dpp v{PA+8+g}, v{PA+10+g} row_ror:8 row_mask:0xf bank_mask:0xc")
    A(f"ds_write_b64 v{SMW}, {v(PA+8,2)} offset:{LDS_SC+1024}")
    stamp("S_written")
    if rpos == 1:
        vf(rs0); vf(rs1); vf(*rsm)
    else:
        vf(kl[0]); vf(kl[1]); vf()
    stamp("preB2")
    A("s_waitcnt lgkmcnt(0)")
    A("s_barrier")
    stamp("B2")
    xr = [f"ds_read_b128 {v(PA+4*j,4)}, v{MX[j]} offset:{LDS_SC}" for j in (1, 2, 3)]
    mr = [f"ds_read_b64 {v(PB+2*src,2)}, v{SMR} offset:{LDS_SC+2048*src+1024}" for src in range(4)]
    wo = rd(("O", 1, 1)) + rd(("O", 2, 1))
    WA = [16, 20, 24, 28]
    A(xr[0]); A(mr[0]); A(mr[1])
    vf(xr[1], mr[2]); vf(xr[2], mr[3])
    extra = kl if rpos == 1 else ["", ""]
    vf(wo[0], extra[0], "v_mov_b32 v24, 0")
    vf(wo[1], extra[1], "v_mov_b32 v25, 0")
    nw = 2
    zs = [26, 27, 28, 29, 30, 31]
    while vq:
        z = f"v_mov_b32 v{zs.pop(0)}, 0" if zs else ""
        if nw < 8: vf(wo[nw], z); nw += 1
        else: vf(z)
    stamp("V_end")
    lg(nw)
    stamp("S_read")
    pk("add", PA, PA, PA+4); pk("add", PA+2, PA+2, PA+6); pk("add", PB, PB, PB+2)
    pk("add", PA+8, PA+8, PA+12); pk("add", PA+10, PA+10, PA+14); pk("add", PB+4, PB+4, PB+6)
    pk("add", PA, PA, PA+8); pk("add", PA+2, PA+2, PA+10); pk("add", PB, PB, PB+4)
    stamp("adds")
    X, Y = PB+2, PB+3
    assert len(zs) % 2 == 0
    zm = [f"v_pk_mov_b32 {v(r,2)}, v[24:25], v[24:25] op_sel:[0,1]" for r in [16, 18, 20, 22] + zs[::2]] + [""]*4
    ON, SU = PA + 4, PA + 8
    VM = PB + 12
    A(f"""
    v_max3_f32 v{X}, v{PA}, v{PA+1}, v{PA+2}
    v_max3_f32 v{Y}, v{PA+3}, v{PB}, v{PB+1}
    v_max_f32 v{X}, v{X}, v{Y}
    """)
    cv(VM, AV[0], AV[0]+1); cv(VM+1, AV[0]+2, AV[0]+3)
    A(f"""
    v_max_f32_dpp v{Y}, v{X}, v{X} row_ror:8 row_mask:0xf bank_mask:0xf
    v_max_f32_dpp v{X}, v{X}, v{X} row_ror:8 row_mask:0xf bank_mask:0xf
    """)
    cv(VM+2, AV[1], AV[1]+1); cv(VM+3, AV[1]+2, AV[1]+3)
    A(f"""
    v_permlane16_swap_b32 v{X}, v{Y}
    v_max_f32 v{PB+4}, v{X}, v{Y}
    v_max_f32 v{PB+5}, v{X}, v{Y}
    v_pk_mov_b32 {v(ON,2)}, s[{sOne}:{sOne+1}], s[{sOne}:{sOne+1}] op_sel:[0,0]
    v_pk_mov_b32 {v(ON+2,2)}, s[{sOne}:{sOne+1}], s[{sOne}:{sOne+1}] op_sel:[1,1]
    v_permlane32_swap_b32 v{PB+4}, v{PB+5}
    v_max_f32 v{X}, v{PB+4}, v{PB+5}
    v_mul_f32 v{X}, s{sC}, v{X}
    """)
    stamp("max")
    for r in (PA, PA+2, PB):
        A(f"v_pk_fma_f32 {v(r,2)}, {v(r,2)}, s[{sC}:{sC+1}], {v(X,2)} op_sel_hi:[1,0,0] neg_lo:[0,0,1] neg_hi:[0,0,1]")
    for r in [PB, PB+1, PA, PA+1, PA+2, PA+3]: A(f"v_exp_f32 v{r}, v{r}")
    stamp("exp")
    PX, PM = PB + 4, PB + 8
    cv(PM, PB, PB+1); cv(PM+1, PB, PB+1); cv(PX+2, PA, PA+1); cv(PX+3, PA+2, PA+3); cv(PX, PA, PA+1); cv(PX+1, PA+2, PA+3)
    rest = wo[nw:] + [""]*8
    A(f"""
    v_mfma_f32_16x16x32_bf16 {v(SU,4)}, {v(ON,4)}, {v(PX+2,4)}, 0
    s_waitcnt vmcnt(2)
    v_mov_b32_dpp v{PX+2}, v{PX+2} row_ror:8 row_mask:0xf bank_mask:0x3
    v_mov_b32_dpp v{PX+3}, v{PX+3} row_ror:8 row_mask:0xf bank_mask:0x3
    v_mov_b32_dpp v{PX}, v{PX} row_ror:8 row_mask:0xf bank_mask:0xc
    v_mov_b32_dpp v{PX+1}, v{PX+1} row_ror:8 row_mask:0xf bank_mask:0xc
    v_mov_b32_dpp v{PM}, v{PM} row_ror:8 row_mask:0xf bank_mask:0xc
    v_mov_b32_dpp v{PM+1}, v{PM+1} row_ror:8 row_mask:0xf bank_mask:0x3
    """)
    stamp("Pcvt")
    pv = [f"v_mfma_f32_16x16x16_bf16 {v(AV[0],4)}, {v(VM,2)}, {v(PM,2)}, {v(AV[0],4)}", f"v_mfma_f32_16x16x32_bf16 {v(AV[1],4)}, {v(VX+4,4)}, {v(PX,4)}, 0"]
    if pvord: pv = pv[::-1]
    A(f"""
    v_mfma_f32_16x16x32_bf16 {v(AV[0],4)}, {v(VX,4)}, {v(PX,4)}, 0
    {rest[0]}
    v_add_f32_dpp v{X}, v{SU}, v{SU} row_ror:8 row_mask:0xf bank_mask:0xf
    {pv[0]}
    {rest[1]}
    v_rcp_f32 v{X}, v{X}
    {pv[1]}
    {rest[2]}
    v_xor_b32 v{VX}, 2048, v{SW}
    v_mfma_f32_16x16x16_bf16 {v(AV[1],4)}, {v(VM+2,2)}, {v(PM,2)}, {v(AV[1],4)}
    """)
    if pvord: A.nop(4)
    OF = [PB+4, VX, VX+4, PB+8]
    for k in range(4): A(f"v_mul_f32 v{AV[0]+k}, v{AV[0]+k}, v{X}")
    cv(OF[0], AV[0], AV[0]+1); cv(OF[0]+1, AV[0]+2, AV[0]+3)
    A(f"v_xor_b32 v{VX+4}, 4096, v{SW}")
    stamp("rcp")
    for k in range(2):
        A(f"v_pk_mul_f32 {v(AV[1]+2*k,2)}, {v(AV[1]+2*k,2)}, {v(X,2)} op_sel_hi:[1,0]")
    cv(OF[0]+2, AV[1], AV[1]+1); cv(OF[0]+3, AV[1]+2, AV[1]+3)
    A(f"ds_write_b128 v{SW}, {v(OF[0],4)} offset:{LDS_SC+1536}")
    stamp("o_written")
    for z in zm: A(z)
    A(f"v_xor_b32 v{PB+8}, 6144, v{SW}")
    A.nop(1)
    def OO(j, i): return [(WA[2*i+t], OF[j], B(("O", j, i), t)) for t in range(2)]
    sm(A, *OO(0, 1)[0])
    A("s_waitcnt lgkmcnt(0)")
    A("s_barrier")
    stamp("B3")
    for j in (1, 2, 3): A(f"ds_read_b128 {v(OF[j],4)}, v{OF[j]} offset:{LDS_SC+1536}")
    wo3 = rd(("O", 3, 1))
    sm(A, *OO(0, 1)[1]); A(wo3[0])
    sm(A, *OO(0, 0)[0]); A(wo3[1])
    sm(A, *OO(0, 0)[1])
    for j in (1, 2, 3):
        lg([0, 4, 5, 4][j])
        if j == 1: stamp("o_read")
        for t, x in enumerate(OO(j, 0)):
            sm(A, *x)
            if j == 1: A(wo3[2 + t])
    stamp("early_end")
    PK0, PK1 = AV[0], AV[1]
    late = OO(1, 1) + OO(2, 1) + OO(3, 1)
    sm(A, *late[0])
    sm(A, *late[1]); cv(PK0, WA[0], WA[1])
    sm(A, *late[2]); cv(PK0+1, WA[0]+1, WA[1]+1); cv(PK0+2, WA[0]+2, WA[1]+2)
    sm(A, *late[3]); A("s_waitcnt lgkmcnt(0)"); cv(PK0+3, WA[0]+3, WA[1]+3)
    est = f"buffer_store_dwordx4 {v(PK0,4)}, v{PST}, {srd}, s{sPc} offen"
    if estore == 3: A(est)
    sm(A, *late[4])
    if estore == 4: A(est)
    sm(A, *late[5])
    if estore == 5: A(est)
    else: A.nop(1)
    stamp("late_end")
    A(f"""
    s_add_u32 s{sStep}, s{sStep}, 1
    s_xor_b32 s{sMc}, s{sMc}, 8192
    s_xor_b32 s{sMn}, s{sMn}, 8192
    s_xor_b32 s{sPc}, s{sPc}, {WS_P ^ (WS_P + P_SLOT)}
    s_xor_b32 s{sPp}, s{sPp}, {WS_P ^ (WS_P + P_SLOT)}
    s_bitcmp1_b32 s{sW}, 0
    s_nop 0
    """)
    for g in range(4): cv(PK1+g, WA[2]+g, WA[3]+g)
    A(f"buffer_store_dwordx4 {v(PK1,4)}, v{PST}, {srd}, s{sPc2} offen")
    stamp("stored")
    A("s_cbranch_scc1 Lodd")
    RA = VX
    def pload(r):
        for k in range(4): A(f"buffer_load_dwordx4 {v(r+4*k,4)}, v{PLD}, {srd}, s{sPp} offen offset:{1024*k} sc1")
    def pproc(r, base):
        for k in range(4):
            A(f"s_waitcnt vmcnt({base + 3 - k})")
            A(f"v_mfma_f32_16x16x32_bf16 {v(RA,4)}, {v(r+4*k,4)}, {v(SELR,4)}, {v(RA,4) if k else 0}")
        if trace: stamp("p1_data")
        A(f"""
        s_nop 7
        v_permlane32_swap_b32 v{RA}, v{RA+2}
        v_permlane32_swap_b32 v{RA+1}, v{RA+3}
        s_mov_b64 exec, s[{sEx1}:{sEx1+1}]
        v_pk_add_f32 {v(RA,2)}, {v(RA,2)}, {v(RA+2,2)}
        v_cvt_pk_bf16_f32 v{RA+4}, v{RA}, v{RA+1}
        v_cmpx_o_f32 vcc, v{RA}, v{RA+1}
        buffer_store_dword v{RA+4}, v{MST}, {srd}, s{sMc} offen
        s_cmp_eq_u64 vcc, s[{sEx1}:{sEx1+1}]
        s_mov_b64 exec, -1
        """)
    A.nop(pre1)
    stamp("p1_start")
    if single1:
        junk()
        A(f"s_xor_b32 s{sPc2}, s{sPc2}, {WS_P ^ (WS_P + P_SLOT)}")
        if ackw: A(f"s_waitcnt vmcnt({ackw-1})")
        A.nop(gap1)
        if trace: stamp("p1_first")
        A.label("Lp1")
        if trace: stamp("p1_issue")
        pload(0)
        A(f"s_sub_u32 s{sSpin}, s{sSpin}, 1\ns_cbranch_scc1 Lp1giveup")
        pproc(0, 0)
        A("s_cbranch_scc0 Lp1")
    else:
        if jfirst:
            junk(); A.nop(jfirst - 1)
        if trace: stamp("p1_first")
        pload(0)
        if not jfirst: junk()
        A.nop(gap1)
        pload(16)
        A(f"s_xor_b32 s{sPc2}, s{sPc2}, {WS_P ^ (WS_P + P_SLOT)}")
        pproc(0, 4)
        A("s_cbranch_scc1 Lp1done")
        A.label("Lp1")
        pload(0)
        pproc(16, 5)
        A("s_cbranch_scc1 Lp1done")
        pload(16)
        A(f"s_sub_u32 s{sSpin}, s{sSpin}, 1\ns_cbranch_scc1 Lp1giveup")
        pproc(0, 5)
        A("s_cbranch_scc0 Lp1")
    A.label("Lp1done")
    stamp("p1_done")
    if diag:
        A(f"s_waitcnt lgkmcnt(0)\ns_sub_u32 s{sT+2}, s{sTM+2}, s{sTM}\ns_add_u32 s70, s70, s{sT+2}")
    if bar0: A("s_barrier")
    A.nop(pre2)
    if trace: stamp("p2_first")
    A("s_branch Lp2")
    A.label("Lodd")
    A(f"s_xor_b32 s{sPc2}, s{sPc2}, {WS_P ^ (WS_P + P_SLOT)}")
    if full:
        assert bar0
        A(f"s_cmp_gt_i32 s{sRdy}, s{sStep}\ns_cbranch_scc0 LkvB")
        A.label("LkvBret")
    junk()
    if diag:
        A(f"s_waitcnt lgkmcnt(0)\ns_sub_u32 s{sT+2}, s{sTM+2}, s{sTM}\ns_add_u32 s70, s70, s{sT+2}")
    if bar0: A("s_barrier")
    A.nop(pre2o)
    if trace: stamp("p2_first")
    A("s_branch Lp2")
    if back2:
        A.label("Lp2back")
        A.nop(back2)
        A("s_branch Lp2")
    A.label("Lp2bok")
    for k in range(0, 8, 2): A(f"v_pk_mov_b32 {v(k,2)}, {v(VX+k,2)}, {v(VX+k,2)} op_sel:[0,1]")
    A("s_nop 0\ns_branch Lstep")
    A.label("Lp2giveup")
    A(f"""
    s_mov_b32 s{sSpin}, 0
    s_waitcnt vmcnt(0)
    ds_write_b128 v{MOWN}, {v(0,4)}
    s_branch Lstep
    """)
    A.label("Lp1giveup")
    A(f"""
    s_mov_b32 s{sSpin}, 0
    v_mov_b32 v{RA+4}, 0x7fc07fc0
    s_waitcnt vmcnt(0)
    buffer_store_dword v{RA+4}, v{MST}, {srd}, s{sMc} offen
    s_branch Lp1done
    """)
    if timing:
        A.label("Ltm")
        A(f"s_memtime s[96:97]\ns_mov_b32 s98, s{sSpin}\ns_branch Ltmret")
    A.label("Lpub")
    A(f"""
    buffer_store_dwordx4 {v(0,4)}, v{MOWN}, {srd}, s{sMH} offen sc1
    buffer_store_dwordx4 {v(4,4)}, v{MOWN}, {srd}, s{sMH} offen offset:1024 sc1
    s_add_u32 s{sMH}, s{sMH}, 8192
    s_cmp_lg_u32 s{sW}, 0
    s_cbranch_scc1 Lpubret
    v_mov_b32 v{PB+14}, {DBG_MPROG}
    v_mov_b32 v{PB+15}, s{sStep}
    s_mov_b64 exec, 1
    global_store_dword v{PB+14}, v{PB+15}, s[8:9] sc1
    """)
    if steplog:
        A(f"""
        s_memrealtime s[80:81]
        s_memtime s[82:83]
        s_lshl_b32 s84, s{sStep}, 3
        s_add_u32 s84, s84, {WS_DBG + 8192}
        s_waitcnt lgkmcnt(0)
        v_mov_b32 v{PB+12}, s80
        v_mov_b32 v{PB+13}, s82
        buffer_store_dwordx2 {v(PB+12,2)}, off, {srd}, s84
        """)
    A(f"""
    s_mov_b64 exec, -1
    s_branch Lpubret
    """)
    if full:
        kvpoll("B"); A("s_branch LkvBret")
    A.label("Lexit")
    L = A.newlabel("Lfin")
    A(f"""
    s_cmp_lg_u32 s{sH}, 0
    s_cbranch_scc1 {L}
    buffer_store_dwordx4 {v(0,4)}, v{MOWN}, {srd}, s{sMH} offen sc1
    buffer_store_dwordx4 {v(4,4)}, v{MOWN}, {srd}, s{sMH} offen offset:1024 sc1
    v_mov_b32 v{PB+14}, {DBG_MPROG}
    v_mov_b32 v{PB+15}, 64
    s_waitcnt vmcnt(0)
    s_barrier
    s_cmp_lg_u32 s{sW}, 0
    s_cbranch_scc1 {L}
    s_mov_b64 exec, 1
    global_store_dword v{PB+14}, v{PB+15}, s[8:9] sc1
    s_mov_b64 exec, -1
    """)
    A.label(L)
    if trace: A.label("Lexit2")
```

```python
from asmlib import *
from layout import *
import struct, math
def fbits(x): return struct.unpack("<I", struct.pack("<f", x))[0]

SRD = 4; sU, sW, sJ, sSig = 10, 11, 12, 13
sS, sSpin = 14, 18
SRDW = 28; sT = 36
L16 = 1
UROW = 4608
KROW = 4160
L_U, L_K, L_Y = 0, 8*UROW, 8*UROW + 8*KROW
L_RED = 0

def emit_conv_out(A, stamps=False, slp=2):
    srd = f"s[{SRD}:{SRD+3}]"; srw = f"s[{SRDW}:{SRDW+3}]"
    cv = lambda d, a, b: A(f"v_cvt_pk_bf16_f32 v{d}, v{a}, v{b}")
    lo = lambda d, a: A(f"v_lshlrev_b32 v{d}, 16, v{a}")
    hi = lambda d, a: A(f"v_and_b32 v{d}, 0xffff0000, v{a}")
    A(f"""
    s_load_dwordx2 s[{SRD}:{SRD+1}], s[0:1], {KA['ws']}
    s_load_dwordx2 s[8:9], s[0:1], {KA['dbg']}
    s_load_dwordx4 s[48:51], s[0:1], {KA['Bk']}
    s_load_dwordx4 s[52:55], s[0:1], {KA['shift']}
    s_load_dwordx4 s[56:59], s[0:1], {KA['ssmD']}
    s_load_dwordx2 s[60:61], s[0:1], {KA['x']}
    s_load_dwordx2 s[62:63], s[0:1], {KA['Wo']}
    s_load_dwordx2 s[64:65], s[0:1], {KA['out']}
    v_lshrrev_b32 v5, 6, v0
    v_and_b32 v2, 63, v0
    v_readfirstlane_b32 s{sW}, v5
    v_and_b32 v3, 15, v2
    v_lshrrev_b32 v4, 4, v2
    v_lshlrev_b32 v{L16}, 4, v2
    s_mov_b32 s{SRD+2}, {WS_SIZE}
    s_mov_b32 s{SRD+3}, 0x00020000
    s_mov_b32 s{SRDW+2}, {2*MB}
    s_mov_b32 s{SRDW+3}, 0x00020000
    s_mov_b32 s66, {2*MB}
    s_mov_b32 s67, 0x00020000
    s_mov_b32 s{sSpin}, {SPIN}
    s_and_b32 s{sJ}, s{sU}, 15
    s_lshr_b32 s{sSig}, s{sU}, 4
    s_lshl_b32 s{sT}, s{sJ}, 2
    s_add_u32 s{sT}, s{sT}, s{sSig}
    s_lshl_b32 s{sT+1}, s{sT}, 4
    s_lshl_b32 s{sT+2}, s{sT}, 6
    s_waitcnt lgkmcnt(0)
    s_add_u32 s52, s52, s{sT+2}
    s_addc_u32 s53, s53, 0
    s_add_u32 s56, s56, s{sT+1}
    s_addc_u32 s57, s57, 0
    s_load_dwordx16 s[80:95], s[52:53], 0
    s_load_dwordx4 s[96:99], s[56:57], 0
    """)
    KR, VR, KV = 16, 60, 92
    A(f"""
    v_lshlrev_b32 v6, 13, v0
    v_add_u32 v6, s{sT+1}, v6
    v_subrev_u32 v7, 3072, v6
    v_add_u32 v8, 4096, v6
    s_mov_b32 s{SRDW}, s48
    s_mov_b32 s{SRDW+1}, s49
    """)
    for r in range(3): A(f"buffer_load_dwordx4 {v(KR + 4*r, 4)}, v7, {srw}, 0 offen offset:{r*1024}")
    for r in range(8): A(f"buffer_load_dwordx4 {v(KR + 12 + 4*r, 4)}, v{6 if r < 4 else 8}, {srw}, 0 offen offset:{(r & 3)*1024}")
    A(f"s_mov_b32 s{SRDW}, s50\ns_mov_b32 s{SRDW+1}, s51")
    for r in range(8): A(f"buffer_load_dwordx4 {v(VR + 4*r, 4)}, v{6 if r < 4 else 8}, {srw}, 0 offen offset:{(r & 3)*1024}")
    A(f"""
    s_mov_b32 s{SRDW}, s54
    s_mov_b32 s{SRDW+1}, s55
    s_lshl_b32 s{sT+2}, s{sT}, 15
    s_lshl_b32 s{sT+3}, s{sW}, 13
    s_add_u32 s{sT+2}, s{sT+2}, s{sT+3}
    s_mul_i32 s{sT+3}, s{sW}, {2*KROW}
    """)
    for c in range(2):
        for q in range(4):
            A(f"""
            s_add_u32 m0, s{sT+3}, {L_K + c*KROW + 64 + q*1024}
            s_add_u32 s{sT+4}, s{sT+2}, {c*4096 + q*1024}
            buffer_load_dwordx4 v{L16}, {srw}, s{sT+4} offen lds
            """)
    A(f"""
    v_mov_b32 v124, 0
    v_mov_b32 v125, 0
    v_mov_b32 v126, 0
    v_mov_b32 v127, 0
    v_lshrrev_b32 v9, 5, v0
    v_mul_u32_u24 v10, {UROW}, v9
    v_and_b32 v11, 31, v0
    v_lshl_add_u32 v10, v11, 4, v10
    ds_write_b128 v10, v[124:127] offset:{L_U}
    v_mul_u32_u24 v10, {KROW}, v9
    v_and_b32 v11, 3, v0
    v_lshl_add_u32 v10, v11, 4, v10
    ds_write_b128 v10, v[124:127] offset:{L_K}
    """)
    GX, GW = 128, 160
    A(f"""
    s_lshl_b32 s{sT+2}, s{sU}, 15
    s_lshl_b32 s{sT+3}, s{sW}, 13
    s_add_u32 s{sT+2}, s{sT+2}, s{sT+3}
    v_add_u32 v9, s{sT+2}, v{L16}
    v_add_u32 v10, 4096, v9
    global_load_dwordx4 {v(GW,4)}, v{L16}, s[58:59]
    """)
    for r in range(8): A(f"global_load_dwordx4 {v(GX + 4*r, 4)}, v{9 if r < 4 else 10}, s[60:61] offset:{(r & 3)*1024}")
    A("s_waitcnt vmcnt(0) lgkmcnt(0)")
    W8 = 164
    for k in range(4): lo(W8 + 2*k, GW + k); hi(W8 + 2*k + 1, GW + k)
    T0 = 172
    for r in range(8):
        for k in range(4):
            lo(T0, GX + 4*r + k); hi(T0 + 1, GX + 4*r + k)
            A(f"v_mul_f32 v{T0}, v{T0}, v{W8 + 2*k}\nv_mul_f32 v{T0+1}, v{T0+1}, v{W8 + 2*k + 1}")
            cv(T0 + 2, T0, T0 + 1)
            lo(T0, T0 + 2); hi(T0 + 1, T0 + 2)
            if k == 0: A(f"v_add_f32 v{180 + r}, v{T0}, v{T0+1}")
            else: A(f"v_add_f32 v{T0}, v{T0}, v{T0+1}\nv_add_f32 v{180 + r}, v{180 + r}, v{T0}")
    A.nop(2)
    for mod in ("quad_perm:[1,0,3,2]", "quad_perm:[2,3,0,1]", "row_ror:4", "row_ror:8"):
        for r in range(8): A(f"v_add_f32_dpp v{180+r}, v{180+r}, v{180+r} {mod} row_mask:0xf bank_mask:0xf")
    A(f"v_and_b32 v{T0}, 7, v3\nv_mov_b32 v{T0+1}, v180")
    for r in range(1, 8): A(f"v_cmp_eq_u32 vcc, {r}, v{T0}\ns_nop 1\nv_cndmask_b32 v{T0+1}, v{T0+1}, v{180+r}, vcc")
    A(f"""
    v_mov_b32 v{T0+2}, v{T0+1}
    s_nop 1
    v_permlane16_swap_b32 v{T0+1}, v{T0+2}
    v_add_f32 v{T0+3}, v{T0+1}, v{T0+2}
    v_add_f32 v{T0+4}, v{T0+1}, v{T0+2}
    s_nop 1
    v_permlane32_swap_b32 v{T0+3}, v{T0+4}
    v_add_f32 v{T0+1}, v{T0+3}, v{T0+4}
    v_cvt_pk_bf16_f32 v{T0+1}, v{T0+1}, v{T0+1}
    v_and_b32 v{T0+1}, 0xffff0000, v{T0+1}
    v_mul_f32 v{T0+1}, {fbits(-math.log2(math.e))}, v{T0+1}
    v_exp_f32 v{T0+1}, v{T0+1}
    s_nop 0
    v_add_f32 v{T0+1}, 1.0, v{T0+1}
    v_rcp_f32 v{T0+1}, v{T0+1}
    s_nop 0
    v_cvt_pk_bf16_f32 v{T0+1}, v{T0+1}, v{T0+1}
    v_and_b32 v{T0+1}, 0xffff0000, v{T0+1}
    s_lshr_b32 s{sT+2}, s{sT+2}, 8
    s_add_u32 s{sT+2}, s{sT+2}, {WS_G}
    v_lshlrev_b32 v{T0}, 2, v{T0}
    s_mov_b64 exec, 0xff
    buffer_store_dword v{T0+1}, v{T0}, {srd}, s{sT+2} offen sc1
    s_mov_b64 exec, -1
    """)
    XR = 128
    for r in range(8): A(f"global_load_dwordx4 {v(XR + 4*r, 4)}, v{6 if r < 4 else 8}, s[60:61] offset:{(r & 3)*1024}")
    KU, SH, P0, AC = 160, 100, 172, 176
    A(f"v_lshlrev_b32 v9, 4, v0\nv_add_u32 v9, {L_U + 512}, v9")
    shs = [100, 101, 68, 69]
    for ch in range(8):
        un = lo if ch % 2 == 0 else hi
        for r in range(11): un(KU + r, KR + 4*r + ch//2)
        A(f"""
        s_lshl_b32 s{shs[0]}, s{80 + 2*ch}, 16
        s_and_b32 s{shs[1]}, s{80 + 2*ch}, 0xffff0000
        s_lshl_b32 s{shs[2]}, s{81 + 2*ch}, 16
        s_and_b32 s{shs[3]}, s{81 + 2*ch}, 0xffff0000
        """)
        for p in range(4):
            for j in (3, 2, 1, 0):
                for e in range(2): A(f"v_mul_f32 v{P0+e}, s{shs[j]}, v{KU + 3 + 2*p + e - j}")
                cv(P0 + 2, P0, P0 + 1)
                if j == 3:
                    lo(AC, P0 + 2); hi(AC + 1, P0 + 2)
                else:
                    lo(P0, P0 + 2); hi(P0 + 1, P0 + 2)
                    for e in range(2): A(f"v_add_f32 v{AC+e}, v{AC+e}, v{P0+e}")
                    cv(P0 + 2, AC, AC + 1)
                    lo(AC, P0 + 2); hi(AC + 1, P0 + 2)
            for e in range(2):
                un(P0 + e, VR + 4*(2*p + e) + ch//2)
                A(f"v_mul_f32 v{P0+e}, v{P0+e}, v{AC+e}")
            cv(KV + 4*ch + 3 - p, P0 + 1, P0)
        A(f"ds_write_b128 v9, {v(KV + 4*ch, 4)} offset:{ch*UROW}")
    A("s_waitcnt lgkmcnt(0)\ns_barrier")
    if stamps: A('s_memrealtime s[76:77]')
    AF, BF, CA = 16, 48, 160
    A(f"""
    v_lshlrev_b32 v10, 3, v4
    v_sub_u32 v10, v3, v10
    v_lshlrev_b32 v10, 1, v10
    s_mul_i32 s{sT+2}, s{sW}, {2*KROW}
    s_add_u32 s{sT+2}, s{sT+2}, {L_K + 64 + 18}
    v_add_u32 v10, s{sT+2}, v10
    v_lshl_add_u32 v11, v3, 1, v4
    v_lshlrev_b32 v11, 4, v11
    s_mul_i32 s{sT+2}, s{sW}, {2*UROW}
    s_add_u32 s{sT+2}, s{sT+2}, {L_U + 512 - 32}
    v_add_u32 v11, s{sT+2}, v11
    v_lshlrev_b32 v12, 5, v3
    v_lshl_add_u32 v12, v4, 3, v12
    s_lshl_b32 s{sT+2}, s{sW}, 13
    s_add_u32 s{sT+2}, s{sT+2}, {L_Y}
    v_add_u32 v12, s{sT+2}, v12
    s_mov_b32 s{sT+2}, 0
    """)
    A.label("Cch")
    for k in range(32): A(f"v_mov_b32 v{CA+k}, 0")
    A(f"s_mov_b32 s{sT+3}, 0")
    A.label("Crho")
    for n in range(8): A(f"ds_read_b128 {v(BF + 4*n, 4)}, v11 offset:{512*n}")
    A("s_waitcnt lgkmcnt(4)")
    for m in range(8): A(f"ds_read_b128 {v(AF + 4*m, 4)}, v10 offset:{512*m}")
    for m in range(8):
        A(f"s_waitcnt lgkmcnt({7 - m})")
        for tau in range(m, 8):
            A(f"v_mfma_f32_16x16x32_bf16 {v(CA + 4*tau, 4)}, {v(AF + 4*m, 4)}, {v(BF + 4*(tau - m), 4)}, {v(CA + 4*tau, 4)}")
    A(f"""
    v_add_u32 v10, 64, v10
    v_subrev_u32 v11, 64, v11
    s_add_u32 s{sT+3}, s{sT+3}, 1
    s_cmp_lt_u32 s{sT+3}, 8
    s_cbranch_scc1 Crho
    s_nop 4
    """)
    for tau in range(8):
        cv(AF + 2*tau, CA + 4*tau, CA + 4*tau + 1); cv(AF + 2*tau + 1, CA + 4*tau + 2, CA + 4*tau + 3)
        A(f"ds_write_b64 v12, {v(AF + 2*tau, 2)} offset:{512*tau}")
    A(f"""
    v_add_u32 v10, {KROW - 512}, v10
    v_add_u32 v11, {UROW + 512}, v11
    v_add_u32 v12, 4096, v12
    s_waitcnt lgkmcnt(0)
    s_add_u32 s{sT+2}, s{sT+2}, 1
    s_cmp_lt_u32 s{sT+2}, 2
    s_cbranch_scc1 Cch
    s_barrier
    v_lshlrev_b32 v9, 4, v0
    v_add_u32 v9, {L_Y}, v9
    """)
    YR, BO = 16, 48
    for ch in range(8): A(f"ds_read_b128 {v(YR + 4*ch, 4)}, v9 offset:{4096*ch}")
    A("s_waitcnt lgkmcnt(0) vmcnt(0)")
    for cp in range(4):
        A(f"s_lshl_b32 s100, s{96+cp}, 16\ns_and_b32 s101, s{96+cp}, 0xffff0000")
        for r in range(8):
            for e in range(2):
                ch = 2*cp + e
                (hi if r % 2 == 0 else lo)(P0 + e, KV + 4*ch + 3 - r//2)
                A(f"v_mul_f32 v{P0+e}, s{100+e}, v{P0+e}")
            cv(P0 + 2, P0, P0 + 1)
            lo(P0, P0 + 2); hi(P0 + 1, P0 + 2)
            for e in range(2):
                (lo if r % 2 == 0 else hi)(AC + e, YR + 4*(2*cp + e) + r//2)
                A(f"v_add_f32 v{P0+e}, v{P0+e}, v{AC+e}")
            cv(P0 + 2, P0, P0 + 1)
            lo(P0, P0 + 2); hi(P0 + 1, P0 + 2)
            lo(AC, XR + 4*r + cp); hi(AC + 1, XR + 4*r + cp)
            for e in range(2): A(f"v_mul_f32 v{P0+e}, v{P0+e}, v{AC+e}")
            cv(BO + 4*r + cp, P0, P0 + 1)
    A(f"""
    s_lshl_b32 s{sT+2}, s{sJ}, 17
    s_lshl_b32 s{sT+3}, s{sSig}, 15
    s_add_u32 s{sT+2}, s{sT+2}, s{sT+3}
    s_add_u32 s{sT+2}, s{sT+2}, {WS_B}
    v_lshlrev_b32 v9, 4, v0
    """)
    for r in range(8): A(f"buffer_store_dwordx4 {v(BO + 4*r, 4)}, v9, {srd}, s{sT+2} offen sc1\ns_add_u32 s{sT+2}, s{sT+2}, 4096")
    A(f"""
    s_waitcnt vmcnt(0)
    s_barrier
    s_cmp_lg_u32 s{sW}, 0
    s_cbranch_scc1 Cnf
    v_mov_b32 v9, {DBG_CONV}
    v_mov_b32 v10, 1
    s_mov_b64 exec, 1
    global_atomic_add v9, v10, s[8:9]
    s_mov_b64 exec, -1
    """)
    A.label("Cnf")
    if stamps: A('s_memrealtime s[80:81]')
    A(f"""
    s_mov_b32 s{SRDW}, s62
    s_mov_b32 s{SRDW+1}, s63
    s_mov_b32 s{SRDW+2}, {4*MB}
    v_lshrrev_b32 v5, 2, v2
    v_lshlrev_b32 v5, 10, v5
    v_and_b32 v6, 3, v2
    v_lshl_add_u32 v5, v6, 4, v5
    s_lshl_b32 s{sT}, s{sW}, 20
    s_lshl_b32 s{sT+1}, s{sJ}, 6
    s_add_u32 s{sT}, s{sT}, s{sT+1}
    v_add_u32 v10, s{sT}, v5
    s_lshl_b32 s{sT+2}, s{sW}, 15
    v_lshrrev_b32 v5, 2, v3
    v_lshl_add_u32 v5, v4, 3, v5
    v_lshlrev_b32 v5, 6, v5
    v_lshl_add_u32 v5, v6, 4, v5
    v_add_u32 v12, s{sT+2}, v5
    """)
    def issue(n):
        for q in range(4):
            A(f"""
            s_add_u32 m0, s{sT+2}, {(n % 8)*4096 + q*1024}
            s_mov_b32 s{sT+1}, {(64*n + 16*q)*1024}
            buffer_load_dwordx4 v10, {srw}, s{sT+1} offen lds
            """)
    for n in range(8): issue(n)
    for n in range(16):
        A(f"s_waitcnt vmcnt({4*(min(n + 8, 16) - n - 1)})")
        for kk in range(2):
            for t in range(2):
                for u in range(2):
                    A(f"ds_read_b64_tr_b16 {a_(((2*n + kk)*2 + t)*4 + 2*u, 2)}, v12 offset:{(n % 8)*4096 + kk*2048 + u*256 + 8*t}")
        A("s_waitcnt lgkmcnt(0)")
        if n + 8 < 16: issue(n + 8)
    if stamps: A('s_memrealtime s[82:83]')
    A(f"v_mov_b32 v9, {DBG_CONV}")
    A.label("Ocw")
    A(f"""
    global_load_dwordx2 v[14:15], v9, s[8:9] sc1
    s_sub_u32 s{sSpin}, s{sSpin}, 1
    s_cbranch_scc1 Ocg
    s_waitcnt vmcnt(0)
    v_readfirstlane_b32 s{sT}, v14
    v_readfirstlane_b32 s{sT+1}, v15
    s_add_u32 s{sT}, s{sT}, s{sT+1}
    s_cmp_ge_u32 s{sT}, {64 + 160}
    s_cbranch_scc1 Ocd
    s_sleep 32
    s_branch Ocw
    """)
    A.label("Ocg")
    A(f"s_mov_b32 s{sSpin}, 0")
    A.label("Ocd")
    A(f"""
    s_barrier
    s_and_b32 s{sT}, s{sW}, 1
    s_lshl_b32 s{sT}, s{sT}, 2
    v_lshrrev_b32 v5, 2, v3
    v_lshlrev_b32 v5, 3, v5
    v_add_u32 v5, v5, v6
    v_add_u32 v5, s{sT}, v5
    v_lshlrev_b32 v7, 2, v5
    s_lshr_b32 s{sT}, s{sW}, 1
    s_lshl_b32 s{sT}, s{sT}, 3
    v_lshlrev_b32 v8, 4, v4
    v_add_u32 v8, s{sT}, v8
    v_and_b32 v9, 7, v5
    v_lshlrev_b32 v9, 12, v9
    v_lshl_add_u32 v9, v4, 15, v9
    v_lshrrev_b32 v14, 3, v5
    v_lshl_add_u32 v9, v14, 4, v9
    v_add_u32 v9, s{sT}, v9
    v_lshl_add_u32 v8, v5, 10, v8
    s_lshl_b32 s{sT}, s{sJ}, 6
    v_add_u32 v8, s{sT}, v8
    s_lshl_b32 s{sT}, s{sW}, 12
    v_add_u32 v10, s{sT}, v{L16}
    s_lshl_b32 s{sT}, s{sW}, 10
    v_add_u32 v11, s{sT}, v{L16}
    v_and_b32 v13, 7, v2
    s_lshl_b32 s{sT}, s{sW}, 3
    v_add_lshl_u32 v13, s{sT}, v13, 2
    s_mov_b32 s{sS}, s{sSig}
    """)
    OB, NB = 32, 48
    OA, RD, EB, EG = 16, 224, 240, 242
    A.label("Otop")
    A(f"""
    s_lshl_b32 s{sT}, s{sS}, 7
    s_add_u32 s{sT}, s{sT}, {WS_OFL}
    s_lshl_b32 s{sT+1}, s{sS}, 7
    s_add_u32 s{sT+1}, s{sT+1}, {WS_G}
    buffer_load_dword v{EG}, v7, {srd}, s{sT+1} offen sc1
    s_lshl_b32 s{sT+1}, s{sS}, 6
    s_lshl_b32 s{sT+2}, s{sJ}, 17
    s_add_u32 s{sT+1}, s{sT+1}, s{sT+2}
    s_add_u32 s{sT+1}, s{sT+1}, {WS_B}
    buffer_load_dwordx2 {v(EB,2)}, v9, {srd}, s{sT+1} offen sc1
    """)
    A.label("Opoll")
    A(f"""
    buffer_load_dword v14, v13, {srd}, s{sT} offen sc1
    s_sub_u32 s{sSpin}, s{sSpin}, 1
    s_cbranch_scc1 Ogv
    s_waitcnt vmcnt(0)
    v_cmp_eq_u32 vcc, 0, v14
    s_cbranch_vccz Ogo
    s_sleep {slp}
    s_branch Opoll
    """)
    A.label("Ogv")
    A(f"s_mov_b32 s{sSpin}, 0\ns_waitcnt vmcnt(0)")
    A.label("Ogo")
    A(f"""
    s_lshl_b32 s{sT}, s{sS}, 18
    s_lshl_b32 s{sT+1}, s{sW}, 16
    s_add_u32 s{sT}, s{sT}, s{sT+1}
    s_add_u32 s{sT}, s{sT}, {WS_O}
    """)
    def oload(n):
        if n % 4 == 0 and n: A(f"s_add_u32 s{sT}, s{sT}, 4096")
        A(f"buffer_load_dwordx4 {v(OB + 4*(n % NB), 4)}, v{L16}, {srd}, s{sT} offen offset:{(n & 3)*1024} sc1")
    for n in range(NB): oload(n)
    for n in range(64):
        ks, qt = n >> 1, n & 1
        issued = min(64, NB + n)
        A(f"s_waitcnt vmcnt({issued - n - 1})")
        for t in range(2):
            d = v(OA + (t*2 + qt)*4, 4)
            A(f"v_mfma_f32_16x16x32_bf16 {d}, {a_((ks*2 + t)*4, 4)}, {v(OB + 4*(n % NB), 4)}, {d if ks else 0}")
        if NB + n < 64: oload(NB + n)
    A.nop(8)
    for k in range(4): A(f"ds_write_b128 v10, {v(OA + 4*k, 4)} offset:{L_RED + 1024*k}")
    A("s_waitcnt lgkmcnt(0)\ns_barrier")
    for k in range(4): A(f"ds_read_b128 {v(RD + 4*k, 4)}, v11 offset:{L_RED + 4096*k}")
    G1 = EG + 1
    A(f"""
    v_sub_f32 v{G1}, 1.0, v{EG}
    v_cvt_pk_bf16_f32 v{G1}, v{G1}, v{G1}
    v_and_b32 v{G1}, 0xffff0000, v{G1}
    """)
    BU = 244
    lo(BU, EB); hi(BU + 1, EB); lo(BU + 2, EB + 1); hi(BU + 3, EB + 1)
    for k in range(4): A(f"v_mul_f32 v{BU+k}, v{BU+k}, v{G1}")
    cv(EB, BU, BU + 1); cv(EB + 1, BU + 2, BU + 3)
    lo(BU, EB); hi(BU + 1, EB); lo(BU + 2, EB + 1); hi(BU + 3, EB + 1)
    A("s_waitcnt lgkmcnt(0)\ns_barrier")
    for k in range(4): A(f"v_add_f32 v{RD+k}, v{RD+k}, v{RD+4+k}\nv_add_f32 v{RD+8+k}, v{RD+8+k}, v{RD+12+k}")
    for k in range(4): A(f"v_add_f32 v{RD+k}, v{RD+k}, v{RD+8+k}")
    def rnd():
        cv(RD + 4, RD, RD + 1); cv(RD + 5, RD + 2, RD + 3)
        lo(RD, RD + 4); hi(RD + 1, RD + 4); lo(RD + 2, RD + 5); hi(RD + 3, RD + 5)
    rnd()
    for k in range(4): A(f"v_mul_f32 v{RD+k}, v{RD+k}, v{EG}")
    rnd()
    for k in range(4): A(f"v_add_f32 v{RD+k}, v{RD+k}, v{BU+k}")
    cv(RD + 4, RD, RD + 1); cv(RD + 5, RD + 2, RD + 3)
    A(f"""
    s_lshl_b32 s{sT}, s{sS}, 15
    buffer_store_dwordx2 {v(RD+4,2)}, v8, s[64:67], s{sT} offen
    s_add_u32 s{sS}, s{sS}, 4
    s_cmp_lt_u32 s{sS}, 64
    s_cbranch_scc1 Otop
    s_branch Lend
    """)

if __name__ == "__main__":
    A = Asm(); emit_conv_out(A); A.label("Lend")
    for e in check(A.lines): print("HAZARD", e)
    print(len(A.lines), L_Y + 32768)
    assert all((s*52) >> 8 == s//5 for s in range(64))
```

```python
from asmlib import *
from layout import *
import struct, math
def fbits(x): return struct.unpack("<I", struct.pack("<f", x))[0]

SRD = 4; sH, sW, sI, sS = 10, 11, 12, 13
sCnt, sSpin, sKV, sQ, sC, sXB = 14, 18, 16, 17, 26, 19
SRDW = 28; sT = 36; sKF = 22
sMask = 60
L16 = 1
def KW(ks, t): return a_((ks*2 + t)*4, 4)
def VW(ks, t): return a_(128 + (ks*2 + t)*4, 4)
def QW(ks, t): return v(128 + (ks*2 + t)*4, 4)
XB0 = 131072
XB1 = 98304

def emit_head_worker(A, stamps=False, slp=2, LA=3):
    srd = f"s[{SRD}:{SRD+3}]"; srw = f"s[{SRDW}:{SRDW+3}]"
    cv = lambda d, a, b: A(f"v_cvt_pk_bf16_f32 v{d}, v{a}, v{b}")
    A(f"""
    s_load_dwordx2 s[{SRD}:{SRD+1}], s[0:1], {KA['ws']}
    s_load_dwordx2 s[8:9], s[0:1], {KA['dbg']}
    s_load_dwordx4 s[48:51], s[0:1], {KA['Wq']}
    s_load_dwordx2 s[52:53], s[0:1], {KA['Wv']}
    s_load_dwordx2 s[56:57], s[0:1], {KA['x']}
    v_lshrrev_b32 v5, 6, v0
    v_and_b32 v2, 63, v0
    v_readfirstlane_b32 s{sW}, v5
    v_and_b32 v3, 15, v2
    v_lshrrev_b32 v4, 4, v2
    v_lshlrev_b32 v{L16}, 4, v2
    s_mov_b32 s{SRD+2}, {WS_SIZE}
    s_mov_b32 s{SRD+3}, 0x00020000
    s_mov_b32 s{SRDW+2}, {4*MB}
    s_mov_b32 s{SRDW+3}, 0x00020000
    s_mov_b32 s58, {2*MB}
    s_mov_b32 s59, 0x00020000
    s_mov_b32 s{sSpin}, {SPIN}
    s_mov_b32 s{sC}, {fbits(128**-0.5 * math.log2(math.e))}
    """)
    A(f"""
    v_lshlrev_b32 v5, 2, v4
    v_xor_b32 v5, v5, v3
    v_lshlrev_b32 v5, 4, v5
    v_lshl_add_u32 v5, v4, 13, v5
    s_lshl_b32 s{sT}, s{sH}, 8
    s_lshl_b32 s{sT+1}, s{sW}, 18
    s_add_u32 s{sT}, s{sT}, s{sT+1}
    v_add_u32 v10, s{sT}, v5
    v_lshrrev_b32 v5, 2, v3
    v_lshl_add_u32 v12, v4, 3, v5
    v_lshlrev_b32 v12, 8, v12
    v_xor_b32 v5, s{sW}, v5
    v_and_b32 v11, 3, v3
    v_lshl_add_u32 v5, v5, 2, v11
    v_lshl_add_u32 v12, v5, 4, v12
    v_add_u32 v13, 65536, v12
    v_xor_b32 v5, v4, v3
    v_lshlrev_b32 v11, 10, v3
    v_add_u32 v11, {XB0}, v11
    """)
    for b in range(4):
        A(f"v_xor_b32 v14, {4*b}, v5\nv_lshl_add_u32 v{6+b}, v14, 4, v11")
    A(f"""
    s_lshl_b32 s{sT+2}, s{sW}, 13
    s_mov_b32 s{sS}, s{sI}
    s_mov_b32 s{sXB}, {XB0}
    s_waitcnt lgkmcnt(0)
    """)
    def xdma(sseg):
        A(f"""
        s_lshl_b32 s{sT}, s{sseg}, 15
        s_and_b32 s{sT+1}, s{sW}, 1
        s_lshl_b32 s{sT+3}, s{sT+1}, 14
        s_add_u32 s{sT}, s{sT}, s{sT+3}
        s_lshr_b32 s{sT+3}, s{sW}, 1
        s_lshl_b32 s{sT+3}, s{sT+3}, 12
        s_add_u32 s{sT}, s{sT}, s{sT+3}
        s_lshl_b32 s{sT+1}, s{sT+1}, 7
        s_add_u32 s{sT+4}, s{sXB}, s{sT+2}
        """)
        for q in range(8):
            A(f"""
            s_xor_b32 s{sT+3}, s{sT+1}, {q*16}
            v_xor_b32 v14, s{sT+3}, v{L16}
            s_add_u32 m0, s{sT+4}, {q*1024}
            s_add_u32 s{sT+3}, s{sT}, {(8*(q >> 2) + (q & 3))*1024}
            buffer_load_dwordx4 v14, s[56:59], s{sT+3} offen lds
            """)
    A(f"""
    v_mul_u32_u24 v14, 640, v2
    s_lshl_b32 s{sT}, s{sI}, 7
    s_lshl_b32 s{sT+1}, s{sH}, 2
    s_add_u32 s{sT}, s{sT}, s{sT+1}
    v_add_u32 v14, s{sT}, v14
    s_lshl_b32 s{sKF}, s{sH}, 7
    s_lshl_b32 s{sT+1}, s{sI}, 2
    s_add_u32 s{sKF}, s{sKF}, s{sT+1}
    s_add_u32 s{sKF}, s{sKF}, 8192
    v_mov_b32 v15, s{sKF}
    v_cmp_gt_u32 vcc, 8192, v14
    s_add_u32 s{sKF}, s{sKF}, {WS_FL}
    s_mov_b32 s{sT}, {WS_FL}
    v_cndmask_b32 v14, v15, v14, vcc
    v_mov_b32 v15, 0
    s_cmp_lg_u32 s{sW}, 0
    s_cbranch_scc1 Hnz
    s_mov_b64 exec, 0x3fff
    buffer_store_dword v15, v14, {srd}, s{sT} offen sc1
    s_mov_b64 exec, -1
    """)
    A.label("Hnz")
    xdma(sS)
    base = [50, 52, 48]
    dst = [lambda ks, t: ("a", (ks*2 + t)*4), lambda ks, t: ("a", 128 + (ks*2 + t)*4), lambda ks, t: ("v", 128 + (ks*2 + t)*4)]
    def wdma(n):
        if n % 4 == 0: A(f"s_mov_b32 s{SRDW}, s{base[n//4]}\ns_mov_b32 s{SRDW+1}, s{base[n//4]+1}")
        for q in range(8):
            A(f"""
            s_add_u32 m0, s{sT+2}, {(n % 4)*32768 + q*1024}
            s_mov_b32 s{sT+1}, {(128*(n % 4) + 4*q)*8192}
            buffer_load_dwordx4 v10, {srw}, s{sT+1} offen lds
            """)
    for n in range(3): wdma(n)
    for n in range(12):
        A(f"s_waitcnt vmcnt({8*(min(n + 3, 12) - n - 1)})")
        A("s_barrier")
        if n == 0:
            A(f"""
            s_cmp_lg_u32 s{sW}, 0
            s_cbranch_scc1 Hna
            v_mov_b32 v14, {DBG_ZERO}
            v_mov_b32 v15, 1
            s_mov_b64 exec, 1
            global_atomic_add v14, v15, s[8:9]
            s_mov_b64 exec, -1
            """)
            A.label("Hna")
        if n + 3 < 12: wdma(n + 3)
        for kk in range(4):
            for t in range(2):
                k, r0 = dst[n//4](4*(n % 4) + kk, t)
                for u in range(2):
                    A(f"ds_read_b64_tr_b16 {R(k, r0 + 2*u, 2)}, v{12 + ((n % 4) >> 1)} offset:{(n & 1)*32768 + kk*8192 + u*1024 + 8*t}")
            if kk == 1: A("s_waitcnt lgkmcnt(0)")
        A("s_waitcnt lgkmcnt(0)")
    if stamps: A('s_memrealtime s[80:81]')
    sP, sPr, sRW, sRR = 15, 14, 20, 21
    EX = 73728; SLOT = 24576
    XF, ACC, PK = 20, 44, 92
    QF, AK_, AV_, SX, SM, KF, MF = 20, 36, 44, 52, 60, 64, 64
    VF, KM, VMr, PX, PM, OA, OP = 64, 80, 96, 104, 108, 36, 112
    X, Y, Z0, Z1 = 16, 17, 18, 19
    A(f"""
    v_lshrrev_b32 v5, 2, v3
    v_sub_u32 v5, v5, v4
    v_lshlrev_b32 v5, 3, v5
    v_and_b32 v11, 3, v3
    v_add_u32 v5, v5, v11
    s_and_b32 s{sT}, s{sW}, 1
    s_lshl_b32 s{sT}, s{sT}, 2
    v_add_u32 v5, s{sT}, v5
    """)
    for k in range(8): A(f"v_cmp_le_i32 s[{sMask+2*k}:{sMask+2*k+1}], {k}, v5")
    A(f"""
    v_cmp_gt_u32 s[76:77], 2, v4
    v_and_b32 v2, 7, v3
    v_lshl_add_u32 v2, v4, 3, v2
    v_lshlrev_b32 v2, 4, v2
    s_lshl_b32 s{sT}, s{sW}, 11
    v_add_u32 v3, s{sT}, v{L16}
    v_add_u32 v3, {EX}, v3
    v_add_u32 v4, {EX}, v{L16}
    s_lshr_b32 s{sT}, s{sW}, 1
    s_lshl_b32 s{sT}, s{sT}, 12
    v_add_u32 v5, s{sT}, v4
    v_mov_b32 v10, {DBG_MPROG}
    v_mov_b32 v11, 0xff800000
    s_mov_b32 s{sP}, s{sI}
    s_mov_b32 s{sPr}, 0
    s_mov_b32 s{sRW}, 0
    s_mov_b32 s{sRR}, 0
    s_barrier
    """)
    def flag(tag, soff):
        A(f"""
        s_waitcnt vmcnt(0) lgkmcnt(0)
        s_barrier
        s_cmp_lg_u32 s{sW}, 0
        s_cbranch_scc1 Hnf{tag}
        v_mov_b32 v14, s{sPr}
        s_mov_b64 exec, 1
        buffer_store_dword v14, off, {srd}, s{soff} sc1
        s_mov_b64 exec, -1
        """)
        A.label(f"Hnf{tag}")
    A.label("H1top")
    if stamps:
        A(f"""
        s_memrealtime s[84:85]
        s_lshl_b32 s86, s2, 4
        s_and_b32 s87, s{sPr}, 15
        s_add_u32 s86, s86, s87
        s_lshl_b32 s86, s86, 2
        s_add_u32 s86, s86, {WS_DBG + 16384}
        s_waitcnt lgkmcnt(0)
        v_mov_b32 v14, s84
        buffer_store_dword v14, off, {srd}, s86
        """)
    A(f"""
    s_lshl_b32 s{sKV}, s{sP}, 5
    s_add_u32 s{sKV}, s{sKV}, s{sH}
    s_lshl_b32 s{sKV}, s{sKV}, 2
    s_add_u32 s{sKV}, s{sKV}, s{sW}
    s_lshl_b32 s{sKV}, s{sKV}, 12
    s_add_u32 s{sP}, s{sP}, 5
    s_xor_b32 s{sXB}, s{sXB}, {XB0 ^ XB1}
    s_cmp_ge_u32 s{sP}, 64
    s_cbranch_scc1 H1nx
    """)
    xdma(sP)
    A.label("H1nx")
    def xread(ks):
        for kt in range(2):
            A(f"ds_read_b128 {v(XF + (ks % 3)*8 + 4*kt, 4)}, v{6 + (ks & 3)} offset:{(ks >> 2)*256 + kt*16384}")
    xread(0); xread(1)
    for ks in range(16):
        if ks + 2 < 16:
            xread(ks + 2); A("s_waitcnt lgkmcnt(4)")
        else: A(f"s_waitcnt lgkmcnt({2*(15 - ks)})")
        for kt in range(2):
            xf = v(XF + (ks % 3)*8 + 4*kt, 4)
            for t in range(2):
                for m in range(3):
                    d = v(ACC + m*16 + (kt*2 + t)*4, 4)
                    c = d if ks else "0"
                    if m == 0: A(f"v_mfma_f32_16x16x32_bf16 {d}, {KW(ks,t)}, {xf}, {c}")
                    if m == 1: A(f"v_mfma_f32_16x16x32_bf16 {d}, {xf}, {VW(ks,t)}, {c}")
                    if m == 2: A(f"v_mfma_f32_16x16x32_bf16 {d}, {QW(ks,t)}, {xf}, {c}")
    for b in range(4): A(f"v_xor_b32 v{6+b}, {XB0 ^ XB1}, v{6+b}")
    A(f"""
    s_mul_i32 s{sT}, s{sW}, 6144
    s_add_u32 s{sT}, s{sT}, s{sRW}
    v_add_u32 v12, s{sT}, v{L16}
    s_nop 1
    """)
    ac = lambda m, kt, t: ACC + m*16 + (kt*2 + t)*4
    for kt in range(2):
        for t in range(2):
            cv(PK + kt*4 + 2*t, ac(0,kt,t), ac(0,kt,t)+1); cv(PK + kt*4 + 2*t + 1, ac(0,kt,t)+2, ac(0,kt,t)+3)
        A(f"buffer_store_dwordx4 {v(PK + kt*4, 4)}, v{L16}, {srd}, s{sKV} offen offset:{kt*1024} sc1")
    for t in range(2):
        for kt in range(2):
            cv(PK + 8 + t*4 + 2*kt, ac(1,kt,t), ac(1,kt,t)+1); cv(PK + 8 + t*4 + 2*kt + 1, ac(1,kt,t)+2, ac(1,kt,t)+3)
        A(f"buffer_store_dwordx4 {v(PK + 8 + t*4, 4)}, v{L16}, {srd}, s{sKV} offen offset:{2048 + t*1024} sc1")
    for kt in range(2):
        for t in range(2):
            cv(PK + 16 + kt*4 + 2*t, ac(2,kt,t), ac(2,kt,t)+1); cv(PK + 16 + kt*4 + 2*t + 1, ac(2,kt,t)+2, ac(2,kt,t)+3)
    for k in range(6): A(f"ds_write_b128 v12, {v(PK + 4*k, 4)} offset:{1024*k}")
    A(f"""
    s_add_u32 s{sRW}, s{sRW}, {SLOT}
    s_cmp_eq_u32 s{sRW}, {3*SLOT}
    s_cselect_b32 s{sRW}, 0, s{sRW}
    s_add_u32 s{sPr}, s{sPr}, 1
    s_cmp_ge_u32 s{sP}, 64
    s_cselect_b32 s{sPr}, 15, s{sPr}
    """)
    flag("1", sKF)
    A(f"""
    s_cmp_lt_u32 s{sPr}, {LA}
    s_cbranch_scc1 H1top
    """)
    A.label("H3top")
    A(f"""
    s_lshl_b32 s{sQ}, s{sS}, 5
    s_add_u32 s{sQ}, s{sQ}, s{sH}
    s_lshl_b32 s{sQ}, s{sQ}, 13
    s_and_b32 s{sT}, s{sW}, 1
    s_lshl_b32 s{sT}, s{sT}, 10
    s_add_u32 s{sQ}, s{sQ}, s{sT}
    s_add_u32 s{sT}, s{sT}, s{sRR}
    v_add_u32 v12, s{sRR}, v{L16}
    v_add_u32 v13, s{sT}, v{L16}
    s_lshr_b32 s{sT}, s{sW}, 1
    s_lshl_b32 s{sT+1}, s{sT}, 12
    s_add_u32 s{sQ}, s{sQ}, s{sT+1}
    s_add_u32 s{sQ}, s{sQ}, {WS_O}
    s_mul_i32 s{sT}, s{sT}, 12288
    """)
    for sl in range(4):
        A(f"ds_read_b128 {v(QF + 4*sl, 4)}, v13 offset:{sl*6144 + 4096}")
        for kt in range(2): A(f"ds_read_b128 {v(KF + 8*sl + 4*kt, 4)}, v12 offset:{sl*6144 + kt*1024}")
    A(f"v_add_u32 v12, s{sT}, v12")
    A("s_waitcnt lgkmcnt(0)")
    for sl in range(4):
        for kt in range(2):
            d = v(SX + 4*kt, 4)
            A(f"v_mfma_f32_16x16x32_bf16 {d}, {v(KF + 8*sl + 4*kt, 4)}, {v(QF + 4*sl, 4)}, {d if sl else 0}")
    A.nop(8)
    for k in range(8): A(f"v_cndmask_b32 v{SX+k}, v11, v{SX+k}, s[{sMask+2*k}:{sMask+2*k+1}]")
    A(f"""
    v_max3_f32 v{X}, v{SX}, v{SX+1}, v{SX+2}
    v_max3_f32 v{X}, v{X}, v{SX+3}, v{SX+4}
    v_max3_f32 v{X}, v{X}, v{SX+5}, v{SX+6}
    v_max_f32 v{X}, v{X}, v{SX+7}
    s_cmp_lg_u32 s{sW}, 0
    s_cbranch_scc1 H3go
    """)
    A.label("H3poll")
    A(f"""
    global_load_dword v14, v10, s[8:9] sc1
    s_sub_u32 s{sSpin}, s{sSpin}, 1
    s_cbranch_scc1 H3gv
    s_waitcnt vmcnt(0)
    v_readfirstlane_b32 s{sT}, v14
    s_cmp_gt_u32 s{sT}, s{sS}
    s_cbranch_scc1 H3go
    s_add_u32 s{sT}, s{sT}, 1
    s_cmp_ge_u32 s{sT}, s{sS}
    s_cbranch_scc1 H3near
    s_sleep 32
    """)
    A.label("H3near")
    A(f"""
    s_sleep {slp}
    s_branch H3poll
    """)
    A.label("H3gv")
    A(f"s_mov_b32 s{sSpin}, 0")
    A.label("H3go")
    A(f"""
    s_barrier
    s_lshl_b32 s{sT}, s{sS}, 13
    s_add_u32 s{sT}, s{sT}, {WS_MH}
    s_add_u32 s{sT+1}, s{sT}, 4096
    """)
    for ks in range(16):
        off = f_to_pos(ks >> 1)*1024 + (ks & 1)*512
        A(f"buffer_load_dwordx4 {v(MF + 4*ks, 4)}, v2, {srd}, s{sT + (off >> 12)} offen offset:{off & 4095} sc1")
    for ks in range(16):
        A(f"s_waitcnt vmcnt({15 - ks})")
        mf = v(MF + 4*ks, 4)
        for t in range(2):
            d = v(AK_ + 4*t, 4); A(f"v_mfma_f32_16x16x32_bf16 {d}, {KW(ks,t)}, {mf}, {d if ks else 0}")
        for t in range(2):
            d = v(AV_ + 4*t, 4); A(f"v_mfma_f32_16x16x32_bf16 {d}, {mf}, {VW(ks,t)}, {d if ks else 0}")
        if 8 <= ks < 12:
            sl, t = (ks - 8) >> 1, ks & 1
            A(f"ds_read_b128 {v(VF + 8*sl + 4*t, 4)}, v12 offset:{sl*6144 + 2048 + t*1024}")
    A.nop(4)
    for k in range(4): cv(KM + k, AK_ + 2*k, AK_ + 2*k + 1)
    for k in range(4): cv(KM + 4 + k, AV_ + 2*k, AV_ + 2*k + 1)
    A(f"""
    ds_write_b128 v3, {v(KM,4)}
    ds_write_b128 v3, {v(KM+4,4)} offset:1024
    s_waitcnt lgkmcnt(0)
    s_barrier
    """)
    for sl in range(4): A(f"ds_read_b128 {v(KM + 4*sl, 4)}, v4 offset:{2048*sl}")
    for sl in range(2): A(f"ds_read_b128 {v(VMr + 4*sl, 4)}, v5 offset:{2048*sl + 1024}")
    for sl in range(4):
        A(f"s_waitcnt lgkmcnt({5 - sl})")
        A(f"v_mfma_f32_16x16x32_bf16 {v(SM,4)}, {v(KM + 4*sl, 4)}, {v(QF + 4*sl, 4)}, {v(SM,4) if sl else 0}")
    A.nop(8)
    for k in range(4): A(f"v_cndmask_b32 v{SM+k}, v11, v{SM+k}, s[76:77]")
    A(f"""
    v_max3_f32 v{X}, v{X}, v{SM}, v{SM+1}
    v_max3_f32 v{Y}, v{X}, v{SM+2}, v{SM+3}
    v_max3_f32 v{X}, v{X}, v{SM+2}, v{SM+3}
    s_nop 1
    v_permlane16_swap_b32 v{X}, v{Y}
    v_max_f32 v{Z0}, v{X}, v{Y}
    v_max_f32 v{Z1}, v{X}, v{Y}
    s_nop 1
    v_permlane32_swap_b32 v{Z0}, v{Z1}
    v_max_f32 v{X}, v{Z0}, v{Z1}
    v_mul_f32 v{X}, s{sC}, v{X}
    """)
    for k in range(12): A(f"v_fma_f32 v{SX+k}, v{SX+k}, s{sC}, -v{X}")
    for k in range(12): A(f"v_exp_f32 v{SX+k}, v{SX+k}")
    for k in range(6): cv(PX + k, SX + 2*k, SX + 2*k + 1)
    A("s_waitcnt lgkmcnt(0)\ns_nop 0")
    for sl in range(2):
        for t in range(2):
            A(f"v_mfma_f32_16x16x32_bf16 {v(OA + 8*sl + 4*t, 4)}, {v(VF + 8*sl + 4*t, 4)}, {v(PX,4)}, 0")
    for sl in range(2):
        for t in range(2):
            d = v(OA + 8*sl + 4*t, 4)
            A(f"v_mfma_f32_16x16x16_bf16 {d}, {v(VMr + 4*sl + 2*t, 2)}, {v(PM,2)}, {d}")
    for k in range(0, 12, 2): A(f"v_add_f32 v{SX+k}, v{SX+k}, v{SX+k+1}")
    for k in range(0, 12, 4): A(f"v_add_f32 v{SX+k}, v{SX+k}, v{SX+k+2}")
    A(f"""
    v_add_f32 v{X}, v{SX}, v{SX+4}
    v_add_f32 v{Y}, v{X}, v{SX+8}
    v_add_f32 v{X}, v{X}, v{SX+8}
    s_nop 1
    v_permlane16_swap_b32 v{X}, v{Y}
    v_add_f32 v{Z0}, v{X}, v{Y}
    v_add_f32 v{Z1}, v{X}, v{Y}
    s_nop 1
    v_permlane32_swap_b32 v{Z0}, v{Z1}
    v_add_f32 v{X}, v{Z0}, v{Z1}
    v_rcp_f32 v{X}, v{X}
    s_nop 0
    """)
    for k in range(16): A(f"v_mul_f32 v{OA+k}, v{OA+k}, v{X}")
    for k in range(8): cv(OP + k, OA + 2*k, OA + 2*k + 1)
    for sl in range(2):
        A(f"buffer_store_dwordx4 {v(OP + 4*sl, 4)}, v{L16}, {srd}, s{sQ} offen offset:{2048*sl} sc1")
    A(f"""
    s_add_u32 s{sRR}, s{sRR}, {SLOT}
    s_cmp_eq_u32 s{sRR}, {3*SLOT}
    s_cselect_b32 s{sRR}, 0, s{sRR}
    s_lshl_b32 s{sT}, s{sS}, 7
    s_lshl_b32 s{sT+1}, s{sH}, 2
    s_add_u32 s{sT}, s{sT}, s{sT+1}
    s_add_u32 s{sT}, s{sT}, {WS_OFL}
    s_add_u32 s{sS}, s{sS}, 5
    """)
    flag("3", sT)
    A(f"""
    s_cmp_lt_u32 s{sP}, 64
    s_cbranch_scc1 H1top
    s_cmp_lt_u32 s{sS}, 64
    s_cbranch_scc1 H3top
    s_branch Lend
    """)

if __name__ == "__main__":
    A = Asm(); emit_head_worker(A); A.label("Lend")
    for e in check(A.lines): print("HAZARD", e)
    print(len(A.lines))
```

```python
MB = 1 << 20
WS_KV = 0
WS_Q  = 32*MB
WS_O  = 48*MB
WS_Y  = 64*MB
WS_P  = 72*MB
P_SLOT = 128*32*64
WS_M  = 73*MB
WS_MH = 74*MB
WS_FL = 75*MB
WS_DBG = 76*MB
WS_SIZE = 256*MB
KA = dict(x=0, mem0=8, Wq=16, Wk=24, Wv=32, Wo=40, seg=48, Bq=56, Bk=64, Bv=72, shift=80, ssmk=88, ssmD=96, gate=104, out=112, dbg=120, ws=128)
def pos_to_f(pos):
    ww, ii = pos >> 1, pos & 1
    i = ww >> 1; wp = 2*(ww & 1) + ii
    return 2*wp + i
def f_to_pos(f):
    wp, i = f >> 1, f & 1
    return 2*(2*i + (wp >> 1)) + (wp & 1)
assert all(f_to_pos(pos_to_f(p)) == p for p in range(8))
DBG_XCC = 0
DBG_TEAM = 32
DBG_CONV = 36
DBG_ZERO = 40
DBG_MPROG = 128
WS_OFL = WS_FL
WS_KVF = WS_FL + 8192
WS_B = WS_Y
WS_G = WS_Y + 4*MB
SPIN = 0x40000
```

```python
import sys
from asmlib import *
from layout import *
import chain, headw, convout
NAME = "gated_mix__memory_aug_recurrent_mem_tr__ssm_conv_h3__prompt"
CHAIN_CFG = dict(rpos=0, kvpf=0, estore=3, jfirst=28)
def prefetch_code(A, tag, end, n=1):
    A(f"s_getpc_b64 s[40:41]")
    A.label(f"Lpc{tag}")
    for k in range(n):
        A(f"""
        v_lshlrev_b32 v255, 7, v0
        v_add_u32 v255, {k*32768}, v255
        v_min_u32 v255, {end}-Lpc{tag}-4, v255
        global_load_dword v254, v255, s[40:41]
        """)
def body(stamps=False, roles="CHO", pf=1, slp=2, LA=3, **kw):
    A = Asm()
    A(f"""
    s_cmp_ge_u32 s2, 256
    s_cbranch_scc1 Lend2
    s_load_dwordx2 s[8:9], s[0:1], {KA['dbg']}
    s_getreg_b32 s3, hwreg(HW_REG_XCC_ID, 0, 3)
    """)
    if stamps: A("s_memrealtime s[78:79]")
    A(f"""
    s_lshl_b32 s4, s3, 2
    v_mov_b32 v1, s4
    v_mov_b32 v2, 1
    v_mov_b32 v4, 0
    v_cmp_eq_u32 vcc, 0, v0
    s_and_saveexec_b64 s[20:21], vcc
    s_cbranch_execz Lnoat
    s_waitcnt lgkmcnt(0)
    global_atomic_add v3, v1, v2, s[8:9] sc0
    s_waitcnt vmcnt(0)
    ds_write_b32 v4, v3
    s_waitcnt lgkmcnt(0)
    """)
    A.label("Lnoat")
    A(f"""
    s_mov_b64 exec, s[20:21]
    s_barrier
    ds_read_b32 v3, v4
    s_waitcnt lgkmcnt(0)
    v_readfirstlane_b32 s10, v3
    s_barrier
    s_cmp_ge_u32 s10, 32
    s_cbranch_scc1 Lend2
    s_lshl_b32 s2, s3, 5
    s_add_u32 s2, s2, s10
    s_cmp_eq_u32 s3, 0
    s_cbranch_scc1 Rchain
    s_sub_u32 s10, s2, 32
    s_cmp_ge_u32 s10, 160
    s_cbranch_scc1 Rconv
    s_mul_i32 s4, s10, 205
    s_lshr_b32 s4, s4, 10
    s_mul_i32 s5, s4, 5
    s_sub_u32 s12, s10, s5
    s_mov_b32 s10, s4
    """)
    assert all((r*205) >> 10 == r//5 for r in range(160))
    if pf: prefetch_code(A, "H", "Rconv")
    if "H" in roles: headw.emit_head_worker(A, stamps, slp, LA)
    else: A("s_branch Lend2")
    A.label("Rconv")
    A("s_sub_u32 s10, s10, 160")
    if pf: prefetch_code(A, "O", "Rchain")
    if "O" in roles: convout.emit_conv_out(A, stamps, slp)
    else: A("s_branch Lend2")
    A.label("Rchain")
    if pf: prefetch_code(A, "C", "Lend2")
    if "C" in roles:
        chain.emit_chain_init(A, nzero=160)
        if stamps: A("s_memrealtime s[76:77]")
        chain.emit_chain_loop(A, full=1, steplog=stamps, **dict(CHAIN_CFG, **kw))
    else: A("s_branch Lend2")
    A.label("Lend")
    if stamps:
        A(f"""
        s_memrealtime s[74:75]
        s_waitcnt vmcnt(0) lgkmcnt(0)
        s_nop 15
        s_lshl_b32 s36, s2, 4
        s_add_u32 s36, s36, {WS_DBG}
        v_mov_b32 v0, s78
        v_mov_b32 v1, s76
        v_mov_b32 v2, s74
        v_mov_b32 v3, s18
        buffer_store_dwordx4 v[0:3], off, s[4:7], s36
        v_mov_b32 v4, s80
        v_mov_b32 v5, s82
        s_add_u32 s36, s36, 4096
        v_mov_b32 v6, s86
        buffer_store_dwordx3 v[4:6], off, s[4:7], s36
        """)
    A.label("Lend2")
    errs = check(A.lines)
    for e in errs: print("HAZARD", e, file=sys.stderr)
    return A.text()
def full_file(**kw):
    ref = open(f"cdna_kernels/{NAME}.s.ref").read() if len(sys.argv) < 0 else None
    hdr = open("header.txt").read()
    return hdr + f"""; @launch grid=(256,1,1) block=(256,1,1) lds=163840
.amdgcn_target "amdgcn-amd-amdhsa--gfx950"
.text
.globl {NAME}_kernel
.p2align 8
.type {NAME}_kernel,@function
{NAME}_kernel:
""" + body(**kw) + f"""s_endpgm
.section .rodata,"a"
.p2align 6
.amdhsa_kernel {NAME}_kernel
  .amdhsa_next_free_vgpr 512
  .amdhsa_next_free_sgpr 102
  .amdhsa_accum_offset 256
  .amdhsa_group_segment_fixed_size 0
  .amdhsa_kernarg_size 136
  .amdhsa_user_sgpr_count 2
  .amdhsa_user_sgpr_kernarg_segment_ptr 1
  .amdhsa_system_sgpr_workgroup_id_x 1
  .amdhsa_float_denorm_mode_32 3
.end_amdhsa_kernel
"""
if __name__ == "__main__":
    out = sys.argv[1] if len(sys.argv) > 1 else f"cdna_kernels/{NAME}.s"
    open(out, "w").write(full_file())
    print("written", out)
```

```python
from asmlib import *
from layout import *
import struct, math

def fbits(x): return struct.unpack("<I", struct.pack("<f", x))[0]

M0_, S0_ = 0, 32
AQ = [64, 68]; AK = [72, 76]; AV = [80, 84]; PA = 64
KX, VX = 88, 96
PB = 104
SELT, SELR = 120, 124
IDX, SMW, PST, PLD, MST, MOWN = 128, 129, 130, 131, 132, 133
L16 = 15
MX = [None, 134, 135, 136]
SMR, PUB, WL = 137, 138, 139
SENT = 140
SRD = 4
sH, sW = 10, 11
sA, sB, sCc, sAM, sKV, sStep, sSpin, sA2, sMH = 12, 13, 14, 15, 16, 17, 18, 19, 20
sEx1, sEx3, sEx3r = 22, 24, 60
sK14, sOdd2k = 62, 63
sC = 26
SRDW = 28
sF = 32
sT = 36
sOne = 58
sRdy = 21
sTM = 44
LDS_SC = 8192
LDS_W = 16384
WPW = 36864

LDS_CH = [("Q", 2), ("Q", 3), ("K", 2), ("K", 6), ("V", 6), ("V", 7), ("O", 1, 1), ("O", 2, 1), ("O", 3, 1)]
ALL_CH = [(m, i) for m in "QKV" for i in range(8)] + [("O", j, i) for j in range(4) for i in range(2)]
REG_CH = [c for c in ALL_CH if c not in LDS_CH]
ORDER = REG_CH + LDS_CH
def reg_of(ch, t):
    n = REG_CH.index(ch)*2 + t
    if n < 32: return a_(8*n, 8), ("a", 8*n)
    return v(144 + 8*(n-32), 8), ("v", 144 + 8*(n-32))
def lds_off(ch, t):
    return LDS_CH.index(ch)*4096 + t*2048

def sm(A, acc, afrag, b):
    A(f"v_smfmac_f32_16x16x64_bf16 {v(acc,4)}, {v(afrag,4)}, {b}, v{IDX}")

def emit_chain_init(A, dbg_team_off=DBG_TEAM, nzero=0):
    A(f"""
    s_load_dwordx2 s[{SRD}:{SRD+1}], s[0:1], {KA['ws']}
    s_load_dwordx2 s[8:9], s[0:1], {KA['dbg']}
    s_load_dwordx4 s[48:51], s[0:1], {KA['Wq']}
    s_load_dwordx4 s[52:55], s[0:1], {KA['Wv']}
    s_load_dwordx2 s[56:57], s[0:1], {KA['mem0']}
    v_lshrrev_b32 v1, 6, v0
    v_and_b32 v2, 63, v0
    v_readfirstlane_b32 s{sW}, v1
    v_and_b32 v3, 15, v2
    v_lshrrev_b32 v4, 4, v2
    v_lshlrev_b32 v{L16}, 4, v2
    s_mov_b32 s{SRD+2}, {WS_SIZE}
    s_mov_b32 s{SRD+3}, 0x00020000
    s_mov_b32 s{SRDW+2}, {4*MB}
    s_mov_b32 s{SRDW+3}, 0x00020000
    """)
    A(f"""
    v_mov_b32 v5, 0x4444
    v_mov_b32 v6, 0xeeee
    v_cmp_gt_u32 vcc, 8, v3
    s_nop 1
    v_cndmask_b32 v{IDX}, v6, v5, vcc
    """)
    A(f"""
    v_lshrrev_b32 v5, 1, v4
    v_lshlrev_b32 v5, 2, v5
    v_lshrrev_b32 v6, 3, v3
    v_lshl_add_u32 v5, v6, 1, v5
    v_and_b32 v6, 1, v4
    v_add_u32 v5, v5, v6
    s_lshl_b32 s{sT}, s{sW}, 3
    v_add_u32 v5, s{sT}, v5
    v_lshlrev_b32 v5, 12, v5
    v_and_b32 v8, 7, v3
    v_lshl_add_u32 v5, v8, 4, v5
    s_lshl_b32 s{sT}, s{sH}, 7
    v_add_u32 v{PST}, s{sT}, v5
    """)
    A(f"""
    s_lshr_b32 s{sT}, s{sW}, 1
    s_lshl_b32 s{sT}, s{sT}, 5
    s_add_u32 s{sT}, s{sT}, s{sH}
    s_lshl_b32 s{sT}, s{sT}, 12
    s_and_b32 s{sOdd2k}, s{sW}, 1
    s_lshl_b32 s{sOdd2k}, s{sOdd2k}, 11
    v_add_u32 v{PLD}, s{sT}, v{L16}
    """)
    A(f"""
    s_lshr_b32 s{sT}, s{sW}, 1
    s_lshl_b32 s{sT}, s{sT}, 2
    s_lshr_b32 s{sT+1}, s{sH}, 3
    s_add_u32 s{sT}, s{sT}, s{sT+1}
    s_lshl_b32 s{sT}, s{sT}, 10
    s_and_b32 s{sT+1}, s{sH}, 1
    s_lshl_b32 s{sT+1}, s{sT+1}, 6
    s_add_u32 s{sT}, s{sT}, s{sT+1}
    s_and_b32 s{sT+1}, s{sH}, 6
    s_lshl_b32 s{sT+1}, s{sT+1}, 7
    s_add_u32 s{sT}, s{sT}, s{sT+1}
    v_lshlrev_b32 v5, 3, v8
    v_lshrrev_b32 v7, 1, v4
    v_lshl_add_u32 v5, v7, 2, v5
    v_and_b32 v7, 1, v4
    v_lshl_add_u32 v5, v7, 7, v5
    s_add_u32 s{sT}, s{sT}, {PM_OFF}
    v_add_u32 v{MST}, s{sT}, v5
    """)
    A(f"""
    s_lshl_b32 s{sT}, s{sW}, 11
    v_add_u32 v{MOWN}, s{sT}, v{L16}
    v_xor_b32 v{MX[1]}, 2048, v{MOWN}
    v_xor_b32 v{MX[2]}, 4096, v{MOWN}
    v_xor_b32 v{MX[3]}, 6144, v{MOWN}
    """)
    A(f"""
    v_and_b32 v5, 31, v2
    v_lshlrev_b32 v{SMR}, 3, v5
    v_lshrrev_b32 v7, 3, v3
    s_lshl_b32 s{sT}, s{sW}, 11
    v_mov_b32 v{PUB}, 1
    v_xor_b32 v5, 32, v2
    v_lshlrev_b32 v5, 3, v5
    v_add_u32 v{SMW}, s{sT}, v5
    s_mul_i32 s{sT+2}, s{sW}, {WPW}
    s_add_u32 s{sT+2}, s{sT+2}, {LDS_W}
    v_add_u32 v{WL}, s{sT+2}, v{L16}
    v_mov_b32 v{SENT}, -1
    v_mov_b32 v{SENT+1}, -1
    v_mov_b32 v{SENT+2}, -1
    v_mov_b32 v{SENT+3}, -1
    """)
    A(f"""
    v_and_b32 v5, 1, v8
    v_lshlrev_b32 v5, 4, v5
    v_mov_b32 v6, 0x3f80
    v_lshlrev_b32 v5, v5, v6
    v_lshrrev_b32 v6, 1, v8
    """)
    for r in range(4):
        A(f"v_cmp_eq_u32 vcc, {r}, v6\ns_nop 1\nv_cndmask_b32 v{SELR+r}, 0, v5, vcc")
    A(f"""
    v_lshrrev_b32 v6, 1, v3
    v_and_b32 v6, 1, v6
    v_lshl_add_u32 v6, v7, 1, v6
    v_lshrrev_b32 v9, 2, v3
    v_xor_b32 v9, v9, v4
    v_and_b32 v9, 1, v9
    v_lshl_add_u32 v6, v9, 3, v6
    """)
    for r in range(4):
        A(f"v_cmp_eq_u32 vcc, {r}, v6\ns_nop 1\nv_cndmask_b32 v{SELT+r}, 0, v5, vcc")
    A(f"""
    s_mov_b32 s{sEx1}, 0x00ff00ff
    s_mov_b32 s{sEx1+1}, 0x00ff00ff
    s_lshl_b32 s{sT}, s{sH}, 2
    s_add_u32 s{sT}, s{sT}, s{sW}
    s_cmp_eq_u32 s{sT}, 1
    s_cselect_b64 s[{sEx3r}:{sEx3r+1}], 1, 0
    s_bitcmp1_b32 s{sW}, 0
    s_cselect_b64 s[{sEx3r}:{sEx3r+1}], s[{sEx3r}:{sEx3r+1}], s[{sEx1}:{sEx1+1}]
    s_mov_b64 s[{sEx3}:{sEx3+1}], 0
    s_mul_i32 s{sK14}, s{sW}, 14336
    s_mov_b32 s{sC}, {fbits(128**-0.5 * math.log2(math.e))}
    s_mov_b32 s{sOne}, 0x3f803f80
    s_mov_b32 s{sOne+1}, 0x3e803e80
    s_mov_b32 s{sA}, {WS_P}
    s_mov_b32 s{sB}, {WS_P + RS}
    s_mov_b32 s{sCc}, {WS_P + 2*RS}
    s_mov_b32 s{sMH}, {WS_MH - PM_OFF}
    s_lshl_b32 s{sKV}, s{sH}, 3
    s_add_u32 s{sKV}, s{sKV}, s{sW}
    s_lshl_b32 s{sKV}, s{sKV}, 11
    s_mov_b32 s{sStep}, 0
    s_mov_b32 s{sSpin}, {SPIN}
    """)
    for j in range(4):
        A(f"""
        s_xor_b32 s{sT}, s{sW}, {j}
        s_and_b32 s{sT+1}, s{sT}, 1
        s_lshl_b32 s{sT+1}, s{sT+1}, 2
        s_lshr_b32 s{sT}, s{sT}, 1
        s_add_u32 s{sT}, s{sT}, s{sT+1}
        s_lshl_b32 s{sF+j}, s{sT}, 19
        """)
    A(f"""
    v_lshrrev_b32 v5, 1, v4
    v_and_b32 v7, 1, v4
    v_lshl_add_u32 v6, v5, 3, v7
    v_lshlrev_b32 v6, 13, v6
    v_lshlrev_b32 v8, 2, v4
    v_xor_b32 v8, v8, v3
    v_lshl_add_u32 v6, v8, 4, v6
    s_lshl_b32 s{sT}, s{sH}, 8
    v_add_u32 v0, s{sT}, v6
    v_lshrrev_b32 v6, 3, v2
    v_lshlrev_b32 v6, 10, v6
    v_and_b32 v8, 7, v2
    v_lshl_add_u32 v6, v8, 4, v6
    s_lshl_b32 s{sT}, s{sH}, 17
    s_lshl_b32 s{sT+1}, s{sW}, 8
    s_add_u32 s{sT}, s{sT}, s{sT+1}
    v_add_u32 v1, s{sT}, v6
    v_lshrrev_b32 v9, 2, v3
    v_and_b32 v6, 3, v3
    v_lshl_add_u32 v12, v4, 3, v9
    v_lshlrev_b32 v12, 8, v12
    v_xor_b32 v10, s{sW}, v9
    v_lshl_add_u32 v10, v10, 2, v6
    v_lshl_add_u32 v12, v10, 4, v12
    v_lshrrev_b32 v8, 3, v3
    v_and_b32 v9, 1, v9
    v_lshlrev_b32 v13, 3, v5
    v_lshl_add_u32 v13, v7, 2, v13
    v_add_u32 v13, v13, v9
    v_lshlrev_b32 v13, 7, v13
    v_lshl_add_u32 v13, v8, 6, v13
    v_lshl_add_u32 v13, v6, 4, v13
    v_and_b32 v14, 7, v3
    v_lshlrev_b32 v14, 10, v14
    v_lshl_add_u32 v14, v4, 5, v14
    v_lshl_add_u32 v14, v8, 4, v14
    s_lshr_b32 s{sT}, s{sF}, 12
    v_add_u32 v4, s{sT}, v14
    v_mov_b32 v2, v12
    v_mov_b32 v3, v13
    s_lshl_b32 s{sT+2}, s{sW}, 13
    s_lshl_b32 s{sT+3}, s{sW}, 12
    s_waitcnt lgkmcnt(0)
    """)
    srw = f"s[{SRDW}:{SRDW+3}]"
    base = {"Q": 48, "K": 50, "V": 52, "O": 54}
    HELD = {ch: 8 + 16*k for k, ch in enumerate(LDS_CH[:7])}
    STG = [(m, ii, hf) for m in "QKV" for ii in range(2) for hf in range(2)] + [("O", 0, 0), ("O", 0, 2), ("O", 1, 0)]
    NS = len(STG)
    cur = [None]
    def setm(m):
        if cur[0] != m:
            cur[0] = m
            A(f"s_mov_b32 s{SRDW}, s{base[m]}\ns_mov_b32 s{SRDW+1}, s{base[m]+1}")
    def ochunk(j, i, sreg, off):
        A(f"s_xor_b32 s{sT}, s{sW}, {j}\ns_lshl_b32 s{sT}, s{sT}, 15")
        for q in range(4):
            A(f"""
            s_add_u32 m0, s{sreg}, {off + q*1024}
            s_add_u32 s{sT+1}, s{sT}, {q*8192 + i*128}
            buffer_load_dwordx4 v1, {srw}, s{sT+1} offen lds
            """)
    def issue(n):
        st = STG[n]; buf = LDS_W + (n % 4)*32768
        setm(st[0])
        if st[0] == "O":
            for jj in range(2): ochunk(st[2] + jj, st[1], sT+2, buf + jj*4096)
        else:
            for q in range(8):
                gb = q >> 1
                d = 128*st[1] + 32*st[2] + 16*(gb >> 1) + 4*(gb & 1) + 2*(q & 1)
                A(f"""
                s_add_u32 m0, s{sT+2}, {buf + q*1024}
                s_add_u32 s{sT+1}, s{sF}, {d*8192}
                buffer_load_dwordx4 v0, {srw}, s{sT+1} offen lds
                """)
    def dest(ch, t):
        if ch in HELD: return "v", HELD[ch] + 8*t
        return reg_of(ch, t)[1]
    def oread(ch, kind_r0, ad, off):
        for t in range(2):
            kind, r0 = kind_r0(t)
            for u in range(4):
                A(f"ds_read_b64_tr_b16 {R(kind, r0 + 2*u, 2)}, v{ad} offset:{off + (16*(u >> 1) + 2*(u & 1))*128 + 8*t}")
    for n in range(3): issue(n)
    for so in (sA, sB, sCc):
        A(f"s_add_u32 s{sT}, s{so}, s{sOdd2k}")
        A(f"buffer_store_dwordx4 {v(SENT,4)}, v{PLD}, s[{SRD}:{SRD+3}], s{sT} offen")
        A(f"buffer_store_dwordx4 {v(SENT,4)}, v{PLD}, s[{SRD}:{SRD+3}], s{sT} offen offset:1024")
        A(f"buffer_store_dword v{SENT}, v{MST}, s[{SRD}:{SRD+3}], s{so} offen")
    A(f"""
    v_mbcnt_lo_u32_b32 v5, -1, 0
    v_mbcnt_hi_u32_b32 v5, -1, v5
    v_mul_u32_u24 v5, {MHS}, v5
    v_mov_b32 v6, 0
    s_cmp_eq_u64 s[{sEx3r}:{sEx3r+1}], 1
    s_cselect_b64 exec, -1, 0
    v_mov_b32 v{MST}, {PM_OFF + 8192}
    s_mov_b32 s{sT}, {WS_MH + MHS + 8192}
    buffer_store_dword v6, v5, s[{SRD}:{SRD+3}], s{sT} offen sc1
    s_mov_b64 exec, -1
    """)
    for n in range(NS):
        st = STG[n]; buf = LDS_W + (n % 4)*32768
        younger = 8*(min(n + 3, NS + 1) - n - 1) + (10 if n < 3 else 0)
        A(f"s_waitcnt vmcnt({younger})")
        A("s_barrier")
        if n == 3:
            L = A.newlabel("Lann")
            A(f"""
            s_cmp_lg_u32 s{sW}, 0
            s_cbranch_scc1 {L}
            v_mov_b32 v5, {dbg_team_off}
            v_mov_b32 v6, 1
            s_mov_b64 exec, 1
            global_atomic_add v5, v6, s[8:9]
            s_mov_b64 exec, -1
            """)
            A.label(L)
        if n + 3 < NS: issue(n + 3)
        if n + 3 == NS:
            ochunk(2, 1, sT+3, 147456); ochunk(3, 1, sT+3, 0)
        if st[0] == "O":
            A(f"s_add_u32 s{sT}, s{sT+2}, {buf}\nv_add_u32 v5, s{sT}, v3")
            for jj in range(2):
                ch = ("O", st[2] + jj, st[1])
                oread(ch, lambda t: dest(ch, t), 5, jj*4096)
                A("s_waitcnt lgkmcnt(0)")
        else:
            for j in range(4):
                A(f"""
                s_xor_b32 s{sT}, s{sW}, {j}
                s_lshl_b32 s{sT}, s{sT}, 13
                s_add_u32 s{sT}, s{sT}, {buf}
                v_add_u32 v{5 + (j & 1)}, s{sT}, v2
                """)
                ch = (st[0], 2*j + st[1])
                for t in range(2):
                    kind, r0 = dest(ch, t)
                    for u in range(2):
                        A(f"ds_read_b64_tr_b16 {R(kind, r0 + 4*st[2] + 2*u, 2)}, v{5 + (j & 1)} offset:{u*1024 + 8*t}")
                if j == 1: A("s_waitcnt lgkmcnt(0)")
            A("s_waitcnt lgkmcnt(0)")
    def wr(slot, r0):
        for k in range(4): A(f"ds_write_b128 v{WL}, {v(r0 + 4*k, 4)} offset:{slot*4096 + 1024*k}")
    A("s_barrier")
    wr(0, 8); wr(1, 24)
    A(f"""
    s_add_u32 s{sT}, s{sT+3}, 147456
    v_add_u32 v5, s{sT}, v3
    v_add_u32 v6, s{sT+3}, v3
    s_waitcnt vmcnt(0) lgkmcnt(0)
    """)
    oread(None, lambda t: ("v", 8 + 8*t), 5, 0)
    A("s_waitcnt lgkmcnt(0)")
    oread(None, lambda t: ("v", 24 + 8*t), 6, 0)
    A("s_waitcnt lgkmcnt(0)")
    wr(2, 40); wr(3, 56); wr(4, 72)
    A("s_barrier\ns_waitcnt lgkmcnt(0)")
    wr(5, 88); wr(6, 104); wr(7, 8)
    A("s_waitcnt lgkmcnt(0)")
    wr(8, 24)
    A("v_mov_b32 v14, v4\ns_waitcnt lgkmcnt(0)")
    L = A.newlabel("Lteam")
    A(f"v_mov_b32 v5, {dbg_team_off}")
    A.label(L)
    A(f"""
    global_load_dwordx3 v[6:8], v5, s[8:9] sc1
    s_sub_u32 s{sSpin}, s{sSpin}, 1
    s_cbranch_scc1 {L}x
    s_waitcnt vmcnt(0)
    v_readfirstlane_b32 s{sT}, v6
    v_readfirstlane_b32 s{sT+1}, v8
    s_add_u32 s{sT}, s{sT}, s{sT+1}
    s_cmp_lt_u32 s{sT}, {32 + nzero}
    s_cbranch_scc1 {L}
    """)
    A.label(L + "x")
    A(f"s_max_i32 s{sSpin}, s{sSpin}, 0")


def ldsw_reads(ch, dst):
    return [f"ds_read_b128 {v(dst + 4*k, 4)}, v{WL} offset:{lds_off(ch, 0) + 1024*k}" for k in range(4)]

MARKS = []
STREAM = {("Q", 2): S0_, ("Q", 3): S0_ + 16, ("K", 2): PB, ("K", 6): PB, ("V", 6): S0_, ("V", 7): S0_ + 16,
          ("O", 1, 1): S0_, ("O", 2, 1): S0_ + 16, ("O", 3, 1): M0_}

def emit_chain_loop(A, nsteps=63, diag=False, jfirst=32, gap1=28, pre2=0, gap2=24, nvown=4, barpos=6, nopub=0, kvfix=0, rpos=2, rdel=0,
                    trace=None, estore=5, timing=0, full=0, steplog=0, npre=0, kvpf=1):
    srd = f"s[{SRD}:{SRD+3}]"
    def stamp(k):
        MARKS.append(k)
        if diag and diag[0] == k: A(f"s_memtime s[{sTM}:{sTM+1}]")
        if diag and diag[1] == k: A(f"s_memtime s[{sTM+2}:{sTM+3}]")
        if trace and k in trace:
            r = 72 + 2*trace.index(k)
            A(f"s_memrealtime s[{r}:{r+1}]")
    def lg(n): A(f"s_waitcnt lgkmcnt({n})")
    del MARKS[:]
    rd = lambda ch: ldsw_reads(ch, STREAM[ch])
    cv = lambda d, a, b: A(f"v_cvt_pk_bf16_f32 v{d}, v{a}, v{b}")
    pk = lambda op, d, a, b: A(f"v_pk_{op}_f32 {v(d,2)}, {v(a,2)}, {v(b,2)}")
    def junk():
        for x in rd(("Q", 2)) + rd(("Q", 3)) + rd(("K", 2)): A(x)
        A(f"v_mov_b32 v{PA}, 0\nv_mov_b32 v{PA+1}, 0")
        for k in range(2, 24, 2): A(f"v_pk_mov_b32 {v(PA+k,2)}, {v(PA,2)}, {v(PA,2)} op_sel:[0,1]")
    def rotate():
        A(f"""
        s_mov_b32 s{sT}, s{sA}
        s_mov_b32 s{sA}, s{sB}
        s_mov_b32 s{sB}, s{sCc}
        s_mov_b32 s{sCc}, s{sT}
        """)
    def mload(r):
        A(f"""
        buffer_load_dwordx4 {v(r,4)}, v{MOWN}, {srd}, s{sAM} offen sc1
        buffer_load_dwordx4 {v(r+4,4)}, v{MOWN}, {srd}, s{sAM} offen offset:1024 sc1
        """)
    def mcheck(r, t0, t1):
        A(f"""
        v_max3_u32 v{t0}, v{r}, v{r+1}, v{r+2}
        v_max3_u32 v{t1}, v{r+3}, v{r+4}, v{r+5}
        v_max3_u32 v{t0}, v{t0}, v{r+6}, v{r+7}
        v_max_u32 v{t0}, v{t0}, v{t1}
        v_cmp_eq_u32 vcc, -1, v{t0}
        """)
    def kvpoll(tag):
        A.label(f"Lkv{tag}")
        A(f"""
        v_mbcnt_lo_u32_b32 v0, -1, 0
        s_lshl_b32 s{sT}, s{sH}, 7
        v_and_b32 v0, 7, v0
        s_add_u32 s{sT}, s{sT}, {WS_KVF}
        v_lshlrev_b32 v0, 2, v0
        buffer_load_dword v1, v0, {srd}, s{sT} offen sc1
        s_waitcnt vmcnt(0)
        v_readlane_b32 s{sRdy}, v1, 0
        v_readlane_b32 s{sT}, v1, 1
        v_readlane_b32 s{sT+1}, v1, 2
        s_min_u32 s{sRdy}, s{sRdy}, s{sT}
        s_min_u32 s{sRdy}, s{sRdy}, s{sT+1}
        v_readlane_b32 s{sT}, v1, 3
        v_readlane_b32 s{sT+1}, v1, 4
        s_min_u32 s{sRdy}, s{sRdy}, s{sT}
        s_min_u32 s{sRdy}, s{sRdy}, s{sT+1}
        s_mul_i32 s{sRdy}, s{sRdy}, 5
        s_sub_u32 s{sRdy}, s{sRdy}, 1
        s_cmp_gt_i32 s{sRdy}, s{sStep}
        s_cbranch_scc1 Lkv{tag}ret
        s_sleep 2
        s_sub_u32 s{sSpin}, s{sSpin}, 1
        s_cbranch_scc0 Lkv{tag}
        s_mov_b32 s{sSpin}, 0
        s_mov_b32 s{sRdy}, 100
        """)
    def pub_all():
        A(f"""
        s_add_u32 s{sT}, s{sMH}, {PM_OFF}
        buffer_store_dwordx4 {v(0,4)}, v{MOWN}, {srd}, s{sT} offen sc1
        buffer_store_dwordx4 {v(4,4)}, v{MOWN}, {srd}, s{sT} offen offset:1024 sc1
        """)
    if diag: A("s_mov_b32 s70, 0")
    if full:
        kvpoll("A"); A.label("LkvAret")
        if steplog: A("s_memrealtime s[86:87]")
    A(f"""
    global_load_dwordx4 {v(0,4)}, v14, s[56:57]
    global_load_dwordx4 {v(4,4)}, v14, s[56:57] offset:256
    buffer_load_dwordx4 {v(KX,4)}, v{MOWN}, {srd}, s{sKV} offen sc1
    buffer_load_dwordx4 {v(KX+4,4)}, v{MOWN}, {srd}, s{sKV} offen offset:1024 sc1
    """)
    junk()
    A(f"""
    s_mov_b32 m0, {LDS_SC + 1536}
    s_waitcnt vmcnt(0) lgkmcnt(0)
    ds_write_b128 v{MOWN}, {v(0,4)}
    s_cmp_lg_u32 s{sH}, 0
    s_cbranch_scc1 Lstep
    """)
    pub_all()
    A("s_branch Lstep")
    A.label("Lp2b")
    mload(0)
    A(f"""
    s_sub_u32 s{sSpin}, s{sSpin}, 1
    s_cbranch_scc1 Lp2giveup
    s_waitcnt vmcnt(2)
    """)
    mcheck(VX, 8, 9)
    A(f"""
    ds_write_b128 v{MOWN}, {v(VX,4)}
    s_cbranch_vccz Lp2bok
    """)
    mload(VX)
    A("s_branch Lp2a")
    A(".p2align 6")
    A.label("Lp2")
    A("s_barrier")
    A.nop(pre2)
    if trace: stamp("p2_first")
    mload(0)
    rotate()
    A.nop(gap2 - 4)
    mload(VX)
    A.label("Lp2a")
    A("s_waitcnt vmcnt(2)")
    mcheck(0, 8, 9)
    A(f"""
    ds_write_b128 v{MOWN}, {v(0,4)}
    s_cbranch_vccnz Lp2b
    """)
    A.label("Lstep")
    stamp("m_in")
    def B(ch, t):
        if ch in STREAM: return v(STREAM[ch] + 8*t, 8)
        return reg_of(ch, t)[0]
    def QK(i): return [(AQ[0], 4*i, B(("Q", i), 0)), (AQ[1], 4*i, B(("Q", i), 1)), (AK[0], 4*i, B(("K", i), 0)), (AK[1], 4*i, B(("K", i), 1))]
    def VV(i): return [(AV[0], 4*i, B(("V", i), 0)), (AV[1], 4*i, B(("V", i), 1))]
    vown = VV(0) + VV(1)
    seq = QK(0) + QK(1) + vown[:nvown]
    mreads = [f"ds_read_b128 {v(8*j + 4*ii, 4)}, v{MX[j]} offset:{1024*ii}" for j in (1, 2, 3) for ii in range(2)]
    fill = {k: [] for k in range(40)}
    fill[0] += [f"ds_write_b128 v{MOWN}, {v(4,4)} offset:1024"]
    fill[1] += [f"s_cmp_ge_u32 s{sStep}, {nsteps}", "s_cbranch_scc1 Lexit"]
    fill[2] += [f"s_add_u32 s{sA2}, s{sA}, 131072", f"s_add_u32 s{sAM}, s{sA}, {PM_OFF}"]
    fill[barpos] += ["s_waitcnt lgkmcnt(0)", "s_barrier", mreads[0]]
    nA = len(seq)
    for k in range(1, 6): fill[min(barpos + k, nA - 1)] += [mreads[k]]
    for k, x in enumerate(seq):
        sm(A, *x)
        for y in fill[k]: A(y)
    stamp("A_end")
    if trace: A(f"s_cmp_eq_u32 s{sStep}, 31\ns_cbranch_scc1 Lexit2")
    strm = {3: rd(("K", 6)), 4: rd(("V", 6)), 5: rd(("V", 7))}
    waits = {2: 5, 3: 4, 4: 7, 5: 10, 6: 8}
    fb = {(i, k): [] for i in range(2, 8) for k in range(4)}
    for i in strm:
        for k in range(4): fb[i, k] += [strm[i][k]]
    kstep = 0 if kvfix else 32*4*4096
    fb[2, 0] += [f"buffer_load_dwordx4 {v(VX,4)}, v{MOWN}, {srd}, s{sKV} offen offset:2048 sc1"]
    fb[2, 2] += [f"buffer_load_dwordx4 {v(VX+4,4)}, v{MOWN}, {srd}, s{sKV} offen offset:3072 sc1", f"s_add_u32 s{sKV}, s{sKV}, {kstep}"]
    if not nopub:
        fb[2, 1] += [f"s_mov_b64 exec, s[{sEx3}:{sEx3+1}]", f"buffer_store_dword v{PUB}, v{MST}, {srd}, s{sMH} offen sc1", "s_mov_b64 exec, -1"]
    if kvpf:
        fb[2, 3] += [f"s_sub_u32 s{sT}, s{sKV}, s{sK14}", "s_mov_b32 exec_hi, 0", f"v_lshlrev_b32 v{PUB}, 3, v{MOWN}",
                     f"buffer_load_dword v{PUB}, {srd}, s{sT} offen sc1 lds", "s_mov_b32 exec_hi, -1"]
    fb[6, 1] += [f"s_mov_b64 s[{sEx3}:{sEx3+1}], s[{sEx3r}:{sEx3r+1}]", f"s_add_u32 s{sMH}, s{sMH}, {MHS}"]
    if timing: fb[7, 0] += [f"s_cmp_eq_u32 s{sStep}, 3", "s_cbranch_scc1 Ltm", "Ltmret:"]
    if steplog: fb[7, 0] += [f"s_cmp_eq_u64 s[{sEx3r}:{sEx3r+1}], 1", "s_cbranch_scc1 Llog", "Llogret:"]
    if rpos == 0:
        fb[6, 0] += [f"s_add_u32 s{sT}, s{sCc}, s{sOdd2k}", f"buffer_store_dwordx4 {v(SENT,4)}, v{PLD}, {srd}, s{sT} offen"]
        fb[7, 2] += [f"buffer_store_dwordx4 {v(SENT,4)}, v{PLD}, {srd}, s{sT} offen offset:1024"]
    for i in range(2, 8):
        if i in waits: A(f"s_waitcnt lgkmcnt({waits[i]})")
        if i == 2: stamp("B_start")
        for k, x in enumerate(QK(i)):
            sm(A, *x)
            for y in fb[i, k]: A(y)
    stamp("QK_end")
    vq = VV(6) + VV(7) + VV(4) + VV(5) + VV(2) + VV(3) + vown[nvown:]
    def vf(*after):
        sm(A, *vq.pop(0))
        for y in after: A(y)
    cv(PB+0, AQ[0], AQ[0]+1); cv(PB+1, AQ[0]+2, AQ[0]+3); cv(PB+4, AQ[1], AQ[1]+1); cv(PB+5, AQ[1]+2, AQ[1]+3)
    cv(PB+2, AK[0], AK[0]+1); cv(PB+3, AK[0]+2, AK[0]+3); cv(PB+6, AK[1], AK[1]+1); cv(PB+7, AK[1]+2, AK[1]+3)
    A(f"v_mfma_f32_16x16x32_bf16 {v(PA,4)}, {v(PB,4)}, {v(SELT,4)}, 0")
    A("s_waitcnt lgkmcnt(0)")
    A(f"v_mfma_f32_16x16x32_bf16 {v(PA+4,4)}, {v(PB+4,4)}, {v(SELT,4)}, 0")
    vf()
    T = PB + 8
    stamp("T_mfma")
    cv(T, PA, PA+1); cv(T+1, PA+2, PA+3); cv(T+2, PA+4, PA+5); cv(T+3, PA+6, PA+7)
    A.nop(2)
    wo = rd(("O", 1, 1)) + rd(("O", 2, 1))
    nw = 0
    def W():
        nonlocal nw
        nw += 1
        return wo[nw - 1] if nw <= 8 else ""
    A(f"v_mfma_f32_16x16x32_bf16 {v(PA,4)}, {v(KX,4)}, {v(T,4)}, 0")
    if npre >= 1: A(W())
    A(f"v_mfma_f32_16x16x32_bf16 {v(PA+4,4)}, {v(KX+4,4)}, {v(T,4)}, 0")
    if npre >= 2: A(W())
    A(f"v_mfma_f32_16x16x32_bf16 {v(PA+8,4)}, {v(T,4)}, {v(T,4)}, 0")
    stamp("S_mfma")
    kl = [f"buffer_load_dwordx4 {v(KX,4)}, v{MOWN}, {srd}, s{sKV} offen sc1", f"buffer_load_dwordx4 {v(KX+4,4)}, v{MOWN}, {srd}, s{sKV} offen offset:1024 sc1"]
    A.nop(4)
    for g in range(4): A(f"v_mov_b32_dpp v{PA+g}, v{PA+4+g} row_ror:8 row_mask:0xf bank_mask:0xc")
    A(f"ds_write_b128 v{MOWN}, {v(PA,4)} offset:{LDS_SC}")
    for g in range(2): A(f"v_mov_b32_dpp v{PA+8+g}, v{PA+10+g} row_ror:8 row_mask:0xf bank_mask:0xc")
    A(f"ds_write_b64 v{SMW}, {v(PA+8,2)} offset:{LDS_SC+1024}")
    stamp("S_written")
    n0 = nw
    vf(kl[0], W() if npre >= 3 else ""); vf(kl[1], W() if npre >= 4 else ""); vf(W() if npre >= 5 else "")
    stamp("preB2")
    lg(nw - n0)
    A("s_barrier")
    stamp("B2")
    xr = [f"ds_read_b128 {v(PA+4*j,4)}, v{MX[j]} offset:{LDS_SC}" for j in (1, 2, 3)]
    mr = [f"ds_read_b64 {v(PB+2*src,2)}, v{SMR} offset:{LDS_SC+2048*src+1024}" for src in range(4)]
    WA = [16, 20, 24, 28]
    A(xr[0]); A(mr[0]); A(mr[1])
    vf(xr[1], mr[2]); vf(xr[2], mr[3])
    n0 = nw
    zs = [24, 25, 26, 27, 28, 29, 30, 31]
    left = len(vq)
    while vq:
        z = f"v_mov_b32 v{zs.pop(0)}, 0" if zs else ""
        if len(vq) <= 5 - n0 and nw < 5: vf(W(), z)
        else: vf(z)
    stamp("V_end")
    lg(nw - n0)
    stamp("S_read")
    pk("add", PA, PA, PA+4); pk("add", PA+2, PA+2, PA+6); pk("add", PB, PB, PB+2)
    pk("add", PA+8, PA+8, PA+12); pk("add", PA+10, PA+10, PA+14); pk("add", PB+4, PB+4, PB+6)
    pk("add", PA, PA, PA+8); pk("add", PA+2, PA+2, PA+10); pk("add", PB, PB, PB+4)
    stamp("adds")
    X, Y = PB+2, PB+3
    assert len(zs) % 2 == 0
    zm = [f"v_pk_mov_b32 {v(r,2)}, v[24:25], v[24:25] op_sel:[0,1]" for r in zs[::2] + [16, 18, 20, 22]]
    ON, SU = PA + 4, PA + 8
    VM = PB + 12
    A(f"""
    v_max3_f32 v{X}, v{PA}, v{PA+1}, v{PA+2}
    v_max3_f32 v{Y}, v{PA+3}, v{PB}, v{PB+1}
    v_max_f32 v{X}, v{X}, v{Y}
    """)
    cv(VM, AV[0], AV[0]+1); cv(VM+1, AV[0]+2, AV[0]+3)
    A(f"""
    v_max_f32_dpp v{Y}, v{X}, v{X} row_ror:8 row_mask:0xf bank_mask:0xf
    v_max_f32_dpp v{X}, v{X}, v{X} row_ror:8 row_mask:0xf bank_mask:0xf
    """)
    cv(VM+2, AV[1], AV[1]+1); cv(VM+3, AV[1]+2, AV[1]+3)
    A(f"""
    v_permlane16_swap_b32 v{X}, v{Y}
    v_max_f32 v{PB+4}, v{X}, v{Y}
    v_max_f32 v{PB+5}, v{X}, v{Y}
    v_pk_mov_b32 {v(ON,2)}, s[{sOne}:{sOne+1}], s[{sOne}:{sOne+1}] op_sel:[0,0]
    v_pk_mov_b32 {v(ON+2,2)}, s[{sOne}:{sOne+1}], s[{sOne}:{sOne+1}] op_sel:[1,1]
    v_permlane32_swap_b32 v{PB+4}, v{PB+5}
    v_max_f32 v{X}, v{PB+4}, v{PB+5}
    v_mul_f32 v{X}, s{sC}, v{X}
    """)
    stamp("max")
    for r in (PA, PA+2, PB):
        A(f"v_pk_fma_f32 {v(r,2)}, {v(r,2)}, s[{sC}:{sC+1}], {v(X,2)} op_sel_hi:[1,0,0] neg_lo:[0,0,1] neg_hi:[0,0,1]")
    for r in [PB, PB+1, PA, PA+1, PA+2, PA+3]: A(f"v_exp_f32 v{r}, v{r}")
    stamp("exp")
    PX, PM = PB + 4, PB + 8
    cv(PM, PB, PB+1); cv(PM+1, PB, PB+1); cv(PX+2, PA, PA+1); cv(PX+3, PA+2, PA+3); cv(PX, PA, PA+1); cv(PX+1, PA+2, PA+3)
    A(f"""
    v_mfma_f32_16x16x32_bf16 {v(SU,4)}, {v(ON,4)}, {v(PX+2,4)}, 0
    s_waitcnt vmcnt({2 + (1 if kvpf else 0) + (2 if rpos == 0 else 0)})
    v_mov_b32_dpp v{PX+2}, v{PX+2} row_ror:8 row_mask:0xf bank_mask:0x3
    v_mov_b32_dpp v{PX+3}, v{PX+3} row_ror:8 row_mask:0xf bank_mask:0x3
    v_mov_b32_dpp v{PX}, v{PX} row_ror:8 row_mask:0xf bank_mask:0xc
    v_mov_b32_dpp v{PX+1}, v{PX+1} row_ror:8 row_mask:0xf bank_mask:0xc
    v_mov_b32_dpp v{PM}, v{PM} row_ror:8 row_mask:0xf bank_mask:0xc
    v_mov_b32_dpp v{PM+1}, v{PM+1} row_ror:8 row_mask:0xf bank_mask:0x3
    """)
    stamp("Pcvt")
    A(f"""
    v_mfma_f32_16x16x32_bf16 {v(AV[0],4)}, {v(VX,4)}, {v(PX,4)}, 0
    {W()}
    v_add_f32_dpp v{X}, v{SU}, v{SU} row_ror:8 row_mask:0xf bank_mask:0xf
    v_mfma_f32_16x16x32_bf16 {v(AV[1],4)}, {v(VX+4,4)}, {v(PX,4)}, 0
    {W()}
    v_rcp_f32 v{X}, v{X}
    v_mfma_f32_16x16x16_bf16 {v(AV[0],4)}, {v(VM,2)}, {v(PM,2)}, {v(AV[0],4)}
    {W()}
    v_mfma_f32_16x16x16_bf16 {v(AV[1],4)}, {v(VM+2,2)}, {v(PM,2)}, {v(AV[1],4)}
    s_nop 3
    """)
    assert nw >= 8
    OF = [PB+4, VX, VX+4, PB+8]
    for k in range(2):
        A(f"v_pk_mul_f32 {v(AV[0]+2*k,2)}, {v(AV[0]+2*k,2)}, {v(X,2)} op_sel_hi:[1,0]")
    cv(OF[0], AV[0], AV[0]+1); cv(OF[0]+1, AV[0]+2, AV[0]+3)
    stamp("rcp")
    for k in range(2):
        A(f"v_pk_mul_f32 {v(AV[1]+2*k,2)}, {v(AV[1]+2*k,2)}, {v(X,2)} op_sel_hi:[1,0]")
    cv(OF[0]+2, AV[1], AV[1]+1); cv(OF[0]+3, AV[1]+2, AV[1]+3)
    A(f"ds_write_b128 v{MOWN}, {v(OF[0],4)}")
    stamp("o_written")
    for z in zm: A(z)
    def OO(j, i): return [(WA[2*i+t], OF[j], B(("O", j, i), t)) for t in range(2)]
    sm(A, *OO(0, 1)[0])
    A("s_waitcnt lgkmcnt(0)")
    A("s_barrier")
    stamp("B3")
    for j in (1, 2, 3): A(f"ds_read_b128 {v(OF[j],4)}, v{MX[j]}")
    wo3 = rd(("O", 3, 1))
    sm(A, *OO(0, 1)[1]); A(wo3[0])
    sm(A, *OO(0, 0)[0]); A(wo3[1])
    sm(A, *OO(0, 0)[1])
    for j in (1, 2, 3):
        lg([0, 4, 5, 4][j])
        if j == 1: stamp("o_read")
        for t, x in enumerate(OO(j, 0)):
            sm(A, *x)
            if j == 1: A(wo3[2 + t])
    stamp("early_end")
    PK0, PK1 = AV[0], AV[1]
    late = OO(1, 1) + OO(2, 1) + OO(3, 1)
    est = f"buffer_store_dwordx4 {v(PK0,4)}, v{PST}, {srd}, s{sA} offen"
    c0 = [f"v_cvt_pk_bf16_f32 v{PK0+g}, v{WA[0]+g}, v{WA[1]+g}" for g in range(4)]
    sched = {5: {1: c0[:1], 2: c0[1:2], 3: c0[2:3], 4: c0[3:4], 5: [est]},
             4: {1: c0[:1], 2: c0[1:3], 3: c0[3:4], 4: [est]},
             3: {1: c0[:2], 2: c0[2:4], 3: [est]},
             2: {1: c0, 2: [est]}}[estore]
    for k in range(6):
        sm(A, *late[k])
        if k == 3: A("s_waitcnt lgkmcnt(0)")
        for y in sched.get(k, []): A(y)
    stamp("late_end")
    A(f"""
    s_add_u32 s{sStep}, s{sStep}, 1
    s_bitcmp1_b32 s{sW}, 0
    s_nop {4 if estore == 5 else 5}
    """)
    for g in range(4): cv(PK1+g, WA[2]+g, WA[3]+g)
    A(f"buffer_store_dwordx4 {v(PK1,4)}, v{PST}, {srd}, s{sA2} offen")
    stamp("stored")
    A("s_cbranch_scc1 Lodd")
    RA = VX
    def pload(r):
        for k in range(4): A(f"buffer_load_dwordx4 {v(r+4*k,4)}, v{PLD}, {srd}, s{sA} offen offset:{1024*k} sc1")
    def pproc(r, base):
        for k in range(4):
            A(f"s_waitcnt vmcnt({base + 3 - k})")
            A(f"v_mfma_f32_16x16x32_bf16 {v(RA,4)}, {v(r+4*k,4)}, {v(SELR,4)}, {v(RA,4) if k else 0}")
        if trace: stamp("p1_data")
        A(f"""
        s_nop 7
        v_permlane32_swap_b32 v{RA}, v{RA+2}
        v_permlane32_swap_b32 v{RA+1}, v{RA+3}
        s_mov_b64 exec, s[{sEx1}:{sEx1+1}]
        v_pk_add_f32 {v(RA,2)}, {v(RA,2)}, {v(RA+2,2)}
        v_cvt_pk_bf16_f32 v{PUB}, v{RA}, v{RA+1}
        v_cmpx_o_f32 vcc, v{RA}, v{RA+1}
        buffer_store_dword v{PUB}, v{MST}, {srd}, s{sA} offen
        s_cmp_eq_u64 vcc, s[{sEx1}:{sEx1+1}]
        s_mov_b64 exec, -1
        """)
    dacc = f"s_waitcnt lgkmcnt(0)\ns_sub_u32 s{sT+2}, s{sTM+2}, s{sTM}\ns_add_u32 s70, s70, s{sT+2}"
    junk()
    A(f"""
    s_mov_b64 exec, s[{sEx1}:{sEx1+1}]
    buffer_store_dword v{SENT}, v{MST}, {srd}, s{sB} offen
    s_mov_b64 exec, -1
    """)
    if diag: A(dacc)
    A.nop(jfirst)
    if trace: stamp("p1_first")
    pload(0)
    A.nop(gap1)
    pload(16)
    pproc(0, 4)
    A("s_cbranch_scc1 Lp2")
    A.label("Lp1")
    pload(0)
    pproc(16, 5)
    A("s_cbranch_scc1 Lp2")
    pload(16)
    A(f"s_sub_u32 s{sSpin}, s{sSpin}, 1\ns_cbranch_scc1 Lp1giveup")
    pproc(0, 5)
    A("s_cbranch_scc0 Lp1")
    A("s_branch Lp2")
    A.label("Lodd")
    if full:
        A(f"s_cmp_gt_i32 s{sRdy}, s{sStep}\ns_cbranch_scc0 LkvB")
        A.label("LkvBret")
    junk()
    if diag: A(dacc)
    if rpos == 2:
        A.nop(rdel)
        for k in range(4): A(f"buffer_store_dwordx4 {v(SENT,4)}, v{PLD}, {srd}, s{sCc} offen offset:{1024*k}")
    A("s_branch Lp2")
    A.label("Lp2bok")
    for k in range(0, 8, 2): A(f"v_pk_mov_b32 {v(k,2)}, {v(VX+k,2)}, {v(VX+k,2)} op_sel:[0,1]")
    A("s_nop 0\ns_branch Lstep")
    A.label("Lp2giveup")
    A(f"""
    s_mov_b32 s{sSpin}, 0
    s_waitcnt vmcnt(0)
    ds_write_b128 v{MOWN}, {v(0,4)}
    s_branch Lstep
    """)
    A.label("Lp1giveup")
    A(f"""
    s_mov_b32 s{sSpin}, 0
    v_mov_b32 v{PUB}, 0x7fc07fc0
    s_waitcnt vmcnt(0)
    buffer_store_dword v{PUB}, v{MST}, {srd}, s{sA} offen
    s_branch Lp2
    """)
    if timing:
        A.label("Ltm")
        A(f"s_memtime s[96:97]\ns_mov_b32 s98, s{sSpin}\ns_branch Ltmret")
    if steplog:
        A.label("Llog")
        A(f"""
        s_memrealtime s[80:81]
        s_memtime s[82:83]
        s_lshl_b32 s84, s{sStep}, 3
        s_add_u32 s84, s84, {WS_DBG + 8192}
        s_waitcnt lgkmcnt(0)
        v_mov_b32 v{PB+12}, s80
        v_mov_b32 v{PB+13}, s82
        s_mov_b64 exec, 1
        buffer_store_dwordx2 {v(PB+12,2)}, off, {srd}, s84
        s_mov_b64 exec, -1
        s_branch Llogret
        """)
    if full:
        kvpoll("B"); A("s_branch LkvBret")
    A.label("Lexit")
    L = A.newlabel("Lfin")
    A(f"""
    s_cmp_lg_u32 s{sH}, 0
    s_cbranch_scc1 {L}
    """)
    pub_all()
    A(f"""
    s_mov_b64 exec, s[{sEx3}:{sEx3+1}]
    buffer_store_dword v{PUB}, v{MST}, {srd}, s{sMH} offen sc1
    s_add_u32 s{sMH}, s{sMH}, {MHS}
    s_waitcnt vmcnt(0)
    s_barrier
    s_cmp_lg_u32 s{sW}, 1
    s_cbranch_scc1 {L}
    buffer_store_dword v{PUB}, v{MST}, {srd}, s{sMH} offen sc1
    """)
    A.label(L)
    A("s_mov_b64 exec, -1")
    if trace: A.label("Lexit2")
```

```python
from asmlib import *
from layout import *
import struct, math
def fbits(x): return struct.unpack("<I", struct.pack("<f", x))[0]

SRD = 4; sH, sW, sI, sS = 10, 11, 12, 13
sCnt, sSpin, sKV, sQ, sC, sXB = 14, 18, 16, 17, 26, 19
SRDW = 28; sT = 36; sKF = 22
sMask = 60
L16 = 1
def KW(ks, t): return a_((ks*2 + t)*4, 4)
def VW(ks, t): return a_(128 + (ks*2 + t)*4, 4)
def QW(ks, t): return v(128 + (ks*2 + t)*4, 4)
XB0 = 131072
XB1 = 98304

def emit_head_worker(A, stamps=False, slp=2, LA=3):
    srd = f"s[{SRD}:{SRD+3}]"; srw = f"s[{SRDW}:{SRDW+3}]"
    cv = lambda d, a, b: A(f"v_cvt_pk_bf16_f32 v{d}, v{a}, v{b}")
    A(f"""
    s_load_dwordx2 s[{SRD}:{SRD+1}], s[0:1], {KA['ws']}
    s_load_dwordx2 s[8:9], s[0:1], {KA['dbg']}
    s_load_dwordx4 s[48:51], s[0:1], {KA['Wq']}
    s_load_dwordx2 s[52:53], s[0:1], {KA['Wv']}
    s_load_dwordx2 s[56:57], s[0:1], {KA['x']}
    v_lshrrev_b32 v5, 6, v0
    v_and_b32 v2, 63, v0
    v_readfirstlane_b32 s{sW}, v5
    v_and_b32 v3, 15, v2
    v_lshrrev_b32 v4, 4, v2
    v_lshlrev_b32 v{L16}, 4, v2
    s_mov_b32 s{SRD+2}, {WS_SIZE}
    s_mov_b32 s{SRD+3}, 0x00020000
    s_mov_b32 s{SRDW+2}, {4*MB}
    s_mov_b32 s{SRDW+3}, 0x00020000
    s_mov_b32 s58, {2*MB}
    s_mov_b32 s59, 0x00020000
    s_mov_b32 s{sSpin}, {SPIN}
    s_mov_b32 s{sC}, {fbits(128**-0.5 * math.log2(math.e))}
    """)
    A(f"""
    v_lshlrev_b32 v5, 2, v4
    v_xor_b32 v5, v5, v3
    v_lshlrev_b32 v5, 4, v5
    v_lshl_add_u32 v5, v4, 13, v5
    s_lshl_b32 s{sT}, s{sH}, 8
    s_lshl_b32 s{sT+1}, s{sW}, 18
    s_add_u32 s{sT}, s{sT}, s{sT+1}
    v_add_u32 v10, s{sT}, v5
    v_lshrrev_b32 v5, 2, v3
    v_lshl_add_u32 v12, v4, 3, v5
    v_lshlrev_b32 v12, 8, v12
    v_xor_b32 v5, s{sW}, v5
    v_and_b32 v11, 3, v3
    v_lshl_add_u32 v5, v5, 2, v11
    v_lshl_add_u32 v12, v5, 4, v12
    v_add_u32 v13, 65536, v12
    v_xor_b32 v5, v4, v3
    v_lshlrev_b32 v11, 10, v3
    v_add_u32 v11, {XB0}, v11
    """)
    for b in range(4):
        A(f"v_xor_b32 v14, {4*b}, v5\nv_lshl_add_u32 v{6+b}, v14, 4, v11")
    A(f"""
    s_lshl_b32 s{sT+2}, s{sW}, 13
    s_mov_b32 s{sS}, s{sI}
    s_mov_b32 s{sXB}, {XB0}
    s_waitcnt lgkmcnt(0)
    """)
    def xdma(sseg):
        A(f"""
        s_lshl_b32 s{sT}, s{sseg}, 15
        s_and_b32 s{sT+1}, s{sW}, 1
        s_lshl_b32 s{sT+3}, s{sT+1}, 14
        s_add_u32 s{sT}, s{sT}, s{sT+3}
        s_lshr_b32 s{sT+3}, s{sW}, 1
        s_lshl_b32 s{sT+3}, s{sT+3}, 12
        s_add_u32 s{sT}, s{sT}, s{sT+3}
        s_lshl_b32 s{sT+1}, s{sT+1}, 7
        s_add_u32 s{sT+4}, s{sXB}, s{sT+2}
        """)
        for q in range(8):
            A(f"""
            s_xor_b32 s{sT+3}, s{sT+1}, {q*16}
            v_xor_b32 v14, s{sT+3}, v{L16}
            s_add_u32 m0, s{sT+4}, {q*1024}
            s_add_u32 s{sT+3}, s{sT}, {(8*(q >> 2) + (q & 3))*1024}
            buffer_load_dwordx4 v14, s[56:59], s{sT+3} offen lds
            """)
    A(f"""
    v_mul_u32_u24 v14, 640, v2
    s_lshl_b32 s{sT}, s{sI}, 7
    s_lshl_b32 s{sT+1}, s{sH}, 2
    s_add_u32 s{sT}, s{sT}, s{sT+1}
    v_add_u32 v14, s{sT}, v14
    s_lshl_b32 s{sKF}, s{sH}, 7
    s_lshl_b32 s{sT+1}, s{sI}, 2
    s_add_u32 s{sKF}, s{sKF}, s{sT+1}
    s_add_u32 s{sKF}, s{sKF}, 8192
    v_mov_b32 v15, s{sKF}
    v_cmp_gt_u32 vcc, 8192, v14
    s_add_u32 s{sKF}, s{sKF}, {WS_FL}
    s_mov_b32 s{sT}, {WS_FL}
    v_cndmask_b32 v14, v15, v14, vcc
    v_mov_b32 v15, 0
    s_cmp_lg_u32 s{sW}, 0
    s_cbranch_scc1 Hnz
    s_mov_b64 exec, 0x3fff
    buffer_store_dword v15, v14, {srd}, s{sT} offen sc1
    s_mov_b64 exec, -1
    """)
    A.label("Hnz")
    xdma(sS)
    base = [50, 52, 48]
    dst = [lambda ks, t: ("a", (ks*2 + t)*4), lambda ks, t: ("a", 128 + (ks*2 + t)*4), lambda ks, t: ("v", 128 + (ks*2 + t)*4)]
    def wdma(n):
        if n % 4 == 0: A(f"s_mov_b32 s{SRDW}, s{base[n//4]}\ns_mov_b32 s{SRDW+1}, s{base[n//4]+1}")
        for q in range(8):
            A(f"""
            s_add_u32 m0, s{sT+2}, {(n % 4)*32768 + q*1024}
            s_mov_b32 s{sT+1}, {(128*(n % 4) + 4*q)*8192}
            buffer_load_dwordx4 v10, {srw}, s{sT+1} offen lds
            """)
    for n in range(3): wdma(n)
    for n in range(12):
        A(f"s_waitcnt vmcnt({8*(min(n + 3, 12) - n - 1)})")
        A("s_barrier")
        if n == 0:
            A(f"""
            s_cmp_lg_u32 s{sW}, 0
            s_cbranch_scc1 Hna
            v_mov_b32 v14, {DBG_ZERO}
            v_mov_b32 v15, 1
            s_mov_b64 exec, 1
            global_atomic_add v14, v15, s[8:9]
            s_mov_b64 exec, -1
            """)
            A.label("Hna")
        if n + 3 < 12: wdma(n + 3)
        for kk in range(4):
            for t in range(2):
                k, r0 = dst[n//4](4*(n % 4) + kk, t)
                for u in range(2):
                    A(f"ds_read_b64_tr_b16 {R(k, r0 + 2*u, 2)}, v{12 + ((n % 4) >> 1)} offset:{(n & 1)*32768 + kk*8192 + u*1024 + 8*t}")
            if kk == 1: A("s_waitcnt lgkmcnt(0)")
        A("s_waitcnt lgkmcnt(0)")
    if stamps: A('s_memrealtime s[80:81]')
    sP, sPr, sRW, sRR = 15, 14, 20, 21
    EX = 73728; SLOT = 24576
    XF, ACC, PK = 20, 44, 92
    QF, AK_, AV_, SX, SM, KF, MF = 20, 36, 44, 52, 60, 64, 64
    VF, KM, VMr, PX, PM, OA, OP = 64, 80, 96, 104, 108, 36, 112
    X, Y, Z0, Z1 = 16, 17, 18, 19
    A(f"""
    v_lshrrev_b32 v5, 2, v3
    v_sub_u32 v5, v5, v4
    v_lshlrev_b32 v5, 3, v5
    v_and_b32 v11, 3, v3
    v_add_u32 v5, v5, v11
    s_and_b32 s{sT}, s{sW}, 1
    s_lshl_b32 s{sT}, s{sT}, 2
    v_add_u32 v5, s{sT}, v5
    """)
    for k in range(8): A(f"v_cmp_le_i32 s[{sMask+2*k}:{sMask+2*k+1}], {k}, v5")
    A(f"""
    v_cmp_gt_u32 s[76:77], 2, v4
    v_and_b32 v2, 7, v3
    v_lshl_add_u32 v2, v4, 3, v2
    v_lshlrev_b32 v2, 4, v2
    s_lshl_b32 s{sT}, s{sW}, 11
    v_add_u32 v3, s{sT}, v{L16}
    v_add_u32 v3, {EX}, v3
    v_add_u32 v4, {EX}, v{L16}
    s_lshr_b32 s{sT}, s{sW}, 1
    s_lshl_b32 s{sT}, s{sT}, 12
    v_add_u32 v5, s{sT}, v4
    v_mov_b32 v10, {DBG_TEAM}
    v_mov_b32 v11, 0xff800000
    s_mov_b32 s{sP}, s{sI}
    s_mov_b32 s{sPr}, 0
    s_mov_b32 s{sRW}, 0
    s_mov_b32 s{sRR}, 0
    s_barrier
    """)
    def flag(tag, soff):
        A(f"""
        s_waitcnt vmcnt(0) lgkmcnt(0)
        s_barrier
        s_cmp_lg_u32 s{sW}, 0
        s_cbranch_scc1 Hnf{tag}
        v_mov_b32 v14, s{sPr}
        s_mov_b64 exec, 1
        buffer_store_dword v14, off, {srd}, s{soff} sc1
        s_mov_b64 exec, -1
        """)
        A.label(f"Hnf{tag}")
    A.label("H1top")
    if stamps:
        A(f"""
        s_memrealtime s[84:85]
        s_lshl_b32 s86, s2, 4
        s_and_b32 s87, s{sPr}, 15
        s_add_u32 s86, s86, s87
        s_lshl_b32 s86, s86, 2
        s_add_u32 s86, s86, {WS_DBG + 16384}
        s_waitcnt lgkmcnt(0)
        v_mov_b32 v14, s84
        buffer_store_dword v14, off, {srd}, s86
        """)
    A(f"""
    s_lshl_b32 s{sKV}, s{sP}, 5
    s_add_u32 s{sKV}, s{sKV}, s{sH}
    s_lshl_b32 s{sKV}, s{sKV}, 2
    s_add_u32 s{sKV}, s{sKV}, s{sW}
    s_lshl_b32 s{sKV}, s{sKV}, 12
    s_add_u32 s{sP}, s{sP}, 5
    s_xor_b32 s{sXB}, s{sXB}, {XB0 ^ XB1}
    s_cmp_ge_u32 s{sP}, 64
    s_cbranch_scc1 H1nx
    """)
    xdma(sP)
    A.label("H1nx")
    def xread(ks):
        for kt in range(2):
            A(f"ds_read_b128 {v(XF + (ks % 3)*8 + 4*kt, 4)}, v{6 + (ks & 3)} offset:{(ks >> 2)*256 + kt*16384}")
    xread(0); xread(1)
    for ks in range(16):
        if ks + 2 < 16:
            xread(ks + 2); A("s_waitcnt lgkmcnt(4)")
        else: A(f"s_waitcnt lgkmcnt({2*(15 - ks)})")
        for kt in range(2):
            xf = v(XF + (ks % 3)*8 + 4*kt, 4)
            for t in range(2):
                for m in range(3):
                    d = v(ACC + m*16 + (kt*2 + t)*4, 4)
                    c = d if ks else "0"
                    if m == 0: A(f"v_mfma_f32_16x16x32_bf16 {d}, {KW(ks,t)}, {xf}, {c}")
                    if m == 1: A(f"v_mfma_f32_16x16x32_bf16 {d}, {xf}, {VW(ks,t)}, {c}")
                    if m == 2: A(f"v_mfma_f32_16x16x32_bf16 {d}, {QW(ks,t)}, {xf}, {c}")
    for b in range(4): A(f"v_xor_b32 v{6+b}, {XB0 ^ XB1}, v{6+b}")
    A(f"""
    s_mul_i32 s{sT}, s{sW}, 6144
    s_add_u32 s{sT}, s{sT}, s{sRW}
    v_add_u32 v12, s{sT}, v{L16}
    s_nop 1
    """)
    ac = lambda m, kt, t: ACC + m*16 + (kt*2 + t)*4
    for kt in range(2):
        for t in range(2):
            cv(PK + kt*4 + 2*t, ac(0,kt,t), ac(0,kt,t)+1); cv(PK + kt*4 + 2*t + 1, ac(0,kt,t)+2, ac(0,kt,t)+3)
        A(f"buffer_store_dwordx4 {v(PK + kt*4, 4)}, v{L16}, {srd}, s{sKV} offen offset:{kt*1024} sc1")
    for t in range(2):
        for kt in range(2):
            cv(PK + 8 + t*4 + 2*kt, ac(1,kt,t), ac(1,kt,t)+1); cv(PK + 8 + t*4 + 2*kt + 1, ac(1,kt,t)+2, ac(1,kt,t)+3)
        A(f"buffer_store_dwordx4 {v(PK + 8 + t*4, 4)}, v{L16}, {srd}, s{sKV} offen offset:{2048 + t*1024} sc1")
    for kt in range(2):
        for t in range(2):
            cv(PK + 16 + kt*4 + 2*t, ac(2,kt,t), ac(2,kt,t)+1); cv(PK + 16 + kt*4 + 2*t + 1, ac(2,kt,t)+2, ac(2,kt,t)+3)
    for k in range(6): A(f"ds_write_b128 v12, {v(PK + 4*k, 4)} offset:{1024*k}")
    A(f"""
    s_add_u32 s{sRW}, s{sRW}, {SLOT}
    s_cmp_eq_u32 s{sRW}, {3*SLOT}
    s_cselect_b32 s{sRW}, 0, s{sRW}
    s_add_u32 s{sPr}, s{sPr}, 1
    s_cmp_ge_u32 s{sP}, 64
    s_cselect_b32 s{sPr}, 15, s{sPr}
    """)
    flag("1", sKF)
    A(f"""
    s_cmp_lt_u32 s{sPr}, {LA}
    s_cbranch_scc1 H1top
    """)
    A.label("H3top")
    A(f"""
    s_lshl_b32 s{sQ}, s{sS}, 5
    s_add_u32 s{sQ}, s{sQ}, s{sH}
    s_lshl_b32 s{sQ}, s{sQ}, 13
    s_and_b32 s{sT}, s{sW}, 1
    s_lshl_b32 s{sT}, s{sT}, 10
    s_add_u32 s{sQ}, s{sQ}, s{sT}
    s_add_u32 s{sT}, s{sT}, s{sRR}
    v_add_u32 v12, s{sRR}, v{L16}
    v_add_u32 v13, s{sT}, v{L16}
    s_lshr_b32 s{sT}, s{sW}, 1
    s_lshl_b32 s{sT+1}, s{sT}, 12
    s_add_u32 s{sQ}, s{sQ}, s{sT+1}
    s_add_u32 s{sQ}, s{sQ}, {WS_O}
    s_mul_i32 s{sT}, s{sT}, 12288
    """)
    for sl in range(4):
        A(f"ds_read_b128 {v(QF + 4*sl, 4)}, v13 offset:{sl*6144 + 4096}")
        for kt in range(2): A(f"ds_read_b128 {v(KF + 8*sl + 4*kt, 4)}, v12 offset:{sl*6144 + kt*1024}")
    A(f"v_add_u32 v12, s{sT}, v12")
    A("s_waitcnt lgkmcnt(0)")
    for sl in range(4):
        for kt in range(2):
            d = v(SX + 4*kt, 4)
            A(f"v_mfma_f32_16x16x32_bf16 {d}, {v(KF + 8*sl + 4*kt, 4)}, {v(QF + 4*sl, 4)}, {d if sl else 0}")
    A.nop(8)
    for k in range(8): A(f"v_cndmask_b32 v{SX+k}, v11, v{SX+k}, s[{sMask+2*k}:{sMask+2*k+1}]")
    A(f"""
    v_max3_f32 v{X}, v{SX}, v{SX+1}, v{SX+2}
    v_max3_f32 v{X}, v{X}, v{SX+3}, v{SX+4}
    v_max3_f32 v{X}, v{X}, v{SX+5}, v{SX+6}
    v_max_f32 v{X}, v{X}, v{SX+7}
    s_cmp_lg_u32 s{sW}, 0
    s_cbranch_scc1 H3go
    """)
    A(f"s_cmp_lg_u32 s{sS}, s{sI}\ns_cbranch_scc1 Htd")
    A.label("Htw")
    A(f"""
    global_load_dword v14, v10, s[8:9] sc1
    s_sub_u32 s{sSpin}, s{sSpin}, 1
    s_cbranch_scc1 Htg
    s_waitcnt vmcnt(0)
    v_readfirstlane_b32 s{sT}, v14
    s_cmp_ge_u32 s{sT}, 32
    s_cbranch_scc1 Htd
    s_sleep 16
    s_branch Htw
    """)
    A.label("Htg")
    A(f"s_mov_b32 s{sSpin}, 0")
    A.label("Htd")
    A(f"""
    s_mul_i32 s{sT+1}, s{sS}, {MHS}
    s_add_u32 s{sT+1}, s{sT+1}, {WS_MH + MHS + 8192}
    """)
    A.label("H3poll")
    A(f"""
    buffer_load_dword v14, off, {srd}, s{sT+1} sc1
    s_sub_u32 s{sSpin}, s{sSpin}, 1
    s_cbranch_scc1 H3gv
    s_waitcnt vmcnt(0)
    v_readfirstlane_b32 s{sT}, v14
    s_cmp_lg_u32 s{sT}, 0
    s_cbranch_scc1 H3go
    s_sleep {slp}
    s_branch H3poll
    """)
    A.label("H3gv")
    A(f"s_mov_b32 s{sSpin}, 0")
    A.label("H3go")
    A(f"""
    s_barrier
    s_mul_i32 s{sT}, s{sS}, {MHS}
    s_add_u32 s{sT}, s{sT}, {WS_MH}
    s_add_u32 s{sT+1}, s{sT}, 4096
    """)
    for ks in range(16):
        off = f_to_pos(ks >> 1)*1024 + (ks & 1)*512
        A(f"buffer_load_dwordx4 {v(MF + 4*ks, 4)}, v2, {srd}, s{sT + (off >> 12)} offen offset:{off & 4095} sc1")
    for ks in range(16):
        A(f"s_waitcnt vmcnt({15 - ks})")
        mf = v(MF + 4*ks, 4)
        for t in range(2):
            d = v(AK_ + 4*t, 4); A(f"v_mfma_f32_16x16x32_bf16 {d}, {KW(ks,t)}, {mf}, {d if ks else 0}")
        for t in range(2):
            d = v(AV_ + 4*t, 4); A(f"v_mfma_f32_16x16x32_bf16 {d}, {mf}, {VW(ks,t)}, {d if ks else 0}")
        if 8 <= ks < 12:
            sl, t = (ks - 8) >> 1, ks & 1
            A(f"ds_read_b128 {v(VF + 8*sl + 4*t, 4)}, v12 offset:{sl*6144 + 2048 + t*1024}")
    A.nop(4)
    for k in range(4): cv(KM + k, AK_ + 2*k, AK_ + 2*k + 1)
    for k in range(4): cv(KM + 4 + k, AV_ + 2*k, AV_ + 2*k + 1)
    A(f"""
    ds_write_b128 v3, {v(KM,4)}
    ds_write_b128 v3, {v(KM+4,4)} offset:1024
    s_waitcnt lgkmcnt(0)
    s_barrier
    """)
    for sl in range(4): A(f"ds_read_b128 {v(KM + 4*sl, 4)}, v4 offset:{2048*sl}")
    for sl in range(2): A(f"ds_read_b128 {v(VMr + 4*sl, 4)}, v5 offset:{2048*sl + 1024}")
    for sl in range(4):
        A(f"s_waitcnt lgkmcnt({5 - sl})")
        A(f"v_mfma_f32_16x16x32_bf16 {v(SM,4)}, {v(KM + 4*sl, 4)}, {v(QF + 4*sl, 4)}, {v(SM,4) if sl else 0}")
    A.nop(8)
    for k in range(4): A(f"v_cndmask_b32 v{SM+k}, v11, v{SM+k}, s[76:77]")
    A(f"""
    v_max3_f32 v{X}, v{X}, v{SM}, v{SM+1}
    v_max3_f32 v{Y}, v{X}, v{SM+2}, v{SM+3}
    v_max3_f32 v{X}, v{X}, v{SM+2}, v{SM+3}
    s_nop 1
    v_permlane16_swap_b32 v{X}, v{Y}
    v_max_f32 v{Z0}, v{X}, v{Y}
    v_max_f32 v{Z1}, v{X}, v{Y}
    s_nop 1
    v_permlane32_swap_b32 v{Z0}, v{Z1}
    v_max_f32 v{X}, v{Z0}, v{Z1}
    v_mul_f32 v{X}, s{sC}, v{X}
    """)
    for k in range(12): A(f"v_fma_f32 v{SX+k}, v{SX+k}, s{sC}, -v{X}")
    for k in range(12): A(f"v_exp_f32 v{SX+k}, v{SX+k}")
    for k in range(6): cv(PX + k, SX + 2*k, SX + 2*k + 1)
    A("s_waitcnt lgkmcnt(0)\ns_nop 0")
    for sl in range(2):
        for t in range(2):
            A(f"v_mfma_f32_16x16x32_bf16 {v(OA + 8*sl + 4*t, 4)}, {v(VF + 8*sl + 4*t, 4)}, {v(PX,4)}, 0")
    for sl in range(2):
        for t in range(2):
            d = v(OA + 8*sl + 4*t, 4)
            A(f"v_mfma_f32_16x16x16_bf16 {d}, {v(VMr + 4*sl + 2*t, 2)}, {v(PM,2)}, {d}")
    for k in range(0, 12, 2): A(f"v_add_f32 v{SX+k}, v{SX+k}, v{SX+k+1}")
    for k in range(0, 12, 4): A(f"v_add_f32 v{SX+k}, v{SX+k}, v{SX+k+2}")
    A(f"""
    v_add_f32 v{X}, v{SX}, v{SX+4}
    v_add_f32 v{Y}, v{X}, v{SX+8}
    v_add_f32 v{X}, v{X}, v{SX+8}
    s_nop 1
    v_permlane16_swap_b32 v{X}, v{Y}
    v_add_f32 v{Z0}, v{X}, v{Y}
    v_add_f32 v{Z1}, v{X}, v{Y}
    s_nop 1
    v_permlane32_swap_b32 v{Z0}, v{Z1}
    v_add_f32 v{X}, v{Z0}, v{Z1}
    v_rcp_f32 v{X}, v{X}
    s_nop 0
    """)
    for k in range(16): A(f"v_mul_f32 v{OA+k}, v{OA+k}, v{X}")
    for k in range(8): cv(OP + k, OA + 2*k, OA + 2*k + 1)
    for sl in range(2):
        A(f"buffer_store_dwordx4 {v(OP + 4*sl, 4)}, v{L16}, {srd}, s{sQ} offen offset:{2048*sl} sc1")
    A(f"""
    s_add_u32 s{sRR}, s{sRR}, {SLOT}
    s_cmp_eq_u32 s{sRR}, {3*SLOT}
    s_cselect_b32 s{sRR}, 0, s{sRR}
    s_lshl_b32 s{sT}, s{sS}, 7
    s_lshl_b32 s{sT+1}, s{sH}, 2
    s_add_u32 s{sT}, s{sT}, s{sT+1}
    s_add_u32 s{sT}, s{sT}, {WS_OFL}
    s_add_u32 s{sS}, s{sS}, 5
    """)
    flag("3", sT)
    A(f"""
    s_cmp_lt_u32 s{sP}, 64
    s_cbranch_scc1 H1top
    s_cmp_lt_u32 s{sS}, 64
    s_cbranch_scc1 H3top
    s_branch Lend
    """)

if __name__ == "__main__":
    A = Asm(); emit_head_worker(A); A.label("Lend")
    for e in check(A.lines): print("HAZARD", e)
    print(len(A.lines))
```

```python
MB = 1 << 20
WS_KV = 0
WS_Q  = 32*MB
WS_O  = 48*MB
WS_Y  = 64*MB
WS_P  = 72*MB
P_SLOT = 128*32*64
WS_M  = 73*MB
WS_MH = 74*MB
WS_FL = 75*MB
WS_DBG = 76*MB
WS_SIZE = 256*MB
KA = dict(x=0, mem0=8, Wq=16, Wk=24, Wv=32, Wo=40, seg=48, Bq=56, Bk=64, Bv=72, shift=80, ssmk=88, ssmD=96, gate=104, out=112, dbg=120, ws=128)
def pos_to_f(pos):
    ww, ii = pos >> 1, pos & 1
    i = ww >> 1; wp = 2*(ww & 1) + ii
    return 2*wp + i
def f_to_pos(f):
    wp, i = f >> 1, f & 1
    return 2*(2*i + (wp >> 1)) + (wp & 1)
assert all(f_to_pos(pos_to_f(p)) == p for p in range(8))
DBG_XCC = 0
DBG_TEAM = 32
DBG_CONV = 36
DBG_ZERO = 40
DBG_MPROG = 128
WS_OFL = WS_FL
WS_KVF = WS_FL + 8192
WS_B = WS_Y
WS_G = WS_Y + 4*MB
SPIN = 0x40000

PM_OFF = 262144
RS = PM_OFF + 8192
MHS = 8320
```

```python
from asmlib import *
from layout import *
import struct, math

def fbits(x): return struct.unpack("<I", struct.pack("<f", x))[0]

M0_, S0_ = 0, 32
AQ = [64, 68]; AK = [72, 76]; AV = [80, 84]; PA = 64
KX, VX = 88, 96
PB = 104
SELT, SELR = 120, 124
IDX, SMW, PST, PLD, MST, MOWN = 128, 129, 130, 131, 132, 133
L16 = 15
MX = [None, 134, 135, 136]
SMR, PUB, WL = 137, 138, 139
SENT = 140
SRD = 4
sH, sW = 10, 11
sA, sB, sCc, sAM, sKV, sStep, sSpin, sA2, sMH = 12, 13, 14, 15, 16, 17, 18, 19, 20
sEx1, sEx3, sEx3r = 22, 24, 60
sFW, sKF = 62, 63
sExK, sKM = 34, 30
sExF, sFR, sPM = 46, 45, 48
sC = 26
SRDW = 28
sF = 32
sT = 36
sOne = 58
sRdy = 21
sTM = 72
LDS_SC = 8192
LDS_W = 16384
WPW = 36864

LDS_CH = [("Q", 2), ("Q", 3), ("K", 2), ("K", 6), ("V", 6), ("V", 7), ("O", 1, 1), ("O", 2, 1), ("O", 3, 1)]
ALL_CH = [(m, i) for m in "QKV" for i in range(8)] + [("O", j, i) for j in range(4) for i in range(2)]
REG_CH = [c for c in ALL_CH if c not in LDS_CH]
ORDER = REG_CH + LDS_CH
def reg_of(ch, t):
    n = REG_CH.index(ch)*2 + t
    if n < 32: return a_(8*n, 8), ("a", 8*n)
    return v(144 + 8*(n-32), 8), ("v", 144 + 8*(n-32))
def lds_off(ch, t):
    return LDS_CH.index(ch)*4096 + t*2048

def sm(A, acc, afrag, b):
    A(f"v_smfmac_f32_16x16x64_bf16 {v(acc,4)}, {v(afrag,4)}, {b}, v{IDX}")

def emit_chain_init(A, dbg_team_off=DBG_TEAM, nzero=0, stamps=False):
    A(f"""
    s_load_dwordx2 s[{SRD}:{SRD+1}], s[0:1], {KA['ws']}
    s_load_dwordx2 s[8:9], s[0:1], {KA['dbg']}
    s_load_dwordx4 s[48:51], s[0:1], {KA['Wq']}
    s_load_dwordx4 s[52:55], s[0:1], {KA['Wv']}
    s_load_dwordx2 s[56:57], s[0:1], {KA['mem0']}
    v_lshrrev_b32 v1, 6, v0
    v_and_b32 v2, 63, v0
    v_readfirstlane_b32 s{sW}, v1
    v_and_b32 v3, 15, v2
    v_lshrrev_b32 v4, 4, v2
    v_lshlrev_b32 v{L16}, 4, v2
    s_mov_b32 s{SRD+2}, {WS_SIZE}
    s_mov_b32 s{SRD+3}, 0x00020000
    s_mov_b32 s{SRDW+2}, {4*MB}
    s_mov_b32 s{SRDW+3}, 0x00020000
    """)
    A(f"""
    v_mov_b32 v5, 0x4444
    v_mov_b32 v6, 0xeeee
    v_cmp_gt_u32 vcc, 8, v3
    s_nop 1
    v_cndmask_b32 v{IDX}, v6, v5, vcc
    """)
    A(f"""
    v_lshrrev_b32 v5, 1, v4
    v_lshlrev_b32 v5, 2, v5
    v_lshrrev_b32 v6, 3, v3
    v_lshl_add_u32 v5, v6, 1, v5
    v_and_b32 v6, 1, v4
    v_add_u32 v5, v5, v6
    s_lshl_b32 s{sT}, s{sW}, 3
    v_add_u32 v5, s{sT}, v5
    v_lshlrev_b32 v5, 11, v5
    v_and_b32 v8, 7, v3
    v_lshl_add_u32 v5, v8, 3, v5
    s_lshl_b32 s{sT+1}, s{sH}, 6
    v_add_u32 v{PST}, s{sT+1}, v5
    """)
    A(f"""
    s_lshl_b32 s{sT}, s{sW}, 5
    s_add_u32 s{sT}, s{sT}, s{sH}
    s_lshl_b32 s{sT+2}, s{sT}, 11
    v_add_u32 v{PLD}, s{sT+2}, v{L16}
    s_lshl_b32 s{sT}, s{sT}, 6
    s_add_u32 s{sT}, s{sT}, {PM_OFF}
    v_and_b32 v5, 3, v3
    v_lshlrev_b32 v5, 2, v5
    v_lshl_add_u32 v5, v4, 4, v5
    v_add_u32 v{MST}, s{sT}, v5
    """)
    A(f"""
    s_lshl_b32 s{sT}, s{sW}, 11
    v_add_u32 v{MOWN}, s{sT}, v{L16}
    v_xor_b32 v{MX[1]}, 2048, v{MOWN}
    v_xor_b32 v{MX[2]}, 4096, v{MOWN}
    v_xor_b32 v{MX[3]}, 6144, v{MOWN}
    """)
    A(f"""
    v_and_b32 v5, 31, v2
    v_lshlrev_b32 v{SMR}, 3, v5
    v_lshrrev_b32 v7, 3, v3
    s_lshl_b32 s{sT}, s{sW}, 11
    v_mov_b32 v{PUB}, 1
    v_xor_b32 v5, 32, v2
    v_lshlrev_b32 v5, 3, v5
    v_add_u32 v{SMW}, s{sT}, v5
    s_mul_i32 s{sT+2}, s{sW}, {WPW}
    s_add_u32 s{sT+2}, s{sT+2}, {LDS_W}
    v_add_u32 v{WL}, s{sT+2}, v{L16}
    v_mov_b32 v{SENT}, -1
    v_mov_b32 v{SENT+1}, -1
    v_mov_b32 v{SENT+2}, -1
    v_mov_b32 v{SENT+3}, -1
    """)
    A(f"""
    v_mov_b32 v6, 0x3f80
    v_and_b32 v5, 4, v3
    v_lshlrev_b32 v5, 2, v5
    v_lshlrev_b32 v9, v5, v6
    v_and_b32 v5, 1, v8
    v_lshlrev_b32 v5, 4, v5
    v_lshlrev_b32 v5, v5, v6
    v_and_b32 v6, 3, v3
    v_lshl_add_u32 v6, v6, 1, v7
    """)
    for r in range(4):
        A(f"v_cmp_eq_u32 vcc, {r}, v6\ns_nop 1\nv_cndmask_b32 v{SELR+r}, 0, v9, vcc")
    A(f"""
    v_lshrrev_b32 v6, 1, v3
    v_and_b32 v6, 1, v6
    v_lshl_add_u32 v6, v7, 1, v6
    v_lshrrev_b32 v9, 2, v3
    v_xor_b32 v9, v9, v4
    v_and_b32 v9, 1, v9
    v_lshl_add_u32 v6, v9, 3, v6
    """)
    for r in range(4):
        A(f"v_cmp_eq_u32 vcc, {r}, v6\ns_nop 1\nv_cndmask_b32 v{SELT+r}, 0, v5, vcc")
    A(f"""
    s_mov_b32 s{sEx1}, 0x000f000f
    s_mov_b32 s{sEx1+1}, 0x000f000f
    s_add_u32 s{sT}, s{sH}, s{sW}
    s_cmp_eq_u32 s{sT}, 0
    s_cselect_b64 s[{sEx3r}:{sEx3r+1}], 16, 0
    s_or_b64 s[{sEx3r}:{sEx3r+1}], s[{sEx3r}:{sEx3r+1}], s[{sEx1}:{sEx1+1}]
    s_cmp_eq_u32 s{sW}, 0
    s_cselect_b64 s[{sExK}:{sExK+1}], 31, 0
    s_lshl_b32 s{sKF}, s{sH}, 7
    s_add_u32 s{sKF}, s{sKF}, {WS_KVF}
    s_mov_b64 s[{sEx3}:{sEx3+1}], 0
    s_mov_b32 s{sExF}, 0x00010001
    s_mov_b32 s{sExF+1}, 0x00010001
    s_cmp_eq_u32 s{sW}, 0
    s_cselect_b64 s[{sExF}:{sExF+1}], s[{sExF}:{sExF+1}], 0
    s_lshl_b32 s{sFW}, s{sH}, 3
    s_add_u32 s{sFW}, s{sFW}, {WS_SY}
    s_lshl_b32 s{sFR}, s{sW}, 8
    s_add_u32 s{sFR}, s{sFR}, {WS_SY}
    s_mov_b32 s{sAM}, {WS_P + PM_OFF}
    s_mov_b32 s{sC}, {fbits(128**-0.5 * math.log2(math.e))}
    s_mov_b32 s{sOne}, 0x3f803f80
    s_mov_b32 s{sOne+1}, 0x3e803e80
    s_mov_b32 s{sA}, {WS_P}
    s_mov_b32 s{sB}, {WS_P + RS}
    s_mov_b32 s{sCc}, {WS_P + 2*RS}
    s_mov_b32 s{sMH}, {WS_MH - PM_OFF}
    s_lshl_b32 s{sKV}, s{sH}, 3
    s_add_u32 s{sKV}, s{sKV}, s{sW}
    s_lshl_b32 s{sKV}, s{sKV}, 11
    s_mov_b32 s{sStep}, 0
    s_mov_b32 s{sSpin}, {SPIN}
    """)
    A(f"s_lshl_b32 s{sF}, s{sW}, 18")
    A(f"""
    v_lshrrev_b32 v5, 1, v4
    v_and_b32 v7, 1, v4
    v_lshl_add_u32 v6, v5, 3, v7
    v_lshlrev_b32 v6, 13, v6
    v_lshlrev_b32 v8, 2, v4
    v_xor_b32 v8, v8, v3
    v_lshl_add_u32 v6, v8, 4, v6
    s_lshl_b32 s{sT}, s{sH}, 8
    v_add_u32 v0, s{sT}, v6
    v_lshrrev_b32 v6, 3, v2
    v_lshlrev_b32 v6, 10, v6
    v_and_b32 v8, 7, v2
    v_lshl_add_u32 v6, v8, 4, v6
    s_lshl_b32 s{sT}, s{sH}, 17
    s_lshl_b32 s{sT+1}, s{sW}, 8
    s_add_u32 s{sT}, s{sT}, s{sT+1}
    v_add_u32 v1, s{sT}, v6
    v_lshrrev_b32 v9, 2, v3
    v_and_b32 v6, 3, v3
    v_lshl_add_u32 v12, v4, 3, v9
    v_lshlrev_b32 v12, 8, v12
    v_xor_b32 v10, s{sW}, v9
    v_lshl_add_u32 v10, v10, 2, v6
    v_lshl_add_u32 v12, v10, 4, v12
    v_lshrrev_b32 v8, 3, v3
    v_and_b32 v9, 1, v9
    v_lshlrev_b32 v13, 3, v5
    v_lshl_add_u32 v13, v7, 2, v13
    v_add_u32 v13, v13, v9
    v_lshlrev_b32 v13, 7, v13
    v_lshl_add_u32 v13, v8, 5, v13
    v_lshl_add_u32 v13, v6, 3, v13
    v_and_b32 v14, 7, v3
    v_lshlrev_b32 v14, 10, v14
    v_lshl_add_u32 v14, v5, 8, v14
    v_lshl_add_u32 v14, v7, 5, v14
    v_lshl_add_u32 v14, v8, 4, v14
    s_lshr_b32 s{sT}, s{sF}, 12
    v_add_u32 v4, s{sT}, v14
    v_mov_b32 v2, v12
    v_mov_b32 v3, v13
    s_lshl_b32 s{sT+2}, s{sW}, 13
    s_lshl_b32 s{sT+3}, s{sW}, 12
    s_waitcnt lgkmcnt(0)
    """)
    srw = f"s[{SRDW}:{SRDW+3}]"
    base = {"Q": 48, "K": 50, "V": 52, "O": 54}
    HELD = {ch: 8 + 16*k for k, ch in enumerate(LDS_CH[:7])}
    STG = [(m, ii, hf) for m in "QKV" for ii in range(2) for hf in range(2)] + [("O", 0, 0), ("O", 0, 2), ("O", 1, 0)]
    NS = len(STG)
    cur = [None]
    def setm(m):
        if cur[0] != m:
            cur[0] = m
            A(f"s_mov_b32 s{SRDW}, s{base[m]}\ns_mov_b32 s{SRDW+1}, s{base[m]+1}")
    def ochunk(j, i, sreg, off):
        A(f"s_xor_b32 s{sT}, s{sW}, {j}\ns_lshl_b32 s{sT}, s{sT}, 15")
        for q in range(4):
            A(f"""
            s_add_u32 m0, s{sreg}, {off + q*1024}
            s_add_u32 s{sT+1}, s{sT}, {q*8192 + i*128}
            buffer_load_dwordx4 v1, {srw}, s{sT+1} offen lds
            """)
    def issue(n):
        st = STG[n]; buf = LDS_W + (n % 4)*32768
        setm(st[0])
        if st[0] == "O":
            for jj in range(2): ochunk(st[2] + jj, st[1], sT+2, buf + jj*4096)
        else:
            for q in range(8):
                gb = q >> 1
                d = 256*st[1] + 128*st[2] + 16*(gb >> 1) + 4*(gb & 1) + 2*(q & 1)
                A(f"""
                s_add_u32 m0, s{sT+2}, {buf + q*1024}
                s_add_u32 s{sT+1}, s{sF}, {d*8192}
                buffer_load_dwordx4 v0, {srw}, s{sT+1} offen lds
                """)
    def dest(ch, t):
        if ch in HELD: return "v", HELD[ch] + 8*t
        return reg_of(ch, t)[1]
    def oread(ch, kind_r0, ad, off):
        for t in range(2):
            kind, r0 = kind_r0(t)
            for u in range(4):
                A(f"ds_read_b64_tr_b16 {R(kind, r0 + 2*u, 2)}, v{ad} offset:{off + (16*(u >> 1) + 2*(u & 1))*128 + 64*t}")
    for n in range(3): issue(n)
    for so in (sA, sB, sCc):
        A(f"buffer_store_dwordx4 {v(SENT,4)}, v{PLD}, s[{SRD}:{SRD+3}], s{so} offen")
        A(f"buffer_store_dwordx4 {v(SENT,4)}, v{PLD}, s[{SRD}:{SRD+3}], s{so} offen offset:1024")
        A(f"buffer_store_dword v{SENT}, v{MST}, s[{SRD}:{SRD+3}], s{so} offen")
    A(f"""
    s_mov_b64 exec, s[{sExF}:{sExF+1}]
    buffer_store_dwordx2 {v(SENT,2)}, v{MOWN}, s[{SRD}:{SRD+3}], s{sFW} offen
    s_mov_b64 exec, -1
    v_mbcnt_lo_u32_b32 v5, -1, 0
    v_mbcnt_hi_u32_b32 v5, -1, v5
    v_mul_u32_u24 v5, {MHS}, v5
    v_mov_b32 v6, 0
    s_bitcmp1_b32 s{sEx3r}, 4
    s_cselect_b64 exec, -1, 0
    s_mov_b32 s{sT}, {WS_MH + MHS + 8192}
    buffer_store_dword v6, v5, s[{SRD}:{SRD+3}], s{sT} offen sc1
    s_mov_b64 exec, 16
    v_mov_b32 v{MST}, {PM_OFF + 8192}
    s_mov_b64 exec, -1
    """)
    for n in range(NS):
        st = STG[n]; buf = LDS_W + (n % 4)*32768
        younger = 8*(min(n + 3, NS + 1) - n - 1) + (9 if n < 3 else 0)
        A(f"s_waitcnt vmcnt({younger})")
        A("s_barrier")
        if stamps: A(f"s_memrealtime s[84:85]\ns_waitcnt lgkmcnt(0)\nv_writelane_b32 v7, s84, {n}")
        if n == 3:
            L = A.newlabel("Lann")
            A(f"""
            s_cmp_lg_u32 s{sW}, 0
            s_cbranch_scc1 {L}
            v_mov_b32 v5, {dbg_team_off}
            v_mov_b32 v6, 1
            s_mov_b64 exec, 1
            global_atomic_add v5, v6, s[8:9]
            s_mov_b64 exec, -1
            """)
            A.label(L)
        if n + 3 < NS: issue(n + 3)
        if n + 3 == NS:
            ochunk(2, 1, sT+3, 147456); ochunk(3, 1, sT+3, 0)
        if st[0] == "O":
            A(f"s_add_u32 s{sT}, s{sT+2}, {buf}\nv_add_u32 v5, s{sT}, v3")
            for jj in range(2):
                ch = ("O", st[2] + jj, st[1])
                oread(ch, lambda t: dest(ch, t), 5, jj*4096)
                A("s_waitcnt lgkmcnt(0)")
        else:
            for j in range(4):
                A(f"""
                s_xor_b32 s{sT}, s{sW}, {j}
                s_lshl_b32 s{sT}, s{sT}, 13
                s_add_u32 s{sT}, s{sT}, {buf}
                v_add_u32 v{5 + (j & 1)}, s{sT}, v2
                """)
                ch = (st[0], 2*j + st[1])
                for t in range(2):
                    kind, r0 = dest(ch, t)
                    for u in range(2):
                        A(f"ds_read_b64_tr_b16 {R(kind, r0 + 4*st[2] + 2*u, 2)}, v{5 + (j & 1)} offset:{u*1024 + 8*t}")
                if j == 1: A("s_waitcnt lgkmcnt(0)")
            A("s_waitcnt lgkmcnt(0)")
    def wr(slot, r0):
        for k in range(4): A(f"ds_write_b128 v{WL}, {v(r0 + 4*k, 4)} offset:{slot*4096 + 1024*k}")
    A("s_barrier")
    wr(0, 8); wr(1, 24)
    A(f"""
    s_add_u32 s{sT}, s{sT+3}, 147456
    v_add_u32 v5, s{sT}, v3
    v_add_u32 v6, s{sT+3}, v3
    s_waitcnt vmcnt(0) lgkmcnt(0)
    """)
    oread(None, lambda t: ("v", 8 + 8*t), 5, 0)
    A("s_waitcnt lgkmcnt(0)")
    oread(None, lambda t: ("v", 24 + 8*t), 6, 0)
    A("s_waitcnt lgkmcnt(0)")
    wr(2, 40); wr(3, 56); wr(4, 72)
    A("s_barrier\ns_waitcnt lgkmcnt(0)")
    wr(5, 88); wr(6, 104); wr(7, 8)
    A("s_waitcnt lgkmcnt(0)")
    wr(8, 24)
    A("v_mov_b32 v14, v4\ns_waitcnt lgkmcnt(0)")
    if stamps:
        A(f"""
        s_memrealtime s[84:85]
        s_waitcnt lgkmcnt(0)
        v_writelane_b32 v7, s84, 15
        s_lshl_b32 s84, s2, 8
        s_add_u32 s84, s84, {WS_DBG + 65536}
        v_mbcnt_lo_u32_b32 v5, -1, 0
        v_mbcnt_hi_u32_b32 v5, -1, v5
        v_lshlrev_b32 v5, 2, v5
        buffer_store_dword v7, v5, s[{SRD}:{SRD+3}], s84 offen
        s_waitcnt vmcnt(0)
        """)
    L = A.newlabel("Lteam")
    A(f"v_mov_b32 v5, {dbg_team_off}")
    A.label(L)
    A(f"""
    global_load_dwordx3 v[6:8], v5, s[8:9] sc1
    s_sub_u32 s{sSpin}, s{sSpin}, 1
    s_cbranch_scc1 {L}x
    s_waitcnt vmcnt(0)
    v_readfirstlane_b32 s{sT}, v6
    v_readfirstlane_b32 s{sT+1}, v8
    s_add_u32 s{sT}, s{sT}, s{sT+1}
    s_cmp_lt_u32 s{sT}, {32 + nzero}
    s_cbranch_scc1 {L}
    """)
    A.label(L + "x")
    A(f"""
    s_max_i32 s{sSpin}, s{sSpin}, 0
    """)


def ldsw_reads(ch, dst):
    return [f"ds_read_b128 {v(dst + 4*k, 4)}, v{WL} offset:{lds_off(ch, 0) + 1024*k}" for k in range(4)]

MARKS = []
STREAM = {("Q", 2): S0_, ("Q", 3): S0_ + 16, ("K", 2): PB, ("K", 6): PB, ("V", 6): S0_, ("V", 7): S0_ + 16,
          ("O", 1, 1): S0_, ("O", 2, 1): S0_ + 16, ("O", 3, 1): M0_}

def emit_chain_loop(A, nsteps=63, diag=False, nvown=4, barpos=6, nopub=0, kvfix=0, trace=None, timing=0, full=0, steplog=0,
                    tstep=31, d0=30, d1=12, d2=12, d3=12, e0=10, e1=0, e2=0, e3=0, gap2=20, gap1=20, k2=2, jl=12, nsp=1, rg2=1,
                    bar=0, px=None, pp=(1, 4, 8, 14), eps=(6, 12, 20, 30), vpos=0, mpos=1, cpos=0, jzp=1):
    npre = 0
    srd = f"s[{SRD}:{SRD+3}]"
    def stamp(k):
        MARKS.append(k)
        if diag and diag[0] == k: A(f"s_memtime s[{sTM}:{sTM+1}]")
        if diag and diag[1] == k: A(f"s_memtime s[{sTM+2}:{sTM+3}]")
        if trace and k in trace:
            r = 64 + 2*trace.index(k)
            A(f"s_memtime s[{r}:{r+1}]")
    def lg(n): A(f"s_waitcnt lgkmcnt({n})")
    del MARKS[:]
    rd = lambda ch: ldsw_reads(ch, STREAM[ch])
    cv = lambda d, a, b: A(f"v_cvt_pk_bf16_f32 v{d}, v{a}, v{b}")
    pk = lambda op, d, a, b: A(f"v_pk_{op}_f32 {v(d,2)}, {v(a,2)}, {v(b,2)}")
    def junk():
        for x in rd(("Q", 2)) + rd(("Q", 3)) + rd(("K", 2)): A(x)
        A(f"v_mov_b32 v{PA}, 0\nv_mov_b32 v{PA+1}, 0")
        for k in range(2, 24, 2): A(f"v_pk_mov_b32 {v(PA+k,2)}, {v(PA,2)}, {v(PA,2)} op_sel:[0,1]")
    def jz_():
        A(f"v_mov_b32 v{PA}, 0\nv_mov_b32 v{PA+1}, 0")
        for k in range(2, 24, 2): A(f"v_pk_mov_b32 {v(PA+k,2)}, {v(PA,2)}, {v(PA,2)} op_sel:[0,1]")
    def rotate():
        A(f"""
        s_mov_b32 s{sT}, s{sA}
        s_mov_b32 s{sA}, s{sB}
        s_mov_b32 s{sB}, s{sCc}
        s_mov_b32 s{sCc}, s{sT}
        """)
    def mload(r):
        A(f"""
        buffer_load_dwordx4 {v(r,4)}, v{MOWN}, {srd}, s{sAM} offen sc1
        buffer_load_dwordx4 {v(r+4,4)}, v{MOWN}, {srd}, s{sAM} offen offset:1024 sc1
        """)
    def mcheck(r, t0, t1):
        A(f"""
        v_max3_u32 v{t0}, v{r}, v{r+1}, v{r+2}
        v_max3_u32 v{t1}, v{r+3}, v{r+4}, v{r+5}
        v_max3_u32 v{t0}, v{t0}, v{r+6}, v{r+7}
        v_max_u32 v{t0}, v{t0}, v{t1}
        v_cmp_eq_u32 vcc, -1, v{t0}
        """)
    def kvpoll(tag, ret):
        A.label(f"Lkv{tag}")
        A(f"""
        s_mov_b64 exec, s[{sExK}:{sExK+1}]
        buffer_load_dword v16, v{SMR}, {srd}, s{sKF} offen sc1
        s_waitcnt vmcnt(0)
        v_cmp_ge_u32 vcc, s{sRdy}, v16
        s_mov_b64 exec, -1
        s_cbranch_vccz {ret}
        s_sleep 1
        s_sub_u32 s{sSpin}, s{sSpin}, 1
        s_cbranch_scc0 Lkv{tag}
        s_mov_b32 s{sSpin}, 0
        """)
    def pub_all():
        A(f"""
        s_add_u32 s{sT}, s{sMH}, {PM_OFF}
        buffer_store_dwordx4 {v(0,4)}, v{MOWN}, {srd}, s{sT} offen sc1
        buffer_store_dwordx4 {v(4,4)}, v{MOWN}, {srd}, s{sT} offen offset:1024 sc1
        """)
    if diag: A("s_mov_b32 s70, 0")
    if full:
        A(f"s_mov_b32 s{sRdy}, 1\ns_cmp_lg_u32 s{sW}, 0\ns_cbranch_scc1 LkvAret")
        kvpoll("A", "LkvAret"); A.label("LkvAret")
        A("s_barrier")
        if steplog: A("s_memrealtime s[86:87]")
    A(f"""
    global_load_dwordx4 {v(0,4)}, v14, s[56:57]
    global_load_dwordx4 {v(4,4)}, v14, s[56:57] offset:512
    buffer_load_dwordx4 {v(KX,4)}, v{MOWN}, {srd}, s{sKV} offen sc1
    buffer_load_dwordx4 {v(KX+4,4)}, v{MOWN}, {srd}, s{sKV} offen offset:1024 sc1
    """)
    junk()
    A(f"""
    s_waitcnt vmcnt(0) lgkmcnt(0)
    s_cmp_lg_u32 s{sH}, 0
    s_cbranch_scc1 Lstep
    """)
    pub_all()
    A("s_branch Lstep")
    A.label("Lp2r")
    A("s_mov_b64 exec, vcc")
    mload(0)
    A(f"""
    s_mov_b64 exec, -1
    s_sub_u32 s{sSpin}, s{sSpin}, 1
    s_cbranch_scc1 Lp2giveup
    """)
    A.nop(rg2)
    for k in range(0, 4*nsp, 2): A(f"v_pk_mov_b32 {v(PA+k,2)}, {v(AV[0],2)}, {v(AV[0],2)} op_sel:[0,1]")
    A("s_branch Lp2a")
    A(".p2align 6")
    A.label("Lp2")
    if trace: stamp("p2_first")
    mload(0)
    rotate()
    for q in range(1, k2):
        A.nop(gap2 - (4 if q == 1 else 0))
        mload(0)
    A.label("Lp2a")
    A(f"s_waitcnt vmcnt({2*k2 - 1})")
    if trace: stamp("p2_w")
    A.label("Lstep")
    A(f"""
    v_max3_u32 v8, v0, v1, v2
    v_max_u32 v8, v8, v3
    s_waitcnt vmcnt({2*k2 - 2})
    v_max3_u32 v8, v8, v4, v5
    v_max3_u32 v8, v8, v6, v7
    v_cmp_le_u32 vcc, 0xffc00000, v8
    """)
    if nsp == 0: A("s_cbranch_vccnz Lp2r\nLp2cont:")
    stamp("m_in")
    def B(ch, t):
        if ch in STREAM: return v(STREAM[ch] + 8*t, 8)
        return reg_of(ch, t)[0]
    def QK(i): return [(AQ[0], 4*i, B(("Q", i), 0)), (AQ[1], 4*i, B(("Q", i), 1)), (AK[0], 4*i, B(("K", i), 0)), (AK[1], 4*i, B(("K", i), 1))]
    def VV(i): return [(AV[0], 4*i, B(("V", i), 0)), (AV[1], 4*i, B(("V", i), 1))]
    vown = VV(0) + VV(1)
    seq = QK(0) + QK(1) + vown[:nvown]
    mreads = [f"ds_read_b128 {v(8*j + 4*ii, 4)}, v{MX[j]} offset:{1024*ii}" for j in (1, 2, 3) for ii in range(2)]
    fill = {k: [] for k in range(40)}
    if nsp: fill[nsp - 1] += ["s_cbranch_vccnz Lp2r", "Lp2cont:"]
    fill[max(nsp - 1, 0)] += [f"ds_write_b128 v{MOWN}, {v(0,4)}"]
    fill[max(nsp, 1)] += [f"ds_write_b128 v{MOWN}, {v(4,4)} offset:1024"]
    fill[3] += [f"s_cmp_ge_u32 s{sStep}, {nsteps}", "s_cbranch_scc1 Lexit"]
    fill[barpos] += ["s_waitcnt lgkmcnt(0)", "s_barrier", mreads[0]]
    kstep = 0 if kvfix else 32*4*4096
    vl = [f"buffer_load_dwordx4 {v(VX,4)}, v{MOWN}, {srd}, s{sKV} offen offset:2048 sc1",
          f"buffer_load_dwordx4 {v(VX+4,4)}, v{MOWN}, {srd}, s{sKV} offen offset:3072 sc1", f"s_add_u32 s{sKV}, s{sKV}, {kstep}"]
    if vpos < 0:
        fill[2] += vl[:1]; fill[4] += vl[1:]
    nA = len(seq)
    for k in range(1, 6): fill[min(barpos + k, nA - 1)] += [mreads[k]]
    if px is not None:
        fill[5] += [f"s_add_u32 s{sT}, s{sStep}, 1", f"v_mov_b32 v31, s{sT}"]
        fill[px] = [f"s_mov_b64 exec, s[{sExF}:{sExF+1}]", f"buffer_store_dword v31, v{MOWN}, {srd}, s{sFW} offen", "s_mov_b64 exec, -1"] + fill[px]
    for k, x in enumerate(seq):
        sm(A, *x)
        for y in fill[k]: A(y)
    if not (trace and trace[0] == "A_end"): stamp("A_end")
    if trace: A(f"s_cmp_eq_u32 s{sStep}, {tstep}\ns_cbranch_scc1 Lexit2")
    if trace and trace[0] == "A_end": stamp("A_end")
    strm = {3: rd(("K", 6)), 4: rd(("V", 6)), 5: rd(("V", 7))}
    waits = {2: 5, 3: 4, 4: 7, 5: 10, 6: 8}
    fb = {(i, k): [] for i in range(2, 8) for k in range(4)}
    for i in strm:
        for k in range(4): fb[i, k] += [strm[i][k]]
    FB = lambda x: fb[2 + x//4, x % 4]
    if vpos >= 0:
        FB(vpos).append(vl[0]); FB(vpos + 2).extend(vl[1:])
    if not nopub:
        FB(mpos).extend([f"s_mov_b64 exec, s[{sEx3}:{sEx3+1}]", f"buffer_store_dword v{PUB}, v{MST}, {srd}, s{sMH} offen sc1", "s_mov_b64 exec, -1"])
    if full:
        FB(max(vpos, 0) + 3).extend([f"s_mov_b64 exec, s[{sExK}:{sExK+1}]", f"buffer_load_dword v7, v{SMR}, {srd}, s{sKF} offen sc1", "s_mov_b64 exec, -1"])
        fb[6, 3] += [f"s_add_u32 s{sRdy}, s{sRdy}, 1"]
    FB(mpos + 2).extend([f"s_mov_b64 exec, s[{sEx1}:{sEx1+1}]", f"buffer_store_dword v{SENT}, v{MST}, {srd}, s{sB} offen", "s_mov_b64 exec, -1"])
    assert mpos + 2 < 16 and vpos + 2 < 16
    fb[6, 2] += [f"s_add_u32 s{sAM}, s{sA}, {PM_OFF}"]
    fb[6, 1] += [f"s_mov_b64 s[{sEx3}:{sEx3+1}], s[{sEx3r}:{sEx3r+1}]", f"s_add_u32 s{sMH}, s{sMH}, {MHS}"]
    if timing: fb[7, 0] += [f"s_cmp_eq_u32 s{sStep}, 3", "s_cbranch_scc1 Ltm", "Ltmret:"]
    if steplog: fb[7, 0] += [f"s_bitcmp1_b32 s{sEx3r}, 4", "s_cbranch_scc1 Llog", "Llogret:"]
    fb[6, 0] += [f"buffer_store_dwordx4 {v(SENT,4)}, v{PLD}, {srd}, s{sCc} offen"]
    fb[7, 2] += [f"buffer_store_dwordx4 {v(SENT,4)}, v{PLD}, {srd}, s{sCc} offen offset:1024"]
    fb[7, 3] += [f"s_add_u32 s{sStep}, s{sStep}, 1"]
    if px is not None:
        for q, x in enumerate(pp):
            assert x < 16
            fb[2 + x//4, x % 4] = [f"buffer_load_dword v{q}, v{SMR}, {srd}, s{sFR} offen sc1"] + fb[2 + x//4, x % 4]
    for i in range(2, 8):
        if i in waits: A(f"s_waitcnt lgkmcnt({waits[i]})")
        if i == 2: stamp("B_start")
        for k, x in enumerate(QK(i)):
            sm(A, *x)
            for y in fb[i, k]: A(y)
    stamp("QK_end")
    vq = VV(6) + VV(7) + VV(4) + VV(5) + VV(2) + VV(3) + vown[nvown:]
    def vf(*after):
        sm(A, *vq.pop(0))
        for y in after: A(y)
    cv(PB+0, AQ[0], AQ[0]+1); cv(PB+1, AQ[0]+2, AQ[0]+3); cv(PB+4, AQ[1], AQ[1]+1); cv(PB+5, AQ[1]+2, AQ[1]+3)
    cv(PB+2, AK[0], AK[0]+1); cv(PB+3, AK[0]+2, AK[0]+3); cv(PB+6, AK[1], AK[1]+1); cv(PB+7, AK[1]+2, AK[1]+3)
    A(f"v_mfma_f32_16x16x32_bf16 {v(PA,4)}, {v(PB,4)}, {v(SELT,4)}, 0")
    A("s_waitcnt lgkmcnt(0)")
    A(f"v_mfma_f32_16x16x32_bf16 {v(PA+4,4)}, {v(PB+4,4)}, {v(SELT,4)}, 0")
    vf()
    T = PB + 8
    stamp("T_mfma")
    cv(T, PA, PA+1); cv(T+1, PA+2, PA+3); cv(T+2, PA+4, PA+5); cv(T+3, PA+6, PA+7)
    A.nop(2)
    wo = rd(("O", 1, 1)) + rd(("O", 2, 1))
    nw = 0
    def W():
        nonlocal nw
        nw += 1
        return wo[nw - 1] if nw <= 8 else ""
    A(f"v_mfma_f32_16x16x32_bf16 {v(PA,4)}, {v(KX,4)}, {v(T,4)}, 0")
    if npre >= 1: A(W())
    A(f"v_mfma_f32_16x16x32_bf16 {v(PA+4,4)}, {v(KX+4,4)}, {v(T,4)}, 0")
    if npre >= 2: A(W())
    A(f"v_mfma_f32_16x16x32_bf16 {v(PA+8,4)}, {v(T,4)}, {v(T,4)}, 0")
    stamp("S_mfma")
    kl = [f"buffer_load_dwordx4 {v(KX,4)}, v{MOWN}, {srd}, s{sKV} offen sc1", f"buffer_load_dwordx4 {v(KX+4,4)}, v{MOWN}, {srd}, s{sKV} offen offset:1024 sc1"]
    A.nop(4)
    for g in range(4): A(f"v_mov_b32_dpp v{PA+g}, v{PA+4+g} row_ror:8 row_mask:0xf bank_mask:0xc")
    A(f"ds_write_b128 v{MOWN}, {v(PA,4)} offset:{LDS_SC}")
    for g in range(2): A(f"v_mov_b32_dpp v{PA+8+g}, v{PA+10+g} row_ror:8 row_mask:0xf bank_mask:0xc")
    A(f"ds_write_b64 v{SMW}, {v(PA+8,2)} offset:{LDS_SC+1024}")
    stamp("S_written")
    n0 = nw
    vf(kl[0], W() if npre >= 3 else ""); vf(kl[1], W() if npre >= 4 else ""); vf(W() if npre >= 5 else "")
    stamp("preB2")
    lg(nw - n0)
    A("s_barrier")
    stamp("B2")
    xr = [f"ds_read_b128 {v(PA+4*j,4)}, v{MX[j]} offset:{LDS_SC}" for j in (1, 2, 3)]
    mr = [f"ds_read_b64 {v(PB+2*src,2)}, v{SMR} offset:{LDS_SC+2048*src+1024}" for src in range(4)]
    WA = [16, 20, 24, 28]
    A(xr[0]); A(mr[0]); A(mr[1])
    vf(xr[1], mr[2]); vf(xr[2], mr[3])
    n0 = nw
    zs = [24, 25, 26, 27, 28, 29, 30, 31]
    left = len(vq)
    while vq:
        z = f"v_mov_b32 v{zs.pop(0)}, 0" if zs else ""
        if len(vq) <= 5 - n0 and nw < 5: vf(W(), z)
        else: vf(z)
    stamp("V_end")
    lg(nw - n0)
    stamp("S_read")
    pk("add", PA, PA, PA+4); pk("add", PA+2, PA+2, PA+6); pk("add", PB, PB, PB+2)
    pk("add", PA+8, PA+8, PA+12); pk("add", PA+10, PA+10, PA+14); pk("add", PB+4, PB+4, PB+6)
    pk("add", PA, PA, PA+8); pk("add", PA+2, PA+2, PA+10); pk("add", PB, PB, PB+4)
    stamp("adds")
    X, Y = PB+2, PB+3
    assert len(zs) % 2 == 0
    zm = [f"v_pk_mov_b32 {v(r,2)}, v[24:25], v[24:25] op_sel:[0,1]" for r in zs[::2] + [16, 18, 20, 22]]
    ON, SU = PA + 4, PA + 8
    VM = PB + 12
    A(f"""
    v_max3_f32 v{X}, v{PA}, v{PA+1}, v{PA+2}
    v_max3_f32 v{Y}, v{PA+3}, v{PB}, v{PB+1}
    v_max_f32 v{X}, v{X}, v{Y}
    """)
    cv(VM, AV[0], AV[0]+1); cv(VM+1, AV[0]+2, AV[0]+3)
    A(f"""
    v_max_f32_dpp v{Y}, v{X}, v{X} row_ror:8 row_mask:0xf bank_mask:0xf
    v_max_f32_dpp v{X}, v{X}, v{X} row_ror:8 row_mask:0xf bank_mask:0xf
    """)
    cv(VM+2, AV[1], AV[1]+1); cv(VM+3, AV[1]+2, AV[1]+3)
    A(f"""
    v_permlane16_swap_b32 v{X}, v{Y}
    v_max_f32 v{PB+4}, v{X}, v{Y}
    v_max_f32 v{PB+5}, v{X}, v{Y}
    v_pk_mov_b32 {v(ON,2)}, s[{sOne}:{sOne+1}], s[{sOne}:{sOne+1}] op_sel:[0,0]
    v_pk_mov_b32 {v(ON+2,2)}, s[{sOne}:{sOne+1}], s[{sOne}:{sOne+1}] op_sel:[1,1]
    v_permlane32_swap_b32 v{PB+4}, v{PB+5}
    v_max_f32 v{X}, v{PB+4}, v{PB+5}
    v_mul_f32 v{X}, s{sC}, v{X}
    """)
    stamp("max")
    for r in (PA, PA+2, PB):
        A(f"v_pk_fma_f32 {v(r,2)}, {v(r,2)}, s[{sC}:{sC+1}], {v(X,2)} op_sel_hi:[1,0,0] neg_lo:[0,0,1] neg_hi:[0,0,1]")
    for r in [PB, PB+1, PA, PA+1, PA+2, PA+3]: A(f"v_exp_f32 v{r}, v{r}")
    stamp("exp")
    PX, PM = PB + 4, PB + 8
    cv(PM, PB, PB+1); cv(PM+1, PB, PB+1); cv(PX+2, PA, PA+1); cv(PX+3, PA+2, PA+3); cv(PX, PA, PA+1); cv(PX+1, PA+2, PA+3)
    A(f"""
    v_mfma_f32_16x16x32_bf16 {v(SU,4)}, {v(ON,4)}, {v(PX+2,4)}, 0
    s_waitcnt vmcnt(4)
    v_mov_b32_dpp v{PX+2}, v{PX+2} row_ror:8 row_mask:0xf bank_mask:0x3
    v_mov_b32_dpp v{PX+3}, v{PX+3} row_ror:8 row_mask:0xf bank_mask:0x3
    v_mov_b32_dpp v{PX}, v{PX} row_ror:8 row_mask:0xf bank_mask:0xc
    v_mov_b32_dpp v{PX+1}, v{PX+1} row_ror:8 row_mask:0xf bank_mask:0xc
    v_mov_b32_dpp v{PM}, v{PM} row_ror:8 row_mask:0xf bank_mask:0xc
    v_mov_b32_dpp v{PM+1}, v{PM+1} row_ror:8 row_mask:0xf bank_mask:0x3
    """)
    stamp("Pcvt")
    A(f"""
    v_mfma_f32_16x16x32_bf16 {v(AV[0],4)}, {v(VX,4)}, {v(PX,4)}, 0
    {W()}
    v_add_f32_dpp v{X}, v{SU}, v{SU} row_ror:8 row_mask:0xf bank_mask:0xf
    v_mfma_f32_16x16x32_bf16 {v(AV[1],4)}, {v(VX+4,4)}, {v(PX,4)}, 0
    {W()}
    v_rcp_f32 v{X}, v{X}
    v_mfma_f32_16x16x16_bf16 {v(AV[0],4)}, {v(VM,2)}, {v(PM,2)}, {v(AV[0],4)}
    {W()}
    v_mfma_f32_16x16x16_bf16 {v(AV[1],4)}, {v(VM+2,2)}, {v(PM,2)}, {v(AV[1],4)}
    s_nop 3
    """)
    assert nw >= 8
    OF = [PB+4, VX, VX+4, PB+8]
    for k in range(2):
        A(f"v_pk_mul_f32 {v(AV[0]+2*k,2)}, {v(AV[0]+2*k,2)}, {v(X,2)} op_sel_hi:[1,0]")
    cv(OF[0], AV[0], AV[0]+1); cv(OF[0]+1, AV[0]+2, AV[0]+3)
    stamp("rcp")
    for k in range(2):
        A(f"v_pk_mul_f32 {v(AV[1]+2*k,2)}, {v(AV[1]+2*k,2)}, {v(X,2)} op_sel_hi:[1,0]")
    cv(OF[0]+2, AV[1], AV[1]+1); cv(OF[0]+3, AV[1]+2, AV[1]+3)
    A(f"ds_write_b128 v{MOWN}, {v(OF[0],4)}")
    stamp("o_written")
    for z in zm: A(z)
    if full: A(f"v_cmp_ge_u32 s[{sKM}:{sKM+1}], s{sRdy}, v7")
    if px is not None:
        for q in range(len(pp)): A(f"v_cmp_ne_u32 s[{sPM+2*q}:{sPM+2*q+1}], s{sStep}, v{q}")
    def OO(j, i): return [(WA[2*i+t], OF[j], B(("O", j, i), t)) for t in range(2)]
    sm(A, *OO(0, 1)[0])
    A("s_waitcnt lgkmcnt(0)")
    A("s_barrier")
    stamp("B3")
    for j in (1, 2, 3): A(f"ds_read_b128 {v(OF[j],4)}, v{MX[j]}")
    wo3 = rd(("O", 3, 1))
    PK = AV[0]
    OG = lambda j, g: OO(j, g >> 1)[g & 1]
    wseq = [OG(0, 3), OG(0, 1), OG(0, 0)] + [OG(j, g) for g in range(4) for j in (1, 2, 3)]
    cvs = lambda g: [f"v_cvt_pk_bf16_f32 v{PK+2*g+q}, v{WA[g]+2*q}, v{WA[g]+2*q+1}" for q in range(2)]
    sG = [sA, sT, sT+1, sT+2]
    gst = lambda g: f"buffer_store_dwordx2 {v(PK+2*g,2)}, v{PST}, {srd}, s{sG[g]} offen"
    fw = {k: [] for k in range(16)}
    fw[0] += [wo3[0], f"s_add_u32 s{sT}, s{sA}, 65536"]; fw[1] += [wo3[1], f"s_add_u32 s{sT+1}, s{sA}, 131072"]
    fw[2] += [f"s_add_u32 s{sT+2}, s{sA}, 196608"]; fw[5] += [wo3[2]]; fw[6] += [wo3[3]]
    fw[10] += ["s_waitcnt lgkmcnt(2)"]; fw[13] += ["s_waitcnt lgkmcnt(0)"]
    for g in range(3):
        k = 3 + 3*g + 4
        if cpos == 0: fw[k] += cvs(g); fw[k+1] += [gst(g)]
        if cpos == 1: fw[k] += cvs(g) + [gst(g)]
        if cpos == 2: fw[k] += cvs(g)[:1]; fw[k+1] += cvs(g)[1:]; fw[k+2] = [gst(g)] + fw[k+2]
    pre = {3: 4, 4: 3, 5: 2}
    for k, x in enumerate(wseq):
        if k in pre: lg(pre[k])
        if k == 3: stamp("o_read")
        if k == 9: stamp("early_end")
        sm(A, *x)
        for y in fw[k]:
            A(y)
            if y == gst(0) and trace: stamp("est")
    stamp("late_end")
    tail = fw[15] + ([f"s_and_b32 s{sKM}, s{sKM}, s{sExK}", "s_cbranch_scc1 LkvB", "LkvBret:"] if 0 else [])
    for y in tail: A(y)
    if px is not None: A(f"s_cmp_eq_u64 s[{sPM}:{sPM+1}], 0")
    A.nop(8 - len(fw[14]) - len(tail) - (px is not None) - (2 if any(y.startswith("v_") for y in fw[14]) else 0))
    for y in cvs(3): A(y)
    A(gst(3))
    stamp("stored")
    RA = VX
    def pload(r):
        for k in range(2): A(f"buffer_load_dwordx4 {v(r+4*k,4)}, v{PLD}, {srd}, s{sA} offen offset:{1024*k} sc1")
    dacc = f"s_waitcnt lgkmcnt(0)\ns_sub_u32 s{sT+2}, s{sTM+2}, s{sTM}\ns_add_u32 s70, s70, s{sT+2}"
    if px is not None:
        for q in range(len(pp)):
            A("s_cbranch_scc1 Lsync")
            A.nop(eps[q])
            if q + 1 < len(pp): A(f"s_cmp_eq_u64 s[{sPM+2*q+2}:{sPM+2*q+3}], 0")
        A.label("Lsync")
    if bar: A("s_barrier")
    if trace: stamp("lbar")
    if jzp == 0: jz_()
    if diag: A(dacc)
    def ladder(ds, to):
        A.nop(ds[0])
        for w in range(3):
            if any(ds[w+1:]):
                A(f"s_cmp_eq_u32 s{sW}, {w}\ns_cbranch_scc1 {to}")
                A.nop(ds[w+1])
    ladder([d0, d1, d2, d3], "Lp1")
    jr = rd(("Q", 2)) + rd(("Q", 3)) + rd(("K", 2))
    def pproc(r, base):
        for k in range(2):
            A(f"s_waitcnt vmcnt({base + 1 - k})")
            A(f"v_mfma_f32_16x16x32_bf16 {v(RA,4)}, {v(SELR,4)}, {v(r+4*k,4)}, {v(RA,4) if k else 0}")
        if trace: stamp("p1_data")
        A(f"""
        s_nop 7
        v_add_f32_dpp v{RA}, v{RA}, v{RA} row_ror:4 row_mask:0xf bank_mask:0xf
        v_add_f32_dpp v{RA+1}, v{RA+1}, v{RA+1} row_ror:4 row_mask:0xf bank_mask:0xf
        s_nop 0
        v_add_f32_dpp v{RA}, v{RA}, v{RA} row_ror:8 row_mask:0xf bank_mask:0xf
        v_add_f32_dpp v{RA+1}, v{RA+1}, v{RA+1} row_ror:8 row_mask:0xf bank_mask:0xf
        s_mov_b64 exec, s[{sEx1}:{sEx1+1}]
        v_cvt_pk_bf16_f32 v{PUB}, v{RA}, v{RA+1}
        buffer_store_dword v{PUB}, v{MST}, {srd}, s{sA} offen
        """)
        if trace: stamp("pub")
        A(f"""
        v_cmp_u_f32 vcc, v{RA+1}, v{RA+1}
        s_mov_b64 exec, -1
        """)
    A.label("Lp1")
    if trace: stamp("p1_first")
    pload(0)
    if jzp == 1: jz_()
    if gap1 is not None:
        A.nop(gap1)
        pload(8)
    for x in jr[:jl]: A(x)
    A.label("Lp1w")
    pproc(0, (0 if gap1 is None else 2))
    A("s_cbranch_vccnz Lp1r")
    A.label("Lp1done")
    for x in jr[jl:]: A(x)
    if full:
        A(f"s_and_b32 s{sKM}, s{sKM}, s{sExK}\ns_cbranch_scc1 LkvB")
    ladder([e0, e1, e2, e3], "Lp2")
    A("s_branch Lp2")
    A.label("Lp1r")
    pload(0)
    if gap1 is not None:
        pproc(8, 3)
        A("s_cbranch_vccz Lp1done")
        pload(8)
    A(f"s_sub_u32 s{sSpin}, s{sSpin}, 1\ns_cbranch_scc0 Lp1w")
    A(f"""
    s_mov_b32 s{sSpin}, 0
    v_mov_b32 v{PUB}, 0x7fc07fc0
    s_waitcnt vmcnt(0)
    s_mov_b64 exec, s[{sEx1}:{sEx1+1}]
    buffer_store_dword v{PUB}, v{MST}, {srd}, s{sA} offen
    s_mov_b64 exec, -1
    s_branch Lp1done
    """)
    A.label("Lp2giveup")
    A(f"""
    s_mov_b32 s{sSpin}, 0
    s_waitcnt vmcnt(0)
    s_branch Lp2cont
    """)
    if timing:
        A.label("Ltm")
        A(f"s_memtime s[96:97]\ns_mov_b32 s98, s{sSpin}\ns_branch Ltmret")
    if steplog:
        A.label("Llog")
        A(f"""
        s_memrealtime s[80:81]
        s_memtime s[82:83]
        s_lshl_b32 s84, s{sStep}, 3
        s_add_u32 s84, s84, {WS_DBG + 8192}
        s_waitcnt lgkmcnt(0)
        v_mov_b32 v{PB+12}, s80
        v_mov_b32 v{PB+13}, s82
        s_mov_b64 exec, 1
        buffer_store_dwordx2 {v(PB+12,2)}, off, {srd}, s84
        s_mov_b64 exec, -1
        s_branch Llogret
        """)
    if full:
        kvpoll("B", "Lp2"); A("s_branch Lp2")
    A.label("Lexit")
    L = A.newlabel("Lfin")
    A(f"""
    s_cmp_lg_u32 s{sH}, 0
    s_cbranch_scc1 {L}
    """)
    pub_all()
    A(f"""
    s_mov_b64 exec, s[{sEx3}:{sEx3+1}]
    buffer_store_dword v{PUB}, v{MST}, {srd}, s{sMH} offen sc1
    s_add_u32 s{sMH}, s{sMH}, {MHS}
    s_waitcnt vmcnt(0)
    s_barrier
    s_and_b64 exec, exec, 16
    s_cbranch_execz {L}
    buffer_store_dword v{PUB}, v{MST}, {srd}, s{sMH} offen sc1
    """)
    A.label(L)
    A("s_mov_b64 exec, -1")
    if trace: A.label("Lexit2")
```

```python
from asmlib import *
from layout import *
import struct, math
def fbits(x): return struct.unpack("<I", struct.pack("<f", x))[0]

SRD = 4; sH, sW, sI, sS = 10, 11, 12, 13
sCnt, sSpin, sKV, sQ, sC, sXB = 14, 18, 16, 17, 26, 19
SRDW = 28; sT = 36; sKF = 22
sMask = 60
L16 = 1
def KW(ks, t): return a_((ks*2 + t)*4, 4)
def VW(ks, t): return a_(128 + (ks*2 + t)*4, 4)
def QW(ks, t): return v(128 + (ks*2 + t)*4, 4)
XB0 = 131072
XB1 = 98304

def emit_head_worker(A, stamps=False, slp=2, LA=3):
    srd = f"s[{SRD}:{SRD+3}]"; srw = f"s[{SRDW}:{SRDW+3}]"
    cv = lambda d, a, b: A(f"v_cvt_pk_bf16_f32 v{d}, v{a}, v{b}")
    A(f"""
    s_load_dwordx2 s[{SRD}:{SRD+1}], s[0:1], {KA['ws']}
    s_load_dwordx2 s[8:9], s[0:1], {KA['dbg']}
    s_load_dwordx4 s[48:51], s[0:1], {KA['Wq']}
    s_load_dwordx2 s[52:53], s[0:1], {KA['Wv']}
    s_load_dwordx2 s[56:57], s[0:1], {KA['x']}
    v_lshrrev_b32 v5, 6, v0
    v_and_b32 v2, 63, v0
    v_readfirstlane_b32 s{sW}, v5
    v_and_b32 v3, 15, v2
    v_lshrrev_b32 v4, 4, v2
    v_lshlrev_b32 v{L16}, 4, v2
    s_mov_b32 s{SRD+2}, {WS_SIZE}
    s_mov_b32 s{SRD+3}, 0x00020000
    s_mov_b32 s{SRDW+2}, {4*MB}
    s_mov_b32 s{SRDW+3}, 0x00020000
    s_mov_b32 s58, {2*MB}
    s_mov_b32 s59, 0x00020000
    s_mov_b32 s{sSpin}, {SPIN}
    s_mov_b32 s{sC}, {fbits(128**-0.5 * math.log2(math.e))}
    """)
    A(f"""
    v_lshlrev_b32 v5, 2, v4
    v_xor_b32 v5, v5, v3
    v_lshlrev_b32 v5, 4, v5
    v_lshl_add_u32 v5, v4, 13, v5
    s_lshl_b32 s{sT}, s{sH}, 8
    s_lshl_b32 s{sT+1}, s{sW}, 18
    s_add_u32 s{sT}, s{sT}, s{sT+1}
    v_add_u32 v10, s{sT}, v5
    v_lshrrev_b32 v5, 2, v3
    v_lshl_add_u32 v12, v4, 3, v5
    v_lshlrev_b32 v12, 8, v12
    v_xor_b32 v5, s{sW}, v5
    v_and_b32 v11, 3, v3
    v_lshl_add_u32 v5, v5, 2, v11
    v_lshl_add_u32 v12, v5, 4, v12
    v_add_u32 v13, 65536, v12
    v_xor_b32 v5, v4, v3
    v_lshlrev_b32 v11, 10, v3
    v_add_u32 v11, {XB0}, v11
    """)
    for b in range(4):
        A(f"v_xor_b32 v14, {4*b}, v5\nv_lshl_add_u32 v{6+b}, v14, 4, v11")
    A(f"""
    s_lshl_b32 s{sT+2}, s{sW}, 13
    s_mov_b32 s{sS}, s{sI}
    s_mov_b32 s{sXB}, {XB0}
    s_waitcnt lgkmcnt(0)
    """)
    def xdma(sseg):
        A(f"""
        s_lshl_b32 s{sT}, s{sseg}, 15
        s_and_b32 s{sT+1}, s{sW}, 1
        s_lshl_b32 s{sT+3}, s{sT+1}, 14
        s_add_u32 s{sT}, s{sT}, s{sT+3}
        s_lshr_b32 s{sT+3}, s{sW}, 1
        s_lshl_b32 s{sT+3}, s{sT+3}, 12
        s_add_u32 s{sT}, s{sT}, s{sT+3}
        s_lshl_b32 s{sT+1}, s{sT+1}, 7
        s_add_u32 s{sT+4}, s{sXB}, s{sT+2}
        """)
        for q in range(8):
            A(f"""
            s_xor_b32 s{sT+3}, s{sT+1}, {q*16}
            v_xor_b32 v14, s{sT+3}, v{L16}
            s_add_u32 m0, s{sT+4}, {q*1024}
            s_add_u32 s{sT+3}, s{sT}, {(8*(q >> 2) + (q & 3))*1024}
            buffer_load_dwordx4 v14, s[56:59], s{sT+3} offen lds
            """)
    A(f"""
    v_mul_u32_u24 v14, 640, v2
    s_lshl_b32 s{sT}, s{sI}, 7
    s_lshl_b32 s{sT+1}, s{sH}, 2
    s_add_u32 s{sT}, s{sT}, s{sT+1}
    v_add_u32 v14, s{sT}, v14
    s_lshl_b32 s{sKF}, s{sH}, 7
    s_lshl_b32 s{sT+1}, s{sI}, 4
    s_add_u32 s{sKF}, s{sKF}, s{sT+1}
    s_add_u32 s{sKF}, s{sKF}, 8192
    v_mov_b32 v15, s{sKF}
    v_cmp_gt_u32 vcc, 8192, v14
    s_add_u32 s{sKF}, s{sKF}, {WS_FL}
    s_mov_b32 s{sT}, {WS_FL}
    v_cndmask_b32 v14, v15, v14, vcc
    v_mov_b32 v15, s{sI}
    v_cndmask_b32 v15, v15, 0, vcc
    s_cmp_lg_u32 s{sW}, 0
    s_cbranch_scc1 Hnz
    s_mov_b64 exec, 0x3fff
    buffer_store_dword v15, v14, {srd}, s{sT} offen sc1
    s_mov_b64 exec, -1
    """)
    A.label("Hnz")
    xdma(sS)
    base = [50, 52, 48]
    dst = [lambda ks, t: ("a", (ks*2 + t)*4), lambda ks, t: ("a", 128 + (ks*2 + t)*4), lambda ks, t: ("v", 128 + (ks*2 + t)*4)]
    def wdma(n):
        if n % 4 == 0: A(f"s_mov_b32 s{SRDW}, s{base[n//4]}\ns_mov_b32 s{SRDW+1}, s{base[n//4]+1}")
        for q in range(8):
            A(f"""
            s_add_u32 m0, s{sT+2}, {(n % 4)*32768 + q*1024}
            s_mov_b32 s{sT+1}, {(128*(n % 4) + 4*q)*8192}
            buffer_load_dwordx4 v10, {srw}, s{sT+1} offen lds
            """)
    for n in range(3): wdma(n)
    for n in range(12):
        A(f"s_waitcnt vmcnt({8*(min(n + 3, 12) - n - 1)})")
        A("s_barrier")
        if stamps: A(f"s_memrealtime s[84:85]\ns_waitcnt lgkmcnt(0)\nv_writelane_b32 v116, s84, {n}")
        if n == 0:
            A(f"""
            s_cmp_lg_u32 s{sW}, 0
            s_cbranch_scc1 Hna
            v_mov_b32 v14, {DBG_ZERO}
            v_mov_b32 v15, 1
            s_mov_b64 exec, 1
            global_atomic_add v14, v15, s[8:9]
            s_mov_b64 exec, -1
            """)
            A.label("Hna")
        if n + 3 < 12: wdma(n + 3)
        for kk in range(4):
            for t in range(2):
                k, r0 = dst[n//4](4*(n % 4) + kk, t)
                for u in range(2):
                    A(f"ds_read_b64_tr_b16 {R(k, r0 + 2*u, 2)}, v{12 + ((n % 4) >> 1)} offset:{(n & 1)*32768 + kk*8192 + u*1024 + 8*t}")
            if kk == 1: A("s_waitcnt lgkmcnt(0)")
        A("s_waitcnt lgkmcnt(0)")
    if stamps:
        A(f"""
        s_memrealtime s[80:81]
        s_lshl_b32 s84, s2, 8
        s_add_u32 s84, s84, {WS_DBG + 65536}
        v_lshlrev_b32 v117, 2, v2
        buffer_store_dword v116, v117, {srd}, s84 offen
        """)
    sP, sPr, sRW, sRR = 15, 14, 20, 21
    EX = 73728; SLOT = 24576
    XF, ACC, PK = 20, 44, 92
    QF, AK_, AV_, SX, SM, KF, MF = 20, 36, 44, 52, 60, 64, 64
    VF, KM, VMr, PX, PM, OA, OP = 64, 80, 96, 104, 108, 36, 112
    X, Y, Z0, Z1 = 16, 17, 18, 19
    A(f"""
    v_lshrrev_b32 v5, 2, v3
    v_sub_u32 v5, v5, v4
    v_lshlrev_b32 v5, 3, v5
    v_and_b32 v11, 3, v3
    v_add_u32 v5, v5, v11
    s_and_b32 s{sT}, s{sW}, 1
    s_lshl_b32 s{sT}, s{sT}, 2
    v_add_u32 v5, s{sT}, v5
    """)
    for k in range(8): A(f"v_cmp_le_i32 s[{sMask+2*k}:{sMask+2*k+1}], {k}, v5")
    A(f"""
    v_cmp_gt_u32 s[76:77], 2, v4
    v_and_b32 v2, 7, v3
    v_lshl_add_u32 v2, v4, 3, v2
    v_lshlrev_b32 v2, 4, v2
    s_lshl_b32 s{sT}, s{sW}, 11
    v_add_u32 v3, s{sT}, v{L16}
    v_add_u32 v3, {EX}, v3
    v_add_u32 v4, {EX}, v{L16}
    s_lshr_b32 s{sT}, s{sW}, 1
    s_lshl_b32 s{sT}, s{sT}, 12
    v_add_u32 v5, s{sT}, v4
    v_mov_b32 v10, {DBG_TEAM}
    v_mov_b32 v11, 0xff800000
    s_mov_b32 s{sP}, s{sI}
    s_mov_b32 s{sPr}, 0
    s_mov_b32 s{sRW}, 0
    s_mov_b32 s{sRR}, 0
    s_barrier
    """)
    def flag(tag, soff, val):
        A(f"""
        s_waitcnt vmcnt(0) lgkmcnt(0)
        s_barrier
        s_cmp_lg_u32 s{sW}, 0
        s_cbranch_scc1 Hnf{tag}
        v_mov_b32 v14, {val}
        s_mov_b64 exec, 1
        buffer_store_dword v14, off, {srd}, s{soff} sc1
        s_mov_b64 exec, -1
        """)
        A.label(f"Hnf{tag}")
    A.label("H1top")
    if stamps:
        A(f"""
        s_memrealtime s[84:85]
        s_lshl_b32 s86, s2, 4
        s_and_b32 s87, s{sPr}, 15
        s_add_u32 s86, s86, s87
        s_lshl_b32 s86, s86, 2
        s_add_u32 s86, s86, {WS_DBG + 16384}
        s_waitcnt lgkmcnt(0)
        v_mov_b32 v14, s84
        buffer_store_dword v14, off, {srd}, s86
        """)
    A(f"""
    s_lshl_b32 s{sKV}, s{sP}, 5
    s_add_u32 s{sKV}, s{sKV}, s{sH}
    s_lshl_b32 s{sKV}, s{sKV}, 2
    s_add_u32 s{sKV}, s{sKV}, s{sW}
    s_lshl_b32 s{sKV}, s{sKV}, 12
    s_add_u32 s{sP}, s{sP}, 5
    s_xor_b32 s{sXB}, s{sXB}, {XB0 ^ XB1}
    s_cmp_ge_u32 s{sP}, 64
    s_cbranch_scc1 H1nx
    """)
    xdma(sP)
    A.label("H1nx")
    def xread(ks):
        for kt in range(2):
            A(f"ds_read_b128 {v(XF + (ks % 3)*8 + 4*kt, 4)}, v{6 + (ks & 3)} offset:{(ks >> 2)*256 + kt*16384}")
    xread(0); xread(1)
    for ks in range(16):
        if ks + 2 < 16:
            xread(ks + 2); A("s_waitcnt lgkmcnt(4)")
        else: A(f"s_waitcnt lgkmcnt({2*(15 - ks)})")
        for kt in range(2):
            xf = v(XF + (ks % 3)*8 + 4*kt, 4)
            for t in range(2):
                for m in range(3):
                    d = v(ACC + m*16 + (kt*2 + t)*4, 4)
                    c = d if ks else "0"
                    if m == 0: A(f"v_mfma_f32_16x16x32_bf16 {d}, {KW(ks,t)}, {xf}, {c}")
                    if m == 1: A(f"v_mfma_f32_16x16x32_bf16 {d}, {xf}, {VW(ks,t)}, {c}")
                    if m == 2: A(f"v_mfma_f32_16x16x32_bf16 {d}, {QW(ks,t)}, {xf}, {c}")
    for b in range(4): A(f"v_xor_b32 v{6+b}, {XB0 ^ XB1}, v{6+b}")
    A(f"""
    s_mul_i32 s{sT}, s{sW}, 6144
    s_add_u32 s{sT}, s{sT}, s{sRW}
    v_add_u32 v12, s{sT}, v{L16}
    s_nop 1
    """)
    ac = lambda m, kt, t: ACC + m*16 + (kt*2 + t)*4
    for kt in range(2):
        for t in range(2):
            cv(PK + kt*4 + 2*t, ac(0,kt,t), ac(0,kt,t)+1); cv(PK + kt*4 + 2*t + 1, ac(0,kt,t)+2, ac(0,kt,t)+3)
        A(f"buffer_store_dwordx4 {v(PK + kt*4, 4)}, v{L16}, {srd}, s{sKV} offen offset:{kt*1024} sc1")
    for t in range(2):
        for kt in range(2):
            cv(PK + 8 + t*4 + 2*kt, ac(1,kt,t), ac(1,kt,t)+1); cv(PK + 8 + t*4 + 2*kt + 1, ac(1,kt,t)+2, ac(1,kt,t)+3)
        A(f"buffer_store_dwordx4 {v(PK + 8 + t*4, 4)}, v{L16}, {srd}, s{sKV} offen offset:{2048 + t*1024} sc1")
    for kt in range(2):
        for t in range(2):
            cv(PK + 16 + kt*4 + 2*t, ac(2,kt,t), ac(2,kt,t)+1); cv(PK + 16 + kt*4 + 2*t + 1, ac(2,kt,t)+2, ac(2,kt,t)+3)
    for k in range(6): A(f"ds_write_b128 v12, {v(PK + 4*k, 4)} offset:{1024*k}")
    A(f"""
    s_add_u32 s{sRW}, s{sRW}, {SLOT}
    s_cmp_eq_u32 s{sRW}, {3*SLOT}
    s_cselect_b32 s{sRW}, 0, s{sRW}
    s_add_u32 s{sPr}, s{sPr}, 1
    s_cmp_ge_u32 s{sP}, 64
    s_cselect_b32 s{sPr}, 15, s{sPr}
    """)
    A(f"s_cselect_b32 s{sT}, 99, s{sP}")
    flag("1", sKF, f"s{sT}")
    A(f"""
    s_cmp_lt_u32 s{sPr}, {LA}
    s_cbranch_scc1 H1top
    """)
    A.label("H3top")
    A(f"""
    s_lshl_b32 s{sQ}, s{sS}, 5
    s_add_u32 s{sQ}, s{sQ}, s{sH}
    s_lshl_b32 s{sQ}, s{sQ}, 13
    s_and_b32 s{sT}, s{sW}, 1
    s_lshl_b32 s{sT}, s{sT}, 10
    s_add_u32 s{sQ}, s{sQ}, s{sT}
    s_add_u32 s{sT}, s{sT}, s{sRR}
    v_add_u32 v12, s{sRR}, v{L16}
    v_add_u32 v13, s{sT}, v{L16}
    s_lshr_b32 s{sT}, s{sW}, 1
    s_lshl_b32 s{sT+1}, s{sT}, 12
    s_add_u32 s{sQ}, s{sQ}, s{sT+1}
    s_add_u32 s{sQ}, s{sQ}, {WS_O}
    s_mul_i32 s{sT}, s{sT}, 12288
    """)
    for sl in range(4):
        A(f"ds_read_b128 {v(QF + 4*sl, 4)}, v13 offset:{sl*6144 + 4096}")
        for kt in range(2): A(f"ds_read_b128 {v(KF + 8*sl + 4*kt, 4)}, v12 offset:{sl*6144 + kt*1024}")
    A(f"v_add_u32 v12, s{sT}, v12")
    A("s_waitcnt lgkmcnt(0)")
    for sl in range(4):
        for kt in range(2):
            d = v(SX + 4*kt, 4)
            A(f"v_mfma_f32_16x16x32_bf16 {d}, {v(KF + 8*sl + 4*kt, 4)}, {v(QF + 4*sl, 4)}, {d if sl else 0}")
    A.nop(8)
    for k in range(8): A(f"v_cndmask_b32 v{SX+k}, v11, v{SX+k}, s[{sMask+2*k}:{sMask+2*k+1}]")
    A(f"""
    v_max3_f32 v{X}, v{SX}, v{SX+1}, v{SX+2}
    v_max3_f32 v{X}, v{X}, v{SX+3}, v{SX+4}
    v_max3_f32 v{X}, v{X}, v{SX+5}, v{SX+6}
    v_max_f32 v{X}, v{X}, v{SX+7}
    s_cmp_lg_u32 s{sW}, 0
    s_cbranch_scc1 H3go
    """)
    A(f"s_cmp_lg_u32 s{sS}, s{sI}\ns_cbranch_scc1 Htd")
    A.label("Htw")
    A(f"""
    global_load_dword v14, v10, s[8:9] sc1
    s_sub_u32 s{sSpin}, s{sSpin}, 1
    s_cbranch_scc1 Htg
    s_waitcnt vmcnt(0)
    v_readfirstlane_b32 s{sT}, v14
    s_cmp_ge_u32 s{sT}, 32
    s_cbranch_scc1 Htd
    s_sleep 16
    s_branch Htw
    """)
    A.label("Htg")
    A(f"s_mov_b32 s{sSpin}, 0")
    A.label("Htd")
    A(f"""
    s_mul_i32 s{sT+1}, s{sS}, {MHS}
    s_add_u32 s{sT+1}, s{sT+1}, {WS_MH + MHS + 8192}
    """)
    A.label("H3poll")
    A(f"""
    buffer_load_dword v14, off, {srd}, s{sT+1} sc1
    s_sub_u32 s{sSpin}, s{sSpin}, 1
    s_cbranch_scc1 H3gv
    s_waitcnt vmcnt(0)
    v_readfirstlane_b32 s{sT}, v14
    s_cmp_lg_u32 s{sT}, -1
    s_cbranch_scc1 H3go
    s_sleep {slp}
    s_branch H3poll
    """)
    A.label("H3gv")
    A(f"s_mov_b32 s{sSpin}, 0")
    A.label("H3go")
    A(f"""
    s_barrier
    s_mul_i32 s{sT}, s{sS}, {MHS}
    s_add_u32 s{sT}, s{sT}, {WS_MH}
    s_add_u32 s{sT+1}, s{sT}, 4096
    """)
    for ks in range(16):
        off = ks_off(ks)
        A(f"buffer_load_dwordx4 {v(MF + 4*ks, 4)}, v2, {srd}, s{sT + (off >> 12)} offen offset:{off & 4095} sc1")
    for ks in range(16):
        A(f"s_waitcnt vmcnt({15 - ks})")
        mf = v(MF + 4*ks, 4)
        for t in range(2):
            d = v(AK_ + 4*t, 4); A(f"v_mfma_f32_16x16x32_bf16 {d}, {KW(ks,t)}, {mf}, {d if ks else 0}")
        for t in range(2):
            d = v(AV_ + 4*t, 4); A(f"v_mfma_f32_16x16x32_bf16 {d}, {mf}, {VW(ks,t)}, {d if ks else 0}")
        if 8 <= ks < 12:
            sl, t = (ks - 8) >> 1, ks & 1
            A(f"ds_read_b128 {v(VF + 8*sl + 4*t, 4)}, v12 offset:{sl*6144 + 2048 + t*1024}")
    A.nop(4)
    for k in range(4): cv(KM + k, AK_ + 2*k, AK_ + 2*k + 1)
    for k in range(4): cv(KM + 4 + k, AV_ + 2*k, AV_ + 2*k + 1)
    A(f"""
    ds_write_b128 v3, {v(KM,4)}
    ds_write_b128 v3, {v(KM+4,4)} offset:1024
    s_waitcnt lgkmcnt(0)
    s_barrier
    """)
    for sl in range(4): A(f"ds_read_b128 {v(KM + 4*sl, 4)}, v4 offset:{2048*sl}")
    for sl in range(2): A(f"ds_read_b128 {v(VMr + 4*sl, 4)}, v5 offset:{2048*sl + 1024}")
    for sl in range(4):
        A(f"s_waitcnt lgkmcnt({5 - sl})")
        A(f"v_mfma_f32_16x16x32_bf16 {v(SM,4)}, {v(KM + 4*sl, 4)}, {v(QF + 4*sl, 4)}, {v(SM,4) if sl else 0}")
    A.nop(8)
    for k in range(4): A(f"v_cndmask_b32 v{SM+k}, v11, v{SM+k}, s[76:77]")
    A(f"""
    v_max3_f32 v{X}, v{X}, v{SM}, v{SM+1}
    v_max3_f32 v{Y}, v{X}, v{SM+2}, v{SM+3}
    v_max3_f32 v{X}, v{X}, v{SM+2}, v{SM+3}
    s_nop 1
    v_permlane16_swap_b32 v{X}, v{Y}
    v_max_f32 v{Z0}, v{X}, v{Y}
    v_max_f32 v{Z1}, v{X}, v{Y}
    s_nop 1
    v_permlane32_swap_b32 v{Z0}, v{Z1}
    v_max_f32 v{X}, v{Z0}, v{Z1}
    v_mul_f32 v{X}, s{sC}, v{X}
    """)
    for k in range(12): A(f"v_fma_f32 v{SX+k}, v{SX+k}, s{sC}, -v{X}")
    for k in range(12): A(f"v_exp_f32 v{SX+k}, v{SX+k}")
    for k in range(6): cv(PX + k, SX + 2*k, SX + 2*k + 1)
    A("s_waitcnt lgkmcnt(0)\ns_nop 0")
    for sl in range(2):
        for t in range(2):
            A(f"v_mfma_f32_16x16x32_bf16 {v(OA + 8*sl + 4*t, 4)}, {v(VF + 8*sl + 4*t, 4)}, {v(PX,4)}, 0")
    for sl in range(2):
        for t in range(2):
            d = v(OA + 8*sl + 4*t, 4)
            A(f"v_mfma_f32_16x16x16_bf16 {d}, {v(VMr + 4*sl + 2*t, 2)}, {v(PM,2)}, {d}")
    for k in range(0, 12, 2): A(f"v_add_f32 v{SX+k}, v{SX+k}, v{SX+k+1}")
    for k in range(0, 12, 4): A(f"v_add_f32 v{SX+k}, v{SX+k}, v{SX+k+2}")
    A(f"""
    v_add_f32 v{X}, v{SX}, v{SX+4}
    v_add_f32 v{Y}, v{X}, v{SX+8}
    v_add_f32 v{X}, v{X}, v{SX+8}
    s_nop 1
    v_permlane16_swap_b32 v{X}, v{Y}
    v_add_f32 v{Z0}, v{X}, v{Y}
    v_add_f32 v{Z1}, v{X}, v{Y}
    s_nop 1
    v_permlane32_swap_b32 v{Z0}, v{Z1}
    v_add_f32 v{X}, v{Z0}, v{Z1}
    v_rcp_f32 v{X}, v{X}
    s_nop 0
    """)
    for k in range(16): A(f"v_mul_f32 v{OA+k}, v{OA+k}, v{X}")
    for k in range(8): cv(OP + k, OA + 2*k, OA + 2*k + 1)
    for sl in range(2):
        A(f"buffer_store_dwordx4 {v(OP + 4*sl, 4)}, v{L16}, {srd}, s{sQ} offen offset:{2048*sl} sc1")
    A(f"""
    s_add_u32 s{sRR}, s{sRR}, {SLOT}
    s_cmp_eq_u32 s{sRR}, {3*SLOT}
    s_cselect_b32 s{sRR}, 0, s{sRR}
    s_lshl_b32 s{sT}, s{sS}, 7
    s_lshl_b32 s{sT+1}, s{sH}, 2
    s_add_u32 s{sT}, s{sT}, s{sT+1}
    s_add_u32 s{sT}, s{sT}, {WS_OFL}
    s_add_u32 s{sS}, s{sS}, 5
    """)
    flag("3", sT, "1")
    A(f"""
    s_cmp_lt_u32 s{sP}, 64
    s_cbranch_scc1 H1top
    s_cmp_lt_u32 s{sS}, 64
    s_cbranch_scc1 H3top
    s_branch Lend
    """)

if __name__ == "__main__":
    A = Asm(); emit_head_worker(A); A.label("Lend")
    for e in check(A.lines): print("HAZARD", e)
    print(len(A.lines))
```

```python
MB = 1 << 20
WS_KV = 0
WS_Q  = 32*MB
WS_O  = 48*MB
WS_Y  = 64*MB
WS_P  = 72*MB
P_SLOT = 128*32*64
WS_M  = 73*MB
WS_MH = 74*MB
WS_FL = 75*MB
WS_DBG = 76*MB
WS_SIZE = 256*MB
KA = dict(x=0, mem0=8, Wq=16, Wk=24, Wv=32, Wo=40, seg=48, Bq=56, Bk=64, Bv=72, shift=80, ssmk=88, ssmD=96, gate=104, out=112, dbg=120, ws=128)
def ks_off(ks):
    return (4*(ks & 3) + (ks >> 2))*512
DBG_XCC = 0
DBG_TEAM = 32
DBG_CONV = 36
DBG_ZERO = 40
DBG_MPROG = 128
WS_OFL = WS_FL
WS_KVF = WS_FL + 8192
WS_B = WS_Y
WS_G = WS_Y + 4*MB
SPIN = 0x40000

PM_OFF = 262144
import os
RS = PM_OFF + 8192 + int(os.environ.get("RSPAD", "4096"))
MHS = 8320
WS_SY = WS_M
```

```python
import sys
from asmlib import *
from layout import *
import chain, headw, convout
NAME = "gated_mix__memory_aug_recurrent_mem_tr__ssm_conv_h3__prompt"
CHAIN_CFG = dict()
def prefetch_code(A, tag, end, n=1):
    A(f"s_getpc_b64 s[40:41]")
    A.label(f"Lpc{tag}")
    for k in range(n):
        A(f"""
        v_lshlrev_b32 v255, 7, v0
        v_add_u32 v255, {k*32768}, v255
        v_min_u32 v255, {end}-Lpc{tag}-4, v255
        global_load_dword v254, v255, s[40:41]
        """)
def body(stamps=False, roles="CHO", pf=1, slp=2, LA=3, spread=1, **kw):
    A = Asm()
    A(f"""
    s_cmp_ge_u32 s2, 256
    s_cbranch_scc1 Lend2
    s_load_dwordx2 s[8:9], s[0:1], {KA['dbg']}
    s_getreg_b32 s3, hwreg(HW_REG_XCC_ID, 0, 3)
    """)
    if stamps: A("s_memrealtime s[78:79]")
    if spread: A(f"""
    s_lshl_b32 s4, s3, 2
    s_add_u32 s5, s3, 2
    s_mul_i32 s5, s5, 86
    s_lshr_b32 s5, s5, 8
    s_lshl_b32 s5, s5, 6
    s_add_u32 s4, s4, s5
    """)
    else: A("s_lshl_b32 s4, s3, 2")
    A(f"""
    v_mov_b32 v1, s4
    v_mov_b32 v2, 1
    v_mov_b32 v4, 0
    v_cmp_eq_u32 vcc, 0, v0
    s_and_saveexec_b64 s[20:21], vcc
    s_cbranch_execz Lnoat
    s_waitcnt lgkmcnt(0)
    global_atomic_add v3, v1, v2, s[8:9] sc0
    s_waitcnt vmcnt(0)
    ds_write_b32 v4, v3
    s_waitcnt lgkmcnt(0)
    """)
    A.label("Lnoat")
    A(f"""
    s_mov_b64 exec, s[20:21]
    s_barrier
    ds_read_b32 v3, v4
    s_waitcnt lgkmcnt(0)
    v_readfirstlane_b32 s10, v3
    s_barrier
    {"s_memrealtime s[88:89]" if stamps else ""}
    s_cmp_ge_u32 s10, 32
    s_cbranch_scc1 Lend2
    s_lshl_b32 s2, s3, 5
    s_add_u32 s2, s2, s10
    s_cmp_eq_u32 s3, 0
    s_cbranch_scc1 Rchain
    s_sub_u32 s10, s2, 32
    s_cmp_ge_u32 s10, 160
    s_cbranch_scc1 Rconv
    s_mul_i32 s4, s10, 205
    s_lshr_b32 s4, s4, 10
    s_mul_i32 s5, s4, 5
    s_sub_u32 s12, s10, s5
    s_mov_b32 s10, s4
    """)
    assert all((r*205) >> 10 == r//5 for r in range(160))
    if pf: prefetch_code(A, "H", "Rconv")
    if "H" in roles: headw.emit_head_worker(A, stamps, slp, LA)
    else: A("s_branch Lend2")
    A.label("Rconv")
    A("s_sub_u32 s10, s10, 160")
    if pf: prefetch_code(A, "O", "Rchain")
    if "O" in roles: convout.emit_conv_out(A, stamps, slp)
    else: A("s_branch Lend2")
    A.label("Rchain")
    if pf: prefetch_code(A, "C", "Lend2")
    if "C" in roles:
        chain.emit_chain_init(A, nzero=160, stamps=stamps)
        if stamps: A("s_memrealtime s[76:77]")
        chain.emit_chain_loop(A, full=1, steplog=stamps, **dict(CHAIN_CFG, **kw))
    else: A("s_branch Lend2")
    A.label("Lend")
    if stamps:
        A(f"""
        s_memrealtime s[74:75]
        s_waitcnt vmcnt(0) lgkmcnt(0)
        s_nop 15
        s_lshl_b32 s36, s2, 4
        s_add_u32 s36, s36, {WS_DBG}
        v_mov_b32 v0, s78
        v_mov_b32 v1, s76
        v_mov_b32 v2, s74
        v_mov_b32 v3, s18
        buffer_store_dwordx4 v[0:3], off, s[4:7], s36
        v_mov_b32 v4, s80
        v_mov_b32 v5, s82
        s_add_u32 s36, s36, 4096
        v_mov_b32 v6, s86
        v_mov_b32 v7, s88
        buffer_store_dwordx4 v[4:7], off, s[4:7], s36
        """)
    A.label("Lend2")
    errs = check(A.lines)
    for e in errs: print("HAZARD", e, file=sys.stderr)
    return A.text()
def full_file(**kw):
    ref = open(f"cdna_kernels/{NAME}.s.ref").read() if len(sys.argv) < 0 else None
    hdr = open("header.txt").read()
    return hdr + f"""; @launch grid=(256,1,1) block=(256,1,1) lds=163840
.amdgcn_target "amdgcn-amd-amdhsa--gfx950"
.text
.globl {NAME}_kernel
.p2align 8
.type {NAME}_kernel,@function
{NAME}_kernel:
""" + body(**kw) + f"""s_endpgm
.section .rodata,"a"
.p2align 6
.amdhsa_kernel {NAME}_kernel
  .amdhsa_next_free_vgpr 512
  .amdhsa_next_free_sgpr 102
  .amdhsa_accum_offset 256
  .amdhsa_group_segment_fixed_size 0
  .amdhsa_kernarg_size 136
  .amdhsa_user_sgpr_count 2
  .amdhsa_user_sgpr_kernarg_segment_ptr 1
  .amdhsa_system_sgpr_workgroup_id_x 1
  .amdhsa_float_denorm_mode_32 3
.end_amdhsa_kernel
"""
if __name__ == "__main__":
    out = sys.argv[1] if len(sys.argv) > 1 else f"cdna_kernels/{NAME}.s"
    open(out, "w").write(full_file())
    print("written", out)
```

```python
from asmlib import *
from layout import *
import struct, math

def fbits(x): return struct.unpack("<I", struct.pack("<f", x))[0]

M0_, S0_ = 0, 32
AQ = [64, 68]; AK = [72, 76]; AV = [80, 84]; PA = 64
KX, VX = 88, 96
PB = 104
SELT, SELR = 120, 124
IDX, SMW, PST, PLD, MST, MOWN = 128, 129, 130, 131, 132, 133
L16 = 15
MX = [None, 134, 135, 136]
SMR, PUB, WL = 137, 138, 139
SENT = 140
SRD = 4
sH, sW = 10, 11
sA, sB, sCc, sAM, sKV, sStep, sSpin, sA2, sMH = 12, 13, 14, 15, 16, 17, 18, 19, 20
sEx1 = 60
sM7 = 35
sBk1, sBk2 = 42, 56
sHW, sMP = 22, 23
sFW = 62
sExK, sKM = 34, 24
sExF, sFR, sPM = 46, 45, 48
sC = 26
SRDW = 28
sF = 32
sT = 36
sOne = 58
sRdy = 21
sTM = 72
LDS_SC = 8192
LDS_W = 16384
WPW = 36864

LDS_CH = [("Q", 2), ("Q", 3), ("K", 2), ("K", 6), ("V", 6), ("V", 7), ("O", 1, 1), ("O", 2, 1), ("O", 3, 1)]
ALL_CH = [(m, i) for m in "QKV" for i in range(8)] + [("O", j, i) for j in range(4) for i in range(2)]
REG_CH = [c for c in ALL_CH if c not in LDS_CH]
ORDER = REG_CH + LDS_CH
def reg_of(ch, t):
    n = REG_CH.index(ch)*2 + t
    if n < 32: return a_(8*n, 8), ("a", 8*n)
    return v(144 + 8*(n-32), 8), ("v", 144 + 8*(n-32))
def lds_off(ch, t):
    return LDS_CH.index(ch)*4096 + t*2048

def sm(A, acc, afrag, b):
    A(f"v_smfmac_f32_16x16x64_bf16 {v(acc,4)}, {v(afrag,4)}, {b}, v{IDX}")

def emit_chain_init(A, dbg_team_off=DBG_TEAM, nzero=0, stamps=False):
    A(f"""
    s_load_dwordx2 s[{SRD}:{SRD+1}], s[0:1], {KA['ws']}
    s_load_dwordx2 s[8:9], s[0:1], {KA['dbg']}
    s_load_dwordx4 s[48:51], s[0:1], {KA['Wq']}
    s_load_dwordx4 s[52:55], s[0:1], {KA['Wv']}
    s_load_dwordx2 s[56:57], s[0:1], {KA['mem0']}
    v_lshrrev_b32 v1, 6, v0
    v_and_b32 v2, 63, v0
    v_readfirstlane_b32 s{sW}, v1
    v_and_b32 v3, 15, v2
    v_lshrrev_b32 v4, 4, v2
    v_lshlrev_b32 v{L16}, 4, v2
    s_mov_b32 s{SRD+2}, {WS_SIZE}
    s_mov_b32 s{SRD+3}, 0x00020000
    s_mov_b32 s{SRDW+2}, {4*MB}
    s_mov_b32 s{SRDW+3}, 0x00020000
    """)
    A(f"""
    v_mov_b32 v5, 0x4444
    v_mov_b32 v6, 0xeeee
    v_cmp_gt_u32 vcc, 8, v3
    s_nop 1
    v_cndmask_b32 v{IDX}, v6, v5, vcc
    """)
    A(f"""
    v_lshrrev_b32 v5, 1, v4
    v_lshlrev_b32 v5, 2, v5
    v_lshrrev_b32 v6, 3, v3
    v_lshl_add_u32 v5, v6, 1, v5
    v_and_b32 v6, 1, v4
    v_add_u32 v5, v5, v6
    s_lshl_b32 s{sT}, s{sW}, 3
    v_add_u32 v5, s{sT}, v5
    v_lshlrev_b32 v5, 11, v5
    v_and_b32 v8, 7, v3
    v_lshl_add_u32 v5, v8, 3, v5
    s_lshl_b32 s{sT+1}, s{sH}, 6
    v_add_u32 v{PST}, s{sT+1}, v5
    """)
    A(f"""
    s_lshl_b32 s{sT}, s{sW}, 5
    s_add_u32 s{sT}, s{sT}, s{sH}
    s_lshl_b32 s{sT+2}, s{sT}, 11
    v_add_u32 v{PLD}, s{sT+2}, v{L16}
    s_lshl_b32 s{sT}, s{sT}, 6
    s_add_u32 s{sT}, s{sT}, {PM_OFF}
    v_and_b32 v5, 3, v3
    v_lshlrev_b32 v5, 2, v5
    v_lshl_add_u32 v5, v4, 4, v5
    v_add_u32 v{MST}, s{sT}, v5
    v_lshrrev_b32 v5, 2, v3
    v_lshl_add_u32 v{MST}, v5, 29, v{MST}
    """)
    A(f"""
    s_lshl_b32 s{sT}, s{sW}, 11
    v_add_u32 v{MOWN}, s{sT}, v{L16}
    v_xor_b32 v{MX[1]}, 2048, v{MOWN}
    v_xor_b32 v{MX[2]}, 4096, v{MOWN}
    v_xor_b32 v{MX[3]}, 6144, v{MOWN}
    """)
    A(f"""
    v_and_b32 v5, 31, v2
    v_lshlrev_b32 v{SMR}, 4, v5
    v_lshrrev_b32 v7, 3, v3
    s_lshr_b32 s{sT}, s{sW}, 1
    s_lshl_b32 s{sT}, s{sT}, 11
    s_and_b32 s{sT+1}, s{sW}, 1
    s_lshl_b32 s{sT+1}, s{sT+1}, 3
    s_add_u32 s{sT}, s{sT}, s{sT+1}
    v_mov_b32 v{PUB}, 1
    v_xor_b32 v5, 32, v2
    v_lshlrev_b32 v5, 4, v5
    v_add_u32 v{SMW}, s{sT}, v5
    s_mul_i32 s{sT+2}, s{sW}, {WPW}
    s_add_u32 s{sT+2}, s{sT+2}, {LDS_W}
    v_add_u32 v{WL}, s{sT+2}, v{L16}
    v_mov_b32 v{SENT}, -1
    v_mov_b32 v{SENT+1}, -1
    v_mov_b32 v{SENT+2}, -1
    v_mov_b32 v{SENT+3}, -1
    """)
    A(f"""
    v_mov_b32 v6, 0x3f80
    v_and_b32 v5, 4, v3
    v_lshlrev_b32 v5, 2, v5
    v_lshlrev_b32 v9, v5, v6
    v_and_b32 v5, 1, v8
    v_lshlrev_b32 v5, 4, v5
    v_lshlrev_b32 v5, v5, v6
    v_and_b32 v6, 3, v3
    v_lshl_add_u32 v6, v6, 1, v7
    """)
    for r in range(4):
        A(f"v_cmp_eq_u32 vcc, {r}, v6\ns_nop 1\nv_cndmask_b32 v{SELR+r}, 0, v9, vcc")
    A(f"""
    v_lshrrev_b32 v6, 1, v3
    v_and_b32 v6, 1, v6
    v_lshl_add_u32 v6, v7, 1, v6
    v_lshrrev_b32 v9, 2, v3
    v_xor_b32 v9, v9, v4
    v_and_b32 v9, 1, v9
    v_lshl_add_u32 v6, v9, 3, v6
    """)
    for r in range(4):
        A(f"v_cmp_eq_u32 vcc, {r}, v6\ns_nop 1\nv_cndmask_b32 v{SELT+r}, 0, v5, vcc")
    A(f"""
    s_mov_b32 s{sEx1}, 0x000f001f
    s_mov_b32 s{sEx1+1}, 0x000f000f
    s_mov_b32 s{sM7}, 0xffffff7f
    s_add_u32 s{sHW}, s{sH}, s{sW}
    s_mov_b32 s{sMP}, {WS_MH - PM_OFF - MHS}
    s_mov_b32 s{sExF}, 0x00010001
    s_mov_b32 s{sExF+1}, 0x00010001
    s_cmp_eq_u32 s{sW}, 0
    s_cselect_b64 s[{sExF}:{sExF+1}], s[{sExF}:{sExF+1}], 0
    s_lshl_b32 s{sFW}, s{sH}, 3
    s_add_u32 s{sFW}, s{sFW}, {WS_SY}
    s_lshl_b32 s{sFR}, s{sW}, 8
    s_add_u32 s{sFR}, s{sFR}, {WS_SY}
    s_mov_b32 s{sAM}, {WS_P + PM_OFF}
    s_mov_b32 s{sC}, {fbits(128**-0.5 * math.log2(math.e))}
    s_mov_b32 s{sOne}, 0x3f803f80
    s_mov_b32 s{sOne+1}, 0x3e803e80
    s_mov_b32 s{sA}, {WS_P}
    s_mov_b32 s{sB}, {WS_P + RS}
    s_mov_b32 s{sCc}, {WS_P + 2*RS}
    s_mov_b32 s{sMH}, {WS_MH - PM_OFF}
    s_lshl_b32 s{sKV}, s{sH}, 3
    s_add_u32 s{sKV}, s{sKV}, s{sW}
    s_lshl_b32 s{sKV}, s{sKV}, 11
    s_mov_b32 s{sStep}, 0
    s_mov_b32 s{sSpin}, {SPIN}
    """)
    A(f"s_lshl_b32 s{sF}, s{sW}, 18")
    A(f"""
    v_lshrrev_b32 v5, 1, v4
    v_and_b32 v7, 1, v4
    v_lshl_add_u32 v6, v5, 3, v7
    v_lshlrev_b32 v6, 13, v6
    v_lshlrev_b32 v8, 2, v4
    v_xor_b32 v8, v8, v3
    v_lshl_add_u32 v6, v8, 4, v6
    s_lshl_b32 s{sT}, s{sH}, 8
    v_add_u32 v0, s{sT}, v6
    v_lshrrev_b32 v6, 3, v2
    v_lshlrev_b32 v6, 10, v6
    v_and_b32 v8, 7, v2
    v_lshl_add_u32 v6, v8, 4, v6
    s_lshl_b32 s{sT}, s{sH}, 17
    s_lshl_b32 s{sT+1}, s{sW}, 8
    s_add_u32 s{sT}, s{sT}, s{sT+1}
    v_add_u32 v1, s{sT}, v6
    v_lshrrev_b32 v9, 2, v3
    v_and_b32 v6, 3, v3
    v_lshl_add_u32 v12, v4, 3, v9
    v_lshlrev_b32 v12, 8, v12
    v_xor_b32 v10, s{sW}, v9
    v_lshl_add_u32 v10, v10, 2, v6
    v_lshl_add_u32 v12, v10, 4, v12
    v_lshrrev_b32 v8, 3, v3
    v_and_b32 v9, 1, v9
    v_lshlrev_b32 v13, 3, v5
    v_lshl_add_u32 v13, v7, 2, v13
    v_add_u32 v13, v13, v9
    v_lshlrev_b32 v13, 7, v13
    v_lshl_add_u32 v13, v8, 5, v13
    v_lshl_add_u32 v13, v6, 3, v13
    v_and_b32 v14, 7, v3
    v_lshlrev_b32 v14, 10, v14
    v_lshl_add_u32 v14, v5, 8, v14
    v_lshl_add_u32 v14, v7, 5, v14
    v_lshl_add_u32 v14, v8, 4, v14
    s_lshr_b32 s{sT}, s{sF}, 12
    v_add_u32 v4, s{sT}, v14
    v_mov_b32 v2, v12
    v_mov_b32 v3, v13
    s_lshl_b32 s{sT+2}, s{sW}, 13
    s_lshl_b32 s{sT+3}, s{sW}, 12
    s_waitcnt lgkmcnt(0)
    """)
    srw = f"s[{SRDW}:{SRDW+3}]"
    base = {"Q": 48, "K": 50, "V": 52, "O": 54}
    HELD = {ch: 8 + 16*k for k, ch in enumerate(LDS_CH[:7])}
    STG = [(m, ii, hf) for m in "QKV" for ii in range(2) for hf in range(2)] + [("O", 0, 0), ("O", 0, 2), ("O", 1, 0)]
    NS = len(STG)
    cur = [None]
    def setm(m):
        if cur[0] != m:
            cur[0] = m
            A(f"s_mov_b32 s{SRDW}, s{base[m]}\ns_mov_b32 s{SRDW+1}, s{base[m]+1}")
    def ochunk(j, i, sreg, off):
        A(f"s_xor_b32 s{sT}, s{sW}, {j}\ns_lshl_b32 s{sT}, s{sT}, 15")
        for q in range(4):
            A(f"""
            s_add_u32 m0, s{sreg}, {off + q*1024}
            s_add_u32 s{sT+1}, s{sT}, {q*8192 + i*128}
            buffer_load_dwordx4 v1, {srw}, s{sT+1} offen lds
            """)
    def issue(n):
        st = STG[n]; buf = LDS_W + (n % 4)*32768
        setm(st[0])
        if st[0] == "O":
            for jj in range(2): ochunk(st[2] + jj, st[1], sT+2, buf + jj*4096)
        else:
            for q in range(8):
                gb = q >> 1
                d = 256*st[1] + 128*st[2] + 16*(gb >> 1) + 4*(gb & 1) + 2*(q & 1)
                A(f"""
                s_add_u32 m0, s{sT+2}, {buf + q*1024}
                s_add_u32 s{sT+1}, s{sF}, {d*8192}
                buffer_load_dwordx4 v0, {srw}, s{sT+1} offen lds
                """)
    def dest(ch, t):
        if ch in HELD: return "v", HELD[ch] + 8*t
        return reg_of(ch, t)[1]
    def oread(ch, kind_r0, ad, off):
        for t in range(2):
            kind, r0 = kind_r0(t)
            for u in range(4):
                A(f"ds_read_b64_tr_b16 {R(kind, r0 + 2*u, 2)}, v{ad} offset:{off + (16*(u >> 1) + 2*(u & 1))*128 + 64*t}")
    for n in range(3): issue(n)
    for so in (sA, sB, sCc):
        A(f"buffer_store_dwordx4 {v(SENT,4)}, v{PLD}, s[{SRD}:{SRD+3}], s{so} offen")
        A(f"buffer_store_dwordx4 {v(SENT,4)}, v{PLD}, s[{SRD}:{SRD+3}], s{so} offen offset:1024")
        A(f"buffer_store_dword v{SENT}, v{MST}, s[{SRD}:{SRD+3}], s{so} offen")
    A(f"""
    s_mov_b64 exec, s[{sExF}:{sExF+1}]
    buffer_store_dwordx2 {v(SENT,2)}, v{MOWN}, s[{SRD}:{SRD+3}], s{sFW} offen
    s_mov_b64 exec, -1
    v_mbcnt_lo_u32_b32 v5, -1, 0
    v_mbcnt_hi_u32_b32 v5, -1, v5
    v_mul_u32_u24 v5, {MHS}, v5
    s_cmp_eq_u32 s{sHW}, 0
    s_cselect_b64 exec, -1, 0
    s_mov_b32 s{sT}, {WS_MH + MHS + 8192}
    buffer_store_dword v{SENT}, v5, s[{SRD}:{SRD+3}], s{sT} offen sc1
    s_cselect_b64 exec, 16, 0
    v_mov_b32 v{MST}, {PM_OFF + 8192}
    s_mov_b64 exec, -1
    """)
    for n in range(NS):
        st = STG[n]; buf = LDS_W + (n % 4)*32768
        younger = 8*(min(n + 3, NS + 1) - n - 1) + (9 if n < 3 else 0)
        A(f"s_waitcnt vmcnt({younger})")
        A("s_barrier")
        if stamps: A(f"s_memrealtime s[84:85]\ns_waitcnt lgkmcnt(0)\nv_writelane_b32 v7, s84, {n}")
        if n == 3:
            L = A.newlabel("Lann")
            A(f"""
            s_cmp_lg_u32 s{sW}, 0
            s_cbranch_scc1 {L}
            v_mov_b32 v5, {dbg_team_off}
            v_mov_b32 v6, 1
            s_mov_b64 exec, 1
            global_atomic_add v5, v6, s[8:9]
            s_mov_b64 exec, -1
            """)
            A.label(L)
        if n + 3 < NS: issue(n + 3)
        if n + 3 == NS:
            ochunk(2, 1, sT+3, 147456); ochunk(3, 1, sT+3, 0)
        if st[0] == "O":
            A(f"s_add_u32 s{sT}, s{sT+2}, {buf}\nv_add_u32 v5, s{sT}, v3")
            for jj in range(2):
                ch = ("O", st[2] + jj, st[1])
                oread(ch, lambda t: dest(ch, t), 5, jj*4096)
                A("s_waitcnt lgkmcnt(0)")
        else:
            for j in range(4):
                A(f"""
                s_xor_b32 s{sT}, s{sW}, {j}
                s_lshl_b32 s{sT}, s{sT}, 13
                s_add_u32 s{sT}, s{sT}, {buf}
                v_add_u32 v{5 + (j & 1)}, s{sT}, v2
                """)
                ch = (st[0], 2*j + st[1])
                for t in range(2):
                    kind, r0 = dest(ch, t)
                    for u in range(2):
                        A(f"ds_read_b64_tr_b16 {R(kind, r0 + 4*st[2] + 2*u, 2)}, v{5 + (j & 1)} offset:{u*1024 + 8*t}")
                if j == 1: A("s_waitcnt lgkmcnt(0)")
            A("s_waitcnt lgkmcnt(0)")
    def wr(slot, r0):
        for k in range(4): A(f"ds_write_b128 v{WL}, {v(r0 + 4*k, 4)} offset:{slot*4096 + 1024*k}")
    A("s_barrier")
    wr(0, 8); wr(1, 24)
    A(f"""
    s_add_u32 s{sT}, s{sT+3}, 147456
    v_add_u32 v5, s{sT}, v3
    v_add_u32 v6, s{sT+3}, v3
    s_waitcnt vmcnt(0) lgkmcnt(0)
    """)
    oread(None, lambda t: ("v", 8 + 8*t), 5, 0)
    A("s_waitcnt lgkmcnt(0)")
    oread(None, lambda t: ("v", 24 + 8*t), 6, 0)
    A("s_waitcnt lgkmcnt(0)")
    wr(2, 40); wr(3, 56); wr(4, 72)
    A("s_barrier\ns_waitcnt lgkmcnt(0)")
    wr(5, 88); wr(6, 104); wr(7, 8)
    A("s_waitcnt lgkmcnt(0)")
    wr(8, 24)
    A("v_mov_b32 v14, v4\ns_waitcnt lgkmcnt(0)")
    if stamps:
        A(f"""
        s_memrealtime s[84:85]
        s_waitcnt lgkmcnt(0)
        v_writelane_b32 v7, s84, 15
        s_lshl_b32 s84, s2, 8
        s_add_u32 s84, s84, {WS_DBG + 65536}
        v_mbcnt_lo_u32_b32 v5, -1, 0
        v_mbcnt_hi_u32_b32 v5, -1, v5
        v_lshlrev_b32 v5, 2, v5
        buffer_store_dword v7, v5, s[{SRD}:{SRD+3}], s84 offen
        s_waitcnt vmcnt(0)
        """)
    L = A.newlabel("Lteam")
    A(f"v_mov_b32 v5, {dbg_team_off}")
    A.label(L)
    A(f"""
    global_load_dwordx3 v[6:8], v5, s[8:9] sc1
    s_sub_u32 s{sSpin}, s{sSpin}, 1
    s_cbranch_scc1 {L}x
    s_waitcnt vmcnt(0)
    v_readfirstlane_b32 s{sT}, v6
    v_readfirstlane_b32 s{sT+1}, v8
    s_add_u32 s{sT}, s{sT}, s{sT+1}
    s_cmp_lt_u32 s{sT}, {32 + nzero}
    s_cbranch_scc1 {L}
    """)
    A.label(L + "x")
    A(f"""
    s_max_i32 s{sSpin}, s{sSpin}, 0
    s_lshl_b32 s{sT}, s{sH}, 7
    s_add_u32 s{sT}, s{sT}, {WS_KVF}
    s_add_u32 s{SRDW}, s{SRD}, s{sT}
    s_addc_u32 s{SRDW+1}, s{SRD+1}, 0
    s_cmp_eq_u32 s{sW}, 0
    s_cselect_b32 s{SRDW+2}, 80, 0
    """)


def ldsw_reads(ch, dst):
    return [f"ds_read_b128 {v(dst + 4*k, 4)}, v{WL} offset:{lds_off(ch, 0) + 1024*k}" for k in range(4)]

MARKS = []
STREAM = {("Q", 2): S0_, ("Q", 3): S0_ + 16, ("K", 2): PB, ("K", 6): PB, ("V", 6): S0_, ("V", 7): S0_ + 16,
          ("O", 1, 1): S0_, ("O", 2, 1): S0_ + 16, ("O", 3, 1): M0_}

def emit_chain_loop(A, nsteps=63, diag=False, nvown=4, barpos=6, nopub=0, kvfix=0, trace=None, timing=0, full=0, steplog=0, tstep=31,
                    d0=24, d1=42, d2=57, d3=62, g0=33, g1=21, g2=26, g3=24, e0=22, e1=35, e2=29, e3=34, h0=53, h1=43, h2=40, h3=28,
                    j0=12, j1=12, j2=4, j3=12, i0=3, i1=3, i2=0, i3=12, nsp=1, bar=1, vp=(0, 2), mpos=16, zpos=18, mex=0, pex=1, cpos=0, rwid=1, rp=(20, 22),
                    fine=0, kpos=9, kr=2, rgap=16, srn=1, srs=2, nwv=0, npb=4, kp=(0, 2), vs=7, psh=1, zskip=0, zpre=1, zpost=0, zgap=0, nob=1, inc=1, ndef=3, wslots=(2, 3, 4, 5, 6, 7, 9)):
    px, k2, early3 = None, 2, 0
    assert nvown == 4
    npre = 0
    srd = f"s[{SRD}:{SRD+3}]"
    def stamp(k):
        MARKS.append(k)
        if diag and diag[0] == k: A(f"s_memtime s[{sTM}:{sTM+1}]")
        if diag and diag[1] == k: A(f"s_memtime s[{sTM+2}:{sTM+3}]")
        if trace and k in trace:
            r = 64 + 2*trace.index(k)
            A(f"s_memtime s[{r}:{r+1}]")
    def lg(n): A(f"s_waitcnt lgkmcnt({n})")
    del MARKS[:]
    rd = lambda ch: ldsw_reads(ch, STREAM[ch])
    cv = lambda d, a, b: A(f"v_cvt_pk_bf16_f32 v{d}, v{a}, v{b}")
    pk = lambda op, d, a, b: A(f"v_pk_{op}_f32 {v(d,2)}, {v(a,2)}, {v(b,2)}")
    def junk():
        for x in rd(("Q", 2)) + rd(("Q", 3)) + rd(("K", 2)): A(x)
        for k in range(0, 24, 2): A(f"v_mov_b64 {v(PA+k,2)}, 0")
    def jz_():
        for k in range(0, 24, 2): A(f"v_mov_b64 {v(PA+k,2)}, 0")
    def rladder(xs, to):
        for k in range(3):
            if any(xs[k:]):
                A(f"s_cmp_eq_u32 s{sW}, {3 - k}\ns_cbranch_scc1 {to}")
                A.nop(xs[k])
        A.label(to)
    def rotate():
        A(f"""
        s_mov_b32 s{sT}, s{sA}
        s_mov_b32 s{sA}, s{sB}
        s_mov_b32 s{sB}, s{sCc}
        s_mov_b32 s{sCc}, s{sT}
        """)
    def mload(r):
        A(f"""
        buffer_load_dwordx4 {v(r,4)}, v{MOWN}, {srd}, s{sAM} offen sc1
        buffer_load_dwordx4 {v(r+4,4)}, v{MOWN}, {srd}, s{sAM} offen offset:1024 sc1
        """)
    def mcheck(r, t0, t1):
        A(f"""
        v_max3_u32 v{t0}, v{r}, v{r+1}, v{r+2}
        v_max3_u32 v{t1}, v{r+3}, v{r+4}, v{r+5}
        v_max3_u32 v{t0}, v{t0}, v{r+6}, v{r+7}
        v_max_u32 v{t0}, v{t0}, v{t1}
        v_cmp_eq_u32 vcc, -1, v{t0}
        """)
    def kvpoll(tag, ret):
        A.label(f"Lkv{tag}")
        A(f"""
        s_mov_b64 exec, 31
        buffer_load_dword v16, v{SMR}, s[{SRDW}:{SRDW+3}], 0 offen sc1
        s_waitcnt vmcnt(0)
        v_cmp_ge_u32 vcc, s{sRdy}, v16
        s_mov_b64 exec, -1
        s_cbranch_vccz {ret}
        s_sleep 1
        s_sub_u32 s{sSpin}, s{sSpin}, 1
        s_cbranch_scc0 Lkv{tag}
        s_mov_b32 s{sSpin}, 0
        """)
    def pub_all():
        A(f"""
        s_add_u32 s{sT}, s{sMH}, {PM_OFF}
        buffer_store_dwordx4 {v(0,4)}, v{MOWN}, {srd}, s{sT} offen sc1
        buffer_store_dwordx4 {v(4,4)}, v{MOWN}, {srd}, s{sT} offen offset:1024 sc1
        """)
    if diag: A("s_mov_b32 s70, 0")
    if full:
        A(f"s_mov_b32 s{sRdy}, 1\ns_cmp_lg_u32 s{sW}, 0\ns_cbranch_scc1 LkvAret")
        kvpoll("A", "LkvAret"); A.label("LkvAret")
        A("s_barrier")
        if steplog: A("s_memrealtime s[86:87]")
    A(f"""
    global_load_dwordx4 {v(0,4)}, v14, s[56:57]
    global_load_dwordx4 {v(4,4)}, v14, s[56:57] offset:512
    buffer_load_dwordx4 {v(KX,4)}, v{MOWN}, {srd}, s{sKV} offen sc1
    buffer_load_dwordx4 {v(KX+4,4)}, v{MOWN}, {srd}, s{sKV} offen offset:1024 sc1
    """)
    junk()
    A(f"""
    s_waitcnt vmcnt(0) lgkmcnt(0)

    s_cmp_lg_u32 s{sH}, 0
    s_cbranch_scc1 Lstep
    """)
    pub_all()
    A("s_branch Lstep")
    A(".p2align 6")
    A.label("Lp2a")
    A(f"s_waitcnt vmcnt({2*k2 - 1})")
    if trace: stamp("p2_w")
    A.label("Lstep")
    A(f"""
    v_max3_u32 v8, v0, v1, v2
    v_max_u32 v8, v8, v3
    s_waitcnt vmcnt({2*k2 - 2})
    v_max3_u32 v8, v8, v4, v5
    v_max3_u32 v8, v8, v6, v7
    v_cmp_le_u32 vcc, 0xffc00000, v8
    """)
    if nsp == 0: A("s_cbranch_vccnz Lp2r\nLp2cont:")
    stamp("m_in")
    def B(ch, t):
        if ch in STREAM: return v(STREAM[ch] + 8*t, 8)
        return reg_of(ch, t)[0]
    def QK(i): return [(AQ[0], 4*i, B(("Q", i), 0)), (AQ[1], 4*i, B(("Q", i), 1)), (AK[0], 4*i, B(("K", i), 0)), (AK[1], 4*i, B(("K", i), 1))]
    def VV(i): return [(AV[0], 4*i, B(("V", i), 0)), (AV[1], 4*i, B(("V", i), 1))]
    vown = VV(0) + VV(1)
    seq = QK(0) + QK(1) + vown[:nvown]
    mreads = [f"ds_read_b128 {v(8*j + 4*ii, 4)}, v{MX[j]} offset:{1024*ii}" for j in (1, 2, 3) for ii in range(2)]
    fill = {k: [] for k in range(40)}
    if nsp: fill[nsp - 1] += ["s_cbranch_vccnz Lp2r", "Lp2cont:"]
    fill[max(nsp - 1, 0)] += [f"ds_write_b128 v{MOWN}, {v(0,4)}"]
    fill[max(nsp, 1)] += [f"ds_write_b128 v{MOWN}, {v(4,4)} offset:1024"]
    fill[3] += [f"s_cmp_ge_u32 s{sStep}, {nsteps}", "s_cbranch_scc1 Lexit"]
    fill[barpos] += ["s_waitcnt lgkmcnt(0)", "s_barrier", mreads[0]]
    kstep = 0 if kvfix else 32*4*4096
    vl = [f"buffer_load_dwordx4 {v(VX,4)}, v{MOWN}, {srd}, s{sKV} offen offset:2048 sc1",
          f"buffer_load_dwordx4 {v(VX+4,4)}, v{MOWN}, {srd}, s{sKV} offen offset:3072 sc1", f"s_add_u32 s{sKV}, s{sKV}, {kstep}"]
    nA = len(seq)
    fb = {(i, k): [] for i in range(2, 8) for k in range(4)}
    FB = lambda x: fb[2 + x//4, x % 4] if x >= 0 else fill[nA + x]
    ex = lambda x, m: [f"s_mov_b64 exec, {m}", x, "s_mov_b64 exec, -1"] if mex else [x]
    FB(vp[0]).append(vl[0]); FB(vp[1]).extend(vl[1:])
    if not nopub: FB(mpos).extend(ex(f"buffer_store_dword v{PUB}, v{MST}, {srd}, s{sMP} offen sc1", f"s[{sEx1}:{sEx1+1}]"))
    if full:
        FB(kpos).extend(ex(f"buffer_load_dword v7, v{SMR}, s[{SRDW}:{SRDW+3}], 0 offen sc1", "31"))
        fb[6, 3] += [f"s_add_u32 s{sRdy}, s{sRdy}, 1"]
        assert kpos >= 0
    FB(zpos).extend(ex(f"buffer_store_dword v{SENT}, v{MST}, {srd}, s{sB} offen", f"s[{sEx1}:{sEx1+1}]"))
    lastld = max([vp[1]] + ([kpos] if full else []) + (list(pp) if px is not None else []) + [-99])
    nyoung = 2 + sum(x > lastld for x in (zpos, rp[0], rp[1]) + (() if nopub else (mpos,)))
    for k in range(1, 6): fill[min(barpos + k, nA - 1)] += [mreads[k]]
    if px is not None:
        fill[5] += [f"s_add_u32 s{sT}, s{sStep}, 1", f"v_mov_b32 v31, s{sT}"]
        fill[px] = [f"s_mov_b64 exec, s[{sExF}:{sExF+1}]", f"buffer_store_dword v31, v{MOWN}, {srd}, s{sFW} offen", "s_mov_b64 exec, -1"] + fill[px]
    for k, x in enumerate(seq):
        if fine and k: stamp(f"a{k}")
        sm(A, *x)
        for y in fill[k]: A(y)
    if not (trace and trace[0] == "A_end"): stamp("A_end")
    if trace: A(f"s_cmp_eq_u32 s{sStep}, {tstep}\ns_cbranch_scc1 Lexit2")
    if trace and trace[0] == "A_end": stamp("A_end")
    strm = {3: rd(("K", 6)), 4: rd(("V", 6)), 5: rd(("V", 7))}
    waits = {2: 5, 3: 4, 4: 7, 5: 10, 6: 8}
    for i in strm:
        for k in range(4): fb[i, k] += [strm[i][k]]
    fb[6, 2] += [f"s_add_u32 s{sAM}, s{sA}, {PM_OFF}"]
    FB(max(mpos + 1, 1)).extend([f"s_add_u32 s{sMH}, s{sMH}, {MHS}", f"s_mov_b32 s{sMP}, s{sMH}"])
    rw = {4: f"dwordx4 {v(SENT,4)}", 2: f"dwordx2 {v(SENT,2)}", 1: f"dword v{SENT}"}[rwid]
    FB(rp[0]).append(f"buffer_store_{rw}, v{PLD}, {srd}, s{sCc} offen")
    FB(rp[1]).append(f"buffer_store_{rw}, v{PLD}, {srd}, s{sCc} offen offset:1024")
    fb[7, 3] += [f"s_add_u32 s{sStep}, s{sStep}, 1"]
    if px is not None:
        for q, x in enumerate(pp):
            assert x < 16
            fb[2 + x//4, x % 4] = [f"buffer_load_dword v{q}, v{SMR}, {srd}, s{sFR} offen sc1"] + fb[2 + x//4, x % 4]
    if psh:
        FB(9).append(f"s_waitcnt vmcnt({sum(x <= 9 for x in list(vp) + list(rp) + [zpos] + ([kpos] if full else []) + ([] if nopub else [mpos]))})")
        for k, x in enumerate([f"v_lshrrev_b32 v4, 1, v{MOWN}", "v_and_b32 v4, 128, v4", f"v_xor_b32 v0, v4, v{MOWN}"] +
                              [f"v_and_or_b32 v{j}, v{MX[j]}, s{sM7}, v4" for j in (1, 2, 3)]): FB(10 + k).append(x)
    for i in range(2, 8):
        if i in waits: A(f"s_waitcnt lgkmcnt({waits[i]})")
        if i == 2: stamp("B_start")
        for k, x in enumerate(QK(i)):
            if fine and k % 2 == 0: stamp(f"b{i}{k}")
            sm(A, *x)
            for y in fb[i, k]: A(y)
    stamp("QK_end")
    vq = VV(6) + VV(7) + VV(4) + VV(5) + VV(2) + VV(3) + vown[nvown:]
    def vf(*after):
        sm(A, *vq.pop(0))
        for y in after: A(y)
    cv(PB+0, AQ[0], AQ[0]+1); cv(PB+1, AQ[0]+2, AQ[0]+3); cv(PB+4, AQ[1], AQ[1]+1); cv(PB+5, AQ[1]+2, AQ[1]+3)
    cv(PB+2, AK[0], AK[0]+1); cv(PB+3, AK[0]+2, AK[0]+3); cv(PB+6, AK[1], AK[1]+1); cv(PB+7, AK[1]+2, AK[1]+3)
    A(f"v_mfma_f32_16x16x32_bf16 {v(PA,4)}, {v(PB,4)}, {v(SELT,4)}, 0")
    A("s_waitcnt lgkmcnt(0)")
    A(f"v_mfma_f32_16x16x32_bf16 {v(PA+4,4)}, {v(PB+4,4)}, {v(SELT,4)}, 0")
    vf()
    T = PB + 8
    stamp("T_mfma")
    cv(T, PA, PA+1); cv(T+1, PA+2, PA+3); cv(T+2, PA+4, PA+5); cv(T+3, PA+6, PA+7)
    A.nop(2)
    wo = rd(("O", 1, 1))[:2] + rd(("O", 2, 1))[:2] + rd(("O", 1, 1))[2:] + rd(("O", 2, 1))[2:]
    nw = 0
    def W():
        nonlocal nw
        nw += 1
        return wo[nw - 1] if nw <= 8 - ndef else ""
    A(f"v_mfma_f32_16x16x32_bf16 {v(PA,4)}, {v(KX,4)}, {v(T,4)}, 0")
    if npre >= 1: A(W())
    A(f"v_mfma_f32_16x16x32_bf16 {v(PA+4,4)}, {v(KX+4,4)}, {v(T,4)}, 0")
    if npre >= 2: A(W())
    A(f"v_mfma_f32_16x16x32_bf16 {v(PA+8,4)}, {v(T,4)}, {v(T,4)}, 0")
    stamp("S_mfma")
    kl = [f"buffer_load_dwordx4 {v(KX,4)}, v{MOWN}, {srd}, s{sKV} offen sc1", f"buffer_load_dwordx4 {v(KX+4,4)}, v{MOWN}, {srd}, s{sKV} offen offset:1024 sc1"]
    if vs & 1: vf()
    else: A.nop(4)
    for g in range(4): A(f"v_mov_b32_dpp v{PA+g}, v{PA+4+g} row_ror:8 row_mask:0xf bank_mask:0xc")
    if vs & 2: vf()
    A(f"ds_write_b128 v{MOWN}, {v(PA,4)} offset:{LDS_SC}")
    for g in range(2): A(f"v_mov_b32_dpp v{PA+8+g}, v{PA+10+g} row_ror:8 row_mask:0xf bank_mask:0xc")
    if vs & 4: vf()
    A(f"ds_write_b64 v{SMW}, {v(PA+8,2)} offset:{LDS_SC+1024}")
    stamp("S_written")
    n0 = nw
    zs = [24, 26, 28, 30, 16, 18, 20, 22]
    def Z():
        done = 16 - nvown - len(vq)
        if zs and done >= {24: 3, 26: 3, 28: 5, 30: 5, 16: 7, 18: 7, 20: 9, 22: 9}[zs[0]]: return f"v_mov_b64 {v(zs.pop(0),2)}, 0"
        return ""
    for k in range(npb):
        vf(*[kl[q] for q in range(2) if kp[q] == k])
        if zpre and k not in kp and k < npb - 1: A(Z())
    stamp("preB2")
    lg(nw - n0)
    A("s_barrier")
    stamp("B2")
    xr = [f"ds_read_b128 {v(PA+4*j,4)}, v{MX[j]} offset:{LDS_SC}" for j in (1, 2, 3)]
    mr = [f"ds_read_b128 {v(PB+4*pr,4)}, v{SMR} offset:{LDS_SC+2048*pr+1024}" for pr in range(2)]
    WA = [16, 20, 24, 28]
    sr = [xr[0], xr[1], xr[2], mr[0], mr[1]]
    for x in sr[:srn]: A(x)
    sr = sr[srn:]
    n0 = nw
    nz = 0
    while vq:
        nz += 1
        if sr: vf(*sr[:srs]); sr = sr[srs:]
        elif len(vq) <= nwv: vf(W())
        else: vf()
        if nz > zskip: A(Z())
    for k in range(zpost): A(Z())
    stamp("V_end")
    nl = nw - n0
    if inc == 0:
        lg(nl)
        stamp("S_read")
        pk("add", PA, PA, PA+4); pk("add", PA+2, PA+2, PA+6); pk("add", PB, PB, PB+2)
        pk("add", PA+8, PA+8, PA+12); pk("add", PA+10, PA+10, PA+14); pk("add", PB+4, PB+4, PB+6)
        pk("add", PA, PA, PA+8); pk("add", PA+2, PA+2, PA+10); pk("add", PB, PB, PB+4)
    elif inc == 1:
        lg(nl + 2)
        stamp("S_read")
        pk("add", PA, PA, PA+4); pk("add", PA+2, PA+2, PA+6)
        pk("add", PA+8, PA+8, PA+12); pk("add", PA+10, PA+10, PA+14)
        pk("add", PA, PA, PA+8); pk("add", PA+2, PA+2, PA+10)
        lg(nl)
        pk("add", PB, PB, PB+2); pk("add", PB+4, PB+4, PB+6); pk("add", PB, PB, PB+4)
    else:
        lg(nl + 4)
        stamp("S_read")
        pk("add", PA, PA, PA+4); pk("add", PA+2, PA+2, PA+6)
        lg(nl + 3)
        pk("add", PA, PA, PA+8); pk("add", PA+2, PA+2, PA+10)
        lg(nl + 2)
        pk("add", PA, PA, PA+12); pk("add", PA+2, PA+2, PA+14)
        lg(nl)
        pk("add", PB, PB, PB+2); pk("add", PB+4, PB+4, PB+6); pk("add", PB, PB, PB+4)
    stamp("adds")
    X, Y = PB+2, PB+3
    ON, SU = PA + 4, PA + 8
    VM = PB + 12
    A(f"""
    v_max3_f32 v{X}, v{PA}, v{PA+1}, v{PA+2}
    v_max3_f32 v{Y}, v{PA+3}, v{PB}, v{PB+1}
    v_max_f32 v{X}, v{X}, v{Y}
    """)
    cv(VM, AV[0], AV[0]+1); cv(VM+1, AV[0]+2, AV[0]+3)
    A(f"""
    v_max_f32_dpp v{Y}, v{X}, v{X} row_ror:8 row_mask:0xf bank_mask:0xf
    v_max_f32_dpp v{X}, v{X}, v{X} row_ror:8 row_mask:0xf bank_mask:0xf
    """)
    cv(VM+2, AV[1], AV[1]+1); cv(VM+3, AV[1]+2, AV[1]+3)
    A(f"""
    v_permlane16_swap_b32 v{X}, v{Y}
    v_max_f32 v{PB+4}, v{X}, v{Y}
    v_max_f32 v{PB+5}, v{X}, v{Y}
    v_pk_mov_b32 {v(ON+2*psh,2)}, s[{sOne}:{sOne+1}], s[{sOne}:{sOne+1}] op_sel:[0,0]
    v_pk_mov_b32 {v(ON+2-2*psh,2)}, s[{sOne}:{sOne+1}], s[{sOne}:{sOne+1}] op_sel:[1,1]
    v_permlane32_swap_b32 v{PB+4}, v{PB+5}
    v_max_f32 v{X}, v{PB+4}, v{PB+5}
    v_mul_f32 v{X}, s{sC}, v{X}
    """)
    stamp("max")
    for r in (PA, PA+2, PB):
        A(f"v_pk_fma_f32 {v(r,2)}, {v(r,2)}, s[{sC}:{sC+1}], {v(X,2)} op_sel_hi:[1,0,0] neg_lo:[0,0,1] neg_hi:[0,0,1]")
    for r in [PB, PB+1, PA, PA+1, PA+2, PA+3]: A(f"v_exp_f32 v{r}, v{r}")
    stamp("exp")
    if psh:
        PM, PX = PB + 4, PB + 6
        cv(PM, PB, PB+1); cv(PX, PA, PA+1); cv(PX+1, PA+2, PA+3)
        A(f"""
        v_mov_b32_dpp v{PM+1}, v{PM} row_ror:8 row_mask:0xf bank_mask:0xf
        v_mov_b32_dpp v{PX+2}, v{PX} row_ror:8 row_mask:0xf bank_mask:0xf
        v_mov_b32_dpp v{PX+3}, v{PX+1} row_ror:8 row_mask:0xf bank_mask:0xf
        v_mfma_f32_16x16x32_bf16 {v(SU,4)}, {v(ON,4)}, {v(PM,4)}, 0
        {W() if nw < 5 else ""}
        s_waitcnt vmcnt({nyoung})
        """)
    else:
        PX, PM = PB + 4, PB + 8
        cv(PM, PB, PB+1); cv(PM+1, PB, PB+1); cv(PX+2, PA, PA+1); cv(PX+3, PA+2, PA+3); cv(PX, PA, PA+1); cv(PX+1, PA+2, PA+3)
        A(f"""
        v_mfma_f32_16x16x32_bf16 {v(SU,4)}, {v(ON,4)}, {v(PX+2,4)}, 0
        {W() if nw < 4 else ""}
        s_waitcnt vmcnt({nyoung})
        v_mov_b32_dpp v{PX+2}, v{PX+2} row_ror:8 row_mask:0xf bank_mask:0x3
        v_mov_b32_dpp v{PX+3}, v{PX+3} row_ror:8 row_mask:0xf bank_mask:0x3
        v_mov_b32_dpp v{PX}, v{PX} row_ror:8 row_mask:0xf bank_mask:0xc
        v_mov_b32_dpp v{PX+1}, v{PX+1} row_ror:8 row_mask:0xf bank_mask:0xc
        v_mov_b32_dpp v{PM}, v{PM} row_ror:8 row_mask:0xf bank_mask:0xc
        v_mov_b32_dpp v{PM+1}, v{PM+1} row_ror:8 row_mask:0xf bank_mask:0x3
        """)
    stamp("Pcvt")
    sadd = f"v_add_f32_dpp v{X}, v{SU}, v{SU} row_ror:8 row_mask:0xf bank_mask:0xf"
    srcp = f"v_rcp_f32 v{X}, v{X}"
    OA = 0
    pvf = [[Z()], [sadd], [srcp]] if psh else [[sadd], [srcp], []]
    A(f"""
    v_mfma_f32_16x16x32_bf16 {v(AV[0],4)}, {v(VX,4)}, {v(PX,4)}, 0
    {W()}
    {"".join(pvf[0])}
    v_mfma_f32_16x16x32_bf16 {v(AV[1],4)}, {v(VX+4,4)}, {v(PX,4)}, 0
    {W()}
    {"".join(pvf[1])}
    v_mfma_f32_16x16x16_bf16 {v(AV[0],4)}, {v(VM,2)}, {v(PM,2)}, {v(AV[0],4)}
    {W()}
    {"".join(pvf[2])}
    v_mfma_f32_16x16x16_bf16 {v(AV[1],4)}, {v(VM+2,2)}, {v(PM,2)}, {v(AV[1],4)}
    """)
    left = max(0, 8 - ndef - nw)
    for k in range(left): A(W())
    nzz = min(len(zs), 4 - max(left, 1))
    A.nop(4 - left - nzz)
    for k in range(nzz): A(Z())
    zm = [Z() for k in range(len(zs))]
    assert nw >= 8 - ndef
    OF = [PB+4, VX, VX+4, PB+8]
    for k in range(2):
        A(f"v_pk_mul_f32 {v(AV[0]+2*k,2)}, {v(AV[0]+2*k,2)}, {v(X,2)} op_sel_hi:[1,0]")
    cv(OF[0], AV[0], AV[0]+1); cv(OF[0]+1, AV[0]+2, AV[0]+3)
    stamp("rcp")
    for k in range(2):
        A(f"v_pk_mul_f32 {v(AV[1]+2*k,2)}, {v(AV[1]+2*k,2)}, {v(X,2)} op_sel_hi:[1,0]")
    cv(OF[0]+2, AV[1], AV[1]+1); cv(OF[0]+3, AV[1]+2, AV[1]+3)
    A(f"ds_write_b128 v{OA if psh else MOWN}, {v(OF[0],4)}")
    stamp("o_written")
    if psh:
        for k in range(4): A(f"v_mov_b32_dpp v{OF[0]+k}, v{OF[0]+k} row_ror:8 row_mask:0xf bank_mask:0xc")
    for z in zm: A(z)
    if full: A(f"v_cmp_ge_u32 s[{sKM}:{sKM+1}], s{sRdy}, v7")
    if px is not None:
        for q in range(len(pp)): A(f"v_cmp_ne_u32 s[{sPM+2*q}:{sPM+2*q+1}], s{sStep}, v{q}")
    A.nop(2 - len(zm) - (1 if full else 0))
    def OO(j, i): return [(WA[2*i+t], OF[j], B(("O", j, i), t)) for t in range(2)]
    OG = lambda j, g: OO(j, g >> 1)[g & 1]
    own = [OG(0, 2), OG(0, 3), OG(0, 1), OG(0, 0)]
    for x in own[:nob]: sm(A, *x)
    A("s_waitcnt lgkmcnt(0)")
    A("s_barrier")
    stamp("B3")
    dsq = []
    def DS(x):
        A(x); dsq.append(set(parse_operand(x.split()[1].rstrip(","))))
    for j in (1, 2, 3): DS(f"ds_read_b128 {v(OF[j],4)}, v{OA + j if psh else MX[j]}")
    wo3 = rd(("O", 3, 1))
    PK = AV[0]
    wseq = [None]*(nob - 1) + own[nob:] + [OG(j, g) for g in range(4) for j in (1, 2, 3)]
    cvs = lambda g: [f"v_cvt_pk_bf16_f32 v{PK+2*g+q}, v{WA[g]+2*q}, v{WA[g]+2*q+1}" for q in range(2)]
    sG = [sA, sT, sT+1, sT+2]
    gst = lambda g: f"buffer_store_dwordx2 {v(PK+2*g,2)}, v{PST}, {srd}, s{sG[g]} offen"
    fw = {k: [] for k in range(16)}
    fw[0] += [f"s_add_u32 s{sT}, s{sA}, 65536"]; fw[1] += [f"s_add_u32 s{sT+1}, s{sA}, 131072"]
    fw[2] += [f"s_add_u32 s{sT+2}, s{sA}, 196608"]
    fw[6] += ["s_waitcnt vmcnt(2)"]
    for k, x in zip(wslots, wo3[:2] + wo[8 - ndef:] + wo3[2:]): fw[k] = [x] + fw[k]
    assert len(wslots) >= 4 + ndef
    for g in range(3):
        k = 3 + 3*g + 4
        if cpos == 0: fw[k] += cvs(g); fw[k+1] += [gst(g)]
        if cpos == 1: fw[k] += cvs(g) + [gst(g)]
        if cpos == 2: fw[k] += cvs(g)[:1]; fw[k+1] += cvs(g)[1:]; fw[k+2] = [gst(g)] + fw[k+2]
    got = [0]
    def ready(k):
        x = wseq[k]
        if not x: return
        use = set(parse_operand(v(x[1], 4))) | set(parse_operand(x[2]))
        need_ = max([i + 1 for i, d in enumerate(dsq) if d & use] + [0])
        if need_ > got[0]:
            if k >= 9: need_ = max(need_, len(dsq) - sum(q >= k - 4 and q < k for q in wslots[:4 + ndef]))
            lg(len(dsq) - need_); got[0] = need_
    for k, x in enumerate(wseq):
        if k == 3: stamp("o_read")
        if k == 9: stamp("early_end")
        if x: sm(A, *x)
        nv = next((i for i, y in enumerate(fw[k]) if y.startswith("v_")), len(fw[k]))
        for i, y in enumerate(fw[k] + [None]):
            if i == nv and k + 1 < len(wseq): ready(k + 1)
            if y is None: break
            if y.startswith("ds_read"): DS(y)
            else: A(y)
            if y == gst(0) and trace: stamp("est")
    stamp("late_end")
    tail = fw[15] + ([f"s_and_b32 s{sKM}, s{sKM}, s{sExK}", "s_cbranch_scc1 LkvB", "LkvBret:"] if 0 else [])
    for y in tail: A(y)
    if px is not None: A(f"s_cmp_eq_u64 s[{sPM}:{sPM+1}], 0")
    A.nop(8 - len(fw[14]) - len(tail) - (px is not None) - (2 if any(y.startswith("v_") for y in fw[14]) else 0))
    for y in cvs(3): A(y)
    A(gst(3))
    stamp("stored")
    RA = VX
    def pload(r):
        for k in range(2): A(f"buffer_load_dwordx4 {v(r+4*k,4)}, v{PLD}, {srd}, s{sA} offen offset:{1024*k} sc1")
    dacc = f"s_waitcnt lgkmcnt(0)\ns_sub_u32 s{sT+2}, s{sTM+2}, s{sTM}\ns_add_u32 s70, s70, s{sT+2}"
    if px is not None:
        for q in range(len(pp)):
            A("s_cbranch_scc1 Lsync")
            A.nop(eps[q])
            if q + 1 < len(pp): A(f"s_cmp_eq_u64 s[{sPM+2*q+2}:{sPM+2*q+3}], 0")
        A.label("Lsync")
    if bar: A("s_barrier")
    if trace: stamp("lbar")
    if diag: A(dacc)
    if timing: A(f"s_cmp_eq_u32 s{sStep}, 3\ns_cbranch_scc1 Ltm\nLtmret:")
    A(f"""
    s_cmp_eq_u32 s{sW}, 1
    s_cbranch_scc1 Lh1
    s_cmp_eq_u32 s{sW}, 2
    s_cbranch_scc1 Lh2
    s_cmp_eq_u32 s{sW}, 3
    s_cbranch_scc1 Lh3
    """)
    jr = rd(("Q", 2)) + rd(("Q", 3)) + rd(("K", 2))
    def pproc(r, base):
        for k in range(2):
            A(f"s_waitcnt vmcnt({base + 1 - k})")
            A(f"v_mfma_f32_16x16x32_bf16 {v(RA,4)}, {v(SELR,4)}, {v(r+4*k,4)}, {v(RA,4) if k else 0}")
        if trace: stamp("p1_data")
        A(f"""
        s_nop 7
        v_add_f32_dpp v{RA}, v{RA}, v{RA} row_ror:4 row_mask:0xf bank_mask:0xf
        v_add_f32_dpp v{RA+1}, v{RA+1}, v{RA+1} row_ror:4 row_mask:0xf bank_mask:0xf
        s_nop 0
        v_add_f32_dpp v{RA}, v{RA}, v{RA} row_ror:8 row_mask:0xf bank_mask:0xf
        v_add_f32_dpp v{RA+1}, v{RA+1}, v{RA+1} row_ror:8 row_mask:0xf bank_mask:0xf
        {f"s_mov_b64 exec, s[{sEx1}:{sEx1+1}]" if pex else ""}
        v_cvt_pk_bf16_f32 v{PUB}, v{RA}, v{RA+1}
        buffer_store_dword v{PUB}, v{MST}, {srd}, s{sA} offen
        """)
        if trace: stamp("pub")
        A(f"""
        v_cmp_u_f32 vcc, v{RA+1}, v{RA+1}
        {"s_mov_b64 exec, -1" if pex else ""}
        """)
    for w in range(4):
        d, g, e, h, jl = [(d0, g0, e0, h0, j0), (d1, g1, e1, h1, j1), (d2, g2, e2, h2, j2), (d3, g3, e3, h3, j3)][w]
        A.label(f"Lh{w}")
        ni = [i0, i1, i2, i3][w]; jl = min(12, ni + jl)
        for x in jr[:ni]: A(x); A.nop(2)
        A.nop(max(0, d - 3*ni - (3 if timing else 0) - [6, 8, 10, 12][w]))
        if trace: stamp("p1_first")
        pload(0)
        jz_()
        A.nop(g)
        pload(8)
        for x in jr[ni:jl]: A(x)
        A.label(f"Lp1w{w}")
        pproc(0, 2)
        A(f"s_cbranch_vccnz Lp1r{w}")
        A.label(f"Lp1done{w}")
        for x in jr[jl:]: A(x)
        if full and w == 0:
            A(f"s_and_b32 s{sKM}, s{sKM}, 31\ns_cbranch_scc1 LkvB")
        A.nop(e - (3 if full and w == 0 else 0))
        A.label(f"Lp2_{w}")
        if trace: stamp("p2_first")
        mload(0)
        if steplog and w == 0: A(f"s_memrealtime s[80:81]\ns_memtime s[82:83]\ns_cmp_eq_u32 s{sHW}, 0\ns_cbranch_scc1 Llog\nLlogret:")
        rotate()
        A.nop(h - 4)
        mload(0)
        A("s_branch Lp2a")
        A.label(f"Lp1r{w}")
        pproc(8, 1)
        A(f"s_cbranch_vccz Lp1done{w}")
        pload(0); A.nop(24); pload(8)
        A(f"s_sub_u32 s{sSpin}, s{sSpin}, 1\ns_cbranch_scc0 Lp1w{w}")
        A(f"""
        s_mov_b32 s{sSpin}, 0
        v_mov_b32 v{PUB}, 0x7fc07fc0
        s_waitcnt vmcnt(0)
        buffer_store_dword v{PUB}, v{MST}, {srd}, s{sA} offen
        s_branch Lp1done{w}
        """)
    def chk2(n):
        A(f"""
        s_waitcnt vmcnt({n + 1})
        v_max3_u32 v8, v0, v1, v2
        v_max_u32 v8, v8, v3
        s_waitcnt vmcnt({n})
        v_max3_u32 v8, v8, v4, v5
        v_max3_u32 v8, v8, v6, v7
        v_cmp_le_u32 vcc, 0xffc00000, v8
        """)
        for k in range(0, 4*nsp, 2): A(f"v_mov_b64 {v(PA+k,2)}, 0")
        if nsp: A("s_nop 1")
        for x in seq[:nsp]: sm(A, *x)
        A("s_cbranch_vccz Lp2cont")
    def relook():
        A("s_mov_b64 exec, vcc")
        mload(0)
        A("s_mov_b64 exec, -1")
    A(".p2align 4")
    A.label("Lp2r")
    if early3: relook()
    for q in range(k2 - 1): chk2(2*(k2 - 2 - q) + (2 if early3 else 0))
    for q in range(kr - 1 - (1 if early3 else 0)):
        relook(); A.nop(rgap)
    A.label("Lp2q")
    relook()
    A(f"s_sub_u32 s{sSpin}, s{sSpin}, 1\ns_cbranch_scc1 Lp2giveup")
    chk2(2*(kr - 1))
    A("s_branch Lp2q")
    A.label("Lp2giveup")
    A(f"""
    s_mov_b32 s{sSpin}, 0
    s_waitcnt vmcnt(0)
    s_branch Lp2cont
    """)
    if timing:
        A.label("Ltm")
        A(f"s_memtime s[96:97]\ns_mov_b32 s98, s{sSpin}\ns_branch Ltmret")
    if steplog:
        A.label("Llog")
        A(f"""
        s_lshl_b32 s84, s{sStep}, 3
        s_add_u32 s84, s84, {WS_DBG + 8192 - 8}
        s_waitcnt lgkmcnt(0)
        v_mov_b32 v16, s80
        v_mov_b32 v17, s82
        s_mov_b64 exec, 1
        buffer_store_dwordx2 v[16:17], off, {srd}, s84
        s_mov_b64 exec, -1
        s_branch Llogret
        """)
    if full:
        kvpoll("B", "Lp2_0"); A("s_branch Lp2_0")
    A.label("Lexit")
    L = A.newlabel("Lfin")
    A(f"""
    s_cmp_lg_u32 s{sH}, 0
    s_cbranch_scc1 {L}
    """)
    pub_all()
    A(f"""
    buffer_store_dword v{PUB}, v{MST}, {srd}, s{sMH} offen sc1
    s_add_u32 s{sMH}, s{sMH}, {MHS}
    s_waitcnt vmcnt(0)
    s_barrier
    s_mov_b64 exec, 16
    buffer_store_dword v{PUB}, v{MST}, {srd}, s{sMH} offen sc1
    """)
    A.label(L)
    A("s_mov_b64 exec, -1")
    if trace: A.label("Lexit2")
```

```python
from asmlib import *
from layout import *
import struct, math

def fbits(x): return struct.unpack("<I", struct.pack("<f", x))[0]

M0_, S0_ = 0, 32
AQ = [64, 68]; AK = [72, 76]; AV = [80, 84]; PA = 64
KX, VX = 88, 96
PB = 104
SELT, SELR = 120, 124
IDX, SMW, PST, PLD, MST, MOWN = 128, 129, 130, 131, 132, 133
L16 = 15
MX = [None, 134, 135, 136]
SMR, PUB, WL = 137, 138, 139
SENT = 140
SRD = 4
sH, sW = 10, 11
sA, sB, sCc, sAM, sKV, sStep, sSpin, sA2, sMH = 12, 13, 14, 15, 16, 17, 18, 19, 20
sEx1 = 60
sM7 = 35
sBk1, sBk2 = 42, 56
sHW, sMP = 22, 23
sKF = 62
sExK, sKM = 34, 24
sExF, sFR, sPM = 46, 45, 48
sC = 26
SRDW = 28
sF = 32
sT = 36
sOne = 58
sRdy = 21
sTM = 72
LDS_SC = 8192
LDS_W = 16384
WPW = 36864

LDS_CH = [("Q", 2), ("Q", 3), ("K", 2), ("K", 6), ("V", 6), ("V", 7), ("O", 1, 1), ("O", 2, 1), ("O", 3, 1)]
ALL_CH = [(m, i) for m in "QKV" for i in range(8)] + [("O", j, i) for j in range(4) for i in range(2)]
REG_CH = [c for c in ALL_CH if c not in LDS_CH]
ORDER = REG_CH + LDS_CH
def reg_of(ch, t):
    n = REG_CH.index(ch)*2 + t
    if n < 32: return a_(8*n, 8), ("a", 8*n)
    return v(144 + 8*(n-32), 8), ("v", 144 + 8*(n-32))
WLB, WLC, KT = 141, 142, 143
sK6 = 63
SLOT = {("V", 6): (WL, 0), ("K", 6): (WL, 4096), ("K", 2): (WL, 32768), ("Q", 3): (WL, 36864), ("Q", 2): (WLB, 0), ("O", 1, 1): (WLB, 4096),
        ("V", 7): (WLB, 32768), ("O", 3, 1): (WLB, 36864), ("O", 2, 1): (WLC, 0)}

def sm(A, acc, afrag, b):
    A(f"v_smfmac_f32_16x16x64_bf16 {v(acc,4)}, {v(afrag,4)}, {b}, v{IDX}")

def emit_chain_init(A, dbg_team_off=DBG_TEAM, nzero=0, stamps=False, have_w=False, nt=1, bal=0, full=0, fn=14, rt=(0, 2)):
    sW13, sW12 = 33, 34
    ntf = " nt" if nt else ""
    if not have_w:
        A(f"""
        s_load_dwordx4 s[48:51], s[0:1], {KA['Wq']}
        s_load_dwordx4 s[52:55], s[0:1], {KA['Wv']}
        """)
    A(f"""
    v_lshrrev_b32 v1, 6, v0
    v_and_b32 v2, 63, v0
    v_readfirstlane_b32 s{sW}, v1
    v_and_b32 v3, 15, v2
    v_lshrrev_b32 v4, 4, v2
    s_mov_b32 s{SRDW+2}, {4*MB}
    s_mov_b32 s{SRDW+3}, 0x00020000
    v_lshrrev_b32 v5, 1, v4
    v_and_b32 v7, 1, v4
    v_lshl_add_u32 v6, v5, 3, v7
    v_lshlrev_b32 v6, 13, v6
    v_lshlrev_b32 v8, 2, v4
    v_xor_b32 v8, v8, v3
    v_lshl_add_u32 v6, v8, 4, v6
    s_lshl_b32 s{sT}, s{sH}, 8
    v_add_u32 v0, s{sT}, v6
    s_lshl_b32 s{sF}, s{sW}, 18
    s_lshl_b32 s{sW13}, s{sW}, 13
    s_lshl_b32 s{sW12}, s{sW}, 12
    s_waitcnt lgkmcnt(0)
    s_load_dwordx2 s[{SRD}:{SRD+1}], s[0:1], {KA['ws']}
    s_load_dwordx2 s[56:57], s[0:1], {KA['mem0']}
    """)
    srw = f"s[{SRDW}:{SRDW+3}]"; srd = f"s[{SRD}:{SRD+3}]"
    base = {"Q": 48, "K": 50, "V": 52, "O": 54}
    HELD = {("Q", 2): 8, ("Q", 3): 24, ("K", 2): 40, ("K", 6): 56, ("V", 6): 72, ("V", 7): 88, ("O", 3, 1): 104, ("O", 2, 1): 88, ("O", 1, 1): 24}
    STG = [(m, ii, hf) for m in "QKV" for ii in range(2) for hf in range(2)] + [("O", 0, 0), ("O", 0, 2), ("O", 1, 0)]
    NS = len(STG)
    cur = [None]; vm = []
    def VM(x, tag): A(x); vm.append(tag)
    def wait(tag): A(f"s_waitcnt vmcnt({len(vm) - 1 - max(i for i, t in enumerate(vm) if t == tag)})")
    def setm(m):
        if cur[0] != m:
            cur[0] = m
            A(f"s_mov_b32 s{SRDW}, s{base[m]}\ns_mov_b32 s{SRDW+1}, s{base[m]+1}")
    def ochunk(j, i, sreg, off, tag):
        setm("O")
        A(f"s_xor_b32 s{sT}, s{sW}, {j}\ns_lshl_b32 s{sT}, s{sT}, 15")
        for q in range(4):
            A(f"s_add_u32 m0, s{sreg}, {off + q*1024}\ns_add_u32 s{sT+1}, s{sT}, {q*8192 + i*128}")
            VM(f"buffer_load_dwordx4 v1, {srw}, s{sT+1} offen{ntf} lds", tag)
    def issue(n):
        st = STG[n]; buf = LDS_W + (n % 4)*32768
        if st[0] == "O":
            for jj in range(2): ochunk(st[2] + jj, st[1], sW13, buf + jj*4096, n)
        else:
            setm(st[0])
            for q in range(8):
                gb = q >> 1
                d = 256*st[1] + 128*st[2] + 16*(gb >> 1) + 4*(gb & 1) + 2*(q & 1)
                A(f"s_add_u32 m0, s{sW13}, {buf + q*1024}\ns_add_u32 s{sT+1}, s{sF}, {d*8192}")
                VM(f"buffer_load_dwordx4 v0, {srw}, s{sT+1} offen{ntf} lds", n)
    def dest(ch, t):
        if ch in HELD: return "v", HELD[ch] + 8*t
        return reg_of(ch, t)[1]
    def oread(ch, ad, off):
        for t in range(2):
            kind, r0 = dest(ch, t)
            for u in range(4):
                A(f"ds_read_b64_tr_b16 {R(kind, r0 + 2*u, 2)}, v{ad} offset:{off + (16*(u >> 1) + 2*(u & 1))*128 + 64*t}")
        A("s_waitcnt lgkmcnt(0)")
    def wr(ch):
        for k in range(4): A(f"ds_write_b128 v{SLOT[ch][0]}, {v(HELD[ch] + 4*k, 4)} offset:{SLOT[ch][1] + 1024*k}")
    for n in range(3): issue(n)
    A(f"""
    v_lshrrev_b32 v6, 3, v2
    v_lshlrev_b32 v6, 10, v6
    v_and_b32 v8, 7, v2
    v_lshl_add_u32 v6, v8, 4, v6
    s_lshl_b32 s{sT}, s{sH}, 17
    s_lshl_b32 s{sT+1}, s{sW}, 8
    s_add_u32 s{sT}, s{sT}, s{sT+1}
    v_add_u32 v1, s{sT}, v6
    """)
    ochunk(2, 1, sW12, 147456, "park"); ochunk(3, 1, sW12, 0, "park")
    A(f"""
    v_lshlrev_b32 v{L16}, 4, v2
    s_mov_b32 s{SRD+2}, {WS_SIZE}
    s_mov_b32 s{SRD+3}, 0x00020000
    """)
    A(f"""
    v_mov_b32 v5, 0x4444
    v_mov_b32 v6, 0xeeee
    v_cmp_gt_u32 vcc, 8, v3
    s_nop 1
    v_cndmask_b32 v{IDX}, v6, v5, vcc
    """)
    A(f"""
    v_lshrrev_b32 v5, 1, v4
    v_lshlrev_b32 v5, 2, v5
    v_lshrrev_b32 v6, 3, v3
    v_lshl_add_u32 v5, v6, 1, v5
    v_and_b32 v6, 1, v4
    v_add_u32 v5, v5, v6
    s_lshl_b32 s{sT}, s{sW}, 3
    v_add_u32 v5, s{sT}, v5
    v_lshlrev_b32 v5, 11, v5
    v_and_b32 v8, 7, v3
    v_lshl_add_u32 v5, v8, 3, v5
    s_lshl_b32 s{sT+1}, s{sH}, 6
    v_add_u32 v{PST}, s{sT+1}, v5
    """)
    A(f"""
    s_lshl_b32 s{sT}, s{sW}, 5
    s_add_u32 s{sT}, s{sT}, s{sH}
    s_lshl_b32 s{sT+2}, s{sT}, 11
    v_add_u32 v{PLD}, s{sT+2}, v{L16}
    s_lshl_b32 s{sT}, s{sT}, 6
    s_add_u32 s{sT}, s{sT}, {PM_OFF}
    v_and_b32 v5, 3, v3
    v_lshlrev_b32 v5, 2, v5
    v_lshl_add_u32 v5, v4, 4, v5
    v_add_u32 v{MST}, s{sT}, v5
    v_lshrrev_b32 v5, 2, v3
    v_lshl_add_u32 v{MST}, v5, 29, v{MST}
    """)
    A(f"""
    s_lshl_b32 s{sT}, s{sW}, 11
    v_add_u32 v{MOWN}, s{sT}, v{L16}
    v_xor_b32 v{MX[1]}, 2048, v{MOWN}
    v_xor_b32 v{MX[2]}, 4096, v{MOWN}
    v_xor_b32 v{MX[3]}, 6144, v{MOWN}
    """)
    A(f"""
    v_and_b32 v5, 31, v2
    v_lshlrev_b32 v{SMR}, 4, v5
    v_lshrrev_b32 v7, 3, v3
    s_lshr_b32 s{sT}, s{sW}, 1
    s_lshl_b32 s{sT}, s{sT}, 11
    s_and_b32 s{sT+1}, s{sW}, 1
    s_lshl_b32 s{sT+1}, s{sT+1}, 3
    s_add_u32 s{sT}, s{sT}, s{sT+1}
    v_mov_b32 v{PUB}, 1
    v_xor_b32 v5, 32, v2
    v_lshlrev_b32 v5, 4, v5
    v_add_u32 v{SMW}, s{sT}, v5
    s_add_u32 s{sT+2}, s{sW13}, {LDS_W}
    v_add_u32 v{WL}, s{sT+2}, v{L16}
    v_mov_b32 v{SENT}, -1
    """)
    A(f"""
    v_mov_b32 v6, 0x3f80
    v_and_b32 v5, 4, v3
    v_lshlrev_b32 v5, 2, v5
    v_lshlrev_b32 v9, v5, v6
    v_and_b32 v5, 1, v8
    v_lshlrev_b32 v5, 4, v5
    v_lshlrev_b32 v5, v5, v6
    v_and_b32 v6, 3, v3
    v_lshl_add_u32 v6, v6, 1, v7
    """)
    for r in range(4):
        A(f"v_cmp_eq_u32 vcc, {r}, v6\ns_nop 1\nv_cndmask_b32 v{SELR+r}, 0, v9, vcc")
    A(f"""
    v_lshrrev_b32 v6, 1, v3
    v_and_b32 v6, 1, v6
    v_lshl_add_u32 v6, v7, 1, v6
    v_lshrrev_b32 v9, 2, v3
    v_xor_b32 v9, v9, v4
    v_and_b32 v9, 1, v9
    v_lshl_add_u32 v6, v9, 3, v6
    """)
    for r in range(4):
        A(f"v_cmp_eq_u32 vcc, {r}, v6\ns_nop 1\nv_cndmask_b32 v{SELT+r}, 0, v5, vcc")
    A(f"""
    s_mov_b32 s{sEx1}, 0x000f001f
    s_mov_b32 s{sEx1+1}, 0x000f000f
    s_mov_b32 s{sM7}, 0xffffff7f
    s_mul_i32 s{sK6}, s{sW}, 6144
    s_add_u32 s{sHW}, s{sH}, s{sW}
    s_mov_b32 s{sMP}, {WS_MH - PM_OFF - MHS}
    s_mov_b32 s{sAM}, {WS_P + PM_OFF}
    s_mov_b32 s{sC}, {fbits(128**-0.5 * math.log2(math.e))}
    s_mov_b32 s{sOne}, 0x3f803f80
    s_mov_b32 s{sOne+1}, 0x3e803e80
    s_mov_b32 s{sA}, {WS_P}
    s_mov_b32 s{sB}, {WS_P + RS}
    s_mov_b32 s{sCc}, {WS_P + 2*RS}
    s_mov_b32 s{sMH}, {WS_MH - PM_OFF}
    s_lshl_b32 s{sKV}, s{sH}, 3
    s_add_u32 s{sKV}, s{sKV}, s{sW}
    s_lshl_b32 s{sKV}, s{sKV}, 11
    s_mov_b32 s{sStep}, 0
    s_mov_b32 s{sSpin}, {SPIN}
    """)
    A(f"""
    v_lshrrev_b32 v5, 1, v4
    v_and_b32 v7, 1, v4
    v_lshrrev_b32 v9, 2, v3
    v_and_b32 v6, 3, v3
    v_lshl_add_u32 v12, v4, 3, v9
    v_lshlrev_b32 v12, 8, v12
    v_xor_b32 v10, s{sW}, v9
    v_lshl_add_u32 v10, v10, 2, v6
    v_lshl_add_u32 v12, v10, 4, v12
    v_lshrrev_b32 v8, 3, v3
    v_and_b32 v9, 1, v9
    v_lshlrev_b32 v13, 3, v5
    v_lshl_add_u32 v13, v7, 2, v13
    v_add_u32 v13, v13, v9
    v_lshlrev_b32 v13, 7, v13
    v_lshl_add_u32 v13, v8, 5, v13
    v_lshl_add_u32 v13, v6, 3, v13
    v_and_b32 v14, 7, v3
    v_lshlrev_b32 v14, 10, v14
    v_lshl_add_u32 v14, v5, 8, v14
    v_lshl_add_u32 v14, v7, 5, v14
    v_lshl_add_u32 v14, v8, 4, v14
    s_lshr_b32 s{sT}, s{sF}, 12
    v_add_u32 v4, s{sT}, v14
    v_mul_u32_u24 v5, {MHS}, v2
    v_mov_b32 v2, v12
    v_mov_b32 v3, v13
    s_waitcnt lgkmcnt(0)
    """)
    A(f"v_mov_b64 v[8:9], -1\nv_mov_b64 v[10:11], -1")
    for so in (sA, sB, sCc):
        VM(f"buffer_store_dwordx4 v[8:11], v{PLD}, {srd}, s{so} offen", "fill")
        VM(f"buffer_store_dwordx4 v[8:11], v{PLD}, {srd}, s{so} offen offset:1024", "fill")
        VM(f"buffer_store_dword v{SENT}, v{MST}, {srd}, s{so} offen", "fill")
    for q in range(Q0, 64):
        A(f"s_mov_b32 s{sT}, {WS_MH - PM_OFF + q*MHS}")
        VM(f"buffer_store_dword v{SENT}, v{MST}, {srd}, s{sT} offen sc1", "fill")
    A(f"""
    s_cmp_lg_u32 s{sHW}, 0
    s_cbranch_scc1 Lnofl
    s_mov_b32 s{sT}, {WS_MH + MHS + 8192}
    buffer_store_dword v{SENT}, v5, {srd}, s{sT} offen sc1
    s_mov_b64 exec, 16
    v_mov_b32 v{MST}, {PM_OFF + 8192}
    s_mov_b64 exec, -1
    """)
    A.label("Lnofl")
    A(f"""
    s_sub_u32 s{sT}, {147456 - LDS_W}, s{sW12}
    v_add_u32 v{WLB}, 65536, v{WL}
    v_add_u32 v{WLC}, s{sT}, v{WL}
    s_lshl_b32 s{sKF}, s{sH}, 7
    s_add_u32 s{sKF}, s{sKF}, {WS_KVF}
    s_mov_b32 s{sRdy}, 1
    """)
    kvl = f"buffer_load_dword v0, v{SMR}, {srd}, s{sKF} offen sc1"
    for n in range(NS):
        st = STG[n]; buf = LDS_W + (n % 4)*32768
        wait(n)
        if n <= 12: A("s_barrier")
        if stamps: A(f"s_memrealtime s[84:85]\ns_waitcnt lgkmcnt(0)\nv_writelane_b32 v7, s84, {n}")
        if n == 3:
            A(f"""
            s_cmp_lg_u32 s{sW}, 0
            s_cbranch_scc1 Lann
            v_mov_b32 v5, {dbg_team_off}
            s_mov_b64 exec, 1
            global_atomic_add v5, v{PUB}, s[8:9]
            s_mov_b64 exec, -1
            """)
            A.label("Lann")
        if n == 9:
            A(f"v_mov_b32 v5, {dbg_team_off}")
            VM("global_load_dword v0, v5, s[8:9] sc1", "team"); VM(f"global_load_dword v{SENT+3}, v5, s[8:9] offset:8 sc1", "team")
        if n + 3 < NS: issue(n + 3)
        if n == 3:
            A(f"s_add_u32 s{sT}, s{sW12}, 147456\nv_add_u32 v5, s{sT}, v3\nv_add_u32 v6, s{sW12}, v3")
            oread(("O", 2, 1), 5, 0); wr(("O", 2, 1)); oread(("O", 3, 1), 6, 0)
        if n == 12:
            wr(("V", 7)); wr(("O", 3, 1))
            A(f"v_mov_b32 v5, {dbg_team_off}")
            A.label("Lteam")
            A(f"""
            v_readfirstlane_b32 s{sT}, v0
            v_readfirstlane_b32 s{sT+1}, v{SENT+3}
            s_add_u32 s{sT}, s{sT}, s{sT+1}
            s_cmp_ge_u32 s{sT}, {32 + nzero}
            s_cbranch_scc1 Lteamx
            global_load_dword v0, v5, s[8:9] sc1
            global_load_dword v{SENT+3}, v5, s[8:9] offset:8 sc1
            s_sub_u32 s{sSpin}, s{sSpin}, 1
            s_waitcnt vmcnt(0)
            s_cbranch_scc0 Lteam
            s_mov_b32 s{sSpin}, 0
            """)
            A.label("Lteamx")
            A("s_waitcnt lgkmcnt(0)")
            VM(f"global_load_dwordx4 {v(PB,4)}, v4, s[56:57]", "m0"); VM(f"global_load_dwordx4 {v(PB+4,4)}, v4, s[56:57] offset:512", "m0")
        if n == fn:
            A(f"""
            v_mbcnt_lo_u32_b32 v1, -1, 0
            v_mbcnt_hi_u32_b32 v1, -1, v1
            v_lshrrev_b32 v2, 4, v1
            v_min_u32 v2, 2, v2
            v_mul_u32_u24 v2, {RS}, v2
            v_and_b32 v1, 15, v1
            v_lshl_add_u32 v1, v1, 7, v2
            s_lshl_b32 s{sT}, s{sW}, 11
            s_add_u32 s{sT}, s{sT}, {WS_P + PM_OFF}
            """)
            VM(f"buffer_load_dword v{KX}, v1, {srd}, s{sT} offen sc1", "rt")
            for x in rt:
                A(f"""
                s_xor_b32 s{sT}, s{sH}, {x}
                s_lshl_b32 s{sT+1}, s{sW}, 5
                s_add_u32 s{sT}, s{sT}, s{sT+1}
                s_lshl_b32 s{sT}, s{sT}, 11
                s_add_u32 s{sT}, s{sT}, {WS_P}
                """)
                VM(f"buffer_load_dword v{KX}, v1, {srd}, s{sT} offen sc1", "rt")
        if n == 13 and full:
            A("s_mov_b64 exec, 31"); VM(kvl, "kv"); A("s_mov_b64 exec, -1")
        if st[0] == "O":
            A(f"s_add_u32 s{sT}, s{sW13}, {buf}\nv_add_u32 v5, s{sT}, v3")
            if n >= 13: A("s_waitcnt lgkmcnt(0)")
            for jj in range(2): oread(("O", st[2] + jj, st[1]), 5, jj*4096)
            for ch in {12: [("V", 6), ("K", 6)], 13: [("K", 2), ("Q", 3)], 14: [("Q", 2), ("O", 1, 1)]}[n]: wr(ch)
        else:
            for j in range(4):
                A(f"""
                s_xor_b32 s{sT}, s{sW}, {j}
                s_lshl_b32 s{sT}, s{sT}, 13
                s_add_u32 s{sT}, s{sT}, {buf}
                v_add_u32 v{5 + (j & 1)}, s{sT}, v2
                """)
                ch = (st[0], 2*j + st[1])
                for t in range(2):
                    kind, r0 = dest(ch, t)
                    for u in range(2):
                        A(f"ds_read_b64_tr_b16 {R(kind, r0 + 4*st[2] + 2*u, 2)}, v{5 + (j & 1)} offset:{u*1024 + 8*t}")
                if j == 1: A("s_waitcnt lgkmcnt(0)")
            A("s_waitcnt lgkmcnt(0)")
    if stamps:
        A(f"""
        s_memrealtime s[84:85]
        s_waitcnt lgkmcnt(0)
        v_writelane_b32 v7, s84, 15
        s_lshl_b32 s84, s2, 8
        s_add_u32 s84, s84, {WS_DBG + 65536}
        v_mbcnt_lo_u32_b32 v5, -1, 0
        v_mbcnt_hi_u32_b32 v5, -1, v5
        v_lshlrev_b32 v5, 2, v5
        buffer_store_dword v7, v5, {srd}, s84 offen
        """)
    A(f"""
    s_add_u32 s{SRDW}, s{SRD}, s{sKF}
    s_addc_u32 s{SRDW+1}, s{SRD+1}, 0
    s_cmp_eq_u32 s{sW}, 0
    s_cselect_b32 s{SRDW+2}, 80, 0
    """)
    if stamps: vm.append("st")
    wait("kv" if full else "m0")
    if full:
        A("s_mov_b64 exec, 31")
        A.label("LkvA")
        A(f"""
        v_cmp_ge_u32 vcc, s{sRdy}, v0
        s_cbranch_vccz LkvAx
        {kvl}
        s_sub_u32 s{sSpin}, s{sSpin}, 1
        s_waitcnt vmcnt(0)
        s_cbranch_scc0 LkvA
        s_mov_b32 s{sSpin}, 0
        """)
        A.label("LkvAx")
        A("s_mov_b64 exec, -1")
    for k in range(0, 8, 2): A(f"v_mov_b64 {v(k,2)}, {v(PB+k,2)}")
    A("s_waitcnt lgkmcnt(0)")


def ldsw_reads(ch, dst):
    return [f"ds_read_b128 {v(dst + 4*k, 4)}, v{SLOT[ch][0]} offset:{SLOT[ch][1] + 1024*k}" for k in range(4)]

MARKS = []
STREAM = {("Q", 2): S0_, ("Q", 3): S0_ + 16, ("K", 2): PB, ("K", 6): PB, ("V", 6): S0_, ("V", 7): S0_ + 16,
          ("O", 1, 1): S0_, ("O", 2, 1): S0_ + 16, ("O", 3, 1): M0_}

def emit_chain_loop(A, nsteps=63, diag=False, nvown=4, barpos=6, nopub=0, kvfix=0, trace=None, timing=0, full=0, steplog=0, tstep=31,
                    d0=18, d1=37, d2=51, d3=54, g0=36, g1=22, g2=15, g3=23, e0=25, e1=36, e2=27, e3=23, h0=36, h1=42, h2=40, h3=33,
                    j0=7, j1=7, j2=0, j3=11, i0=2, i1=8, i2=1, i3=11, nsp=1, bar=1, vp=(0, 2), mpos=16, zpos=18, mex=0, pex=1, cpos=0, rwid=1, rp=(20, 22),
                    fine=0, kpos=9, kr=2, rgap=16, srn=1, srs=2, nwv=0, npb=4, kp=(0, 2), vs=7, psh=1, zskip=0, zpre=1, zpost=0, zgap=0, nob=1, inc=1, ndef=3, wslots=(2, 3, 4, 5, 6, 7, 9), w6=0, kvt=None, pad=None, sa=1, sds=(1, 2, 5, 6, 10, 11, 12, 13, 14, 15, 17, 19), scv=(19, 21, 23, 23, 23, 23), sg0=0, svp=(0, 4), ssl=(3, 7, 21), nb1=0, nb2=0, dl=1):
    if sa: vp = svp
    px, k2, early3 = None, 2, 0
    assert nvown == 4
    npre = 0
    srd = f"s[{SRD}:{SRD+3}]"
    def stamp(k):
        MARKS.append(k)
        if diag and diag[0] == k: A(f"s_memtime s[{sTM}:{sTM+1}]")
        if diag and diag[1] == k: A(f"s_memtime s[{sTM+2}:{sTM+3}]")
        if trace and k in trace:
            r = 64 + 2*trace.index(k)
            A(f"s_memtime s[{r}:{r+1}]")
    def lg(n): A(f"s_waitcnt lgkmcnt({n})")
    del MARKS[:]
    def rd(ch):
        if sa and ch == ("K", 2): return ldsw_reads(("K", 2), PB)[:2] + ldsw_reads(("K", 6), PB + 8)[:2]
        if sa and ch == ("K", 6): return ldsw_reads(("K", 2), PB - 8)[2:] + ldsw_reads(("K", 6), PB)[2:]
        return ldsw_reads(ch, STREAM[ch])
    cv = lambda d, a, b: A(f"v_cvt_pk_bf16_f32 v{d}, v{a}, v{b}")
    pk = lambda op, d, a, b: A(f"v_pk_{op}_f32 {v(d,2)}, {v(a,2)}, {v(b,2)}")
    def junk():
        for x in rd(("Q", 2)) + rd(("Q", 3)) + rd(("K", 2)): A(x)
        for k in range(0, 24, 2): A(f"v_mov_b64 {v(PA+k,2)}, 0")
    def jz_():
        for k in range(0, 24, 2): A(f"v_mov_b64 {v(PA+k,2)}, 0")
    def rladder(xs, to):
        for k in range(3):
            if any(xs[k:]):
                A(f"s_cmp_eq_u32 s{sW}, {3 - k}\ns_cbranch_scc1 {to}")
                A.nop(xs[k])
        A.label(to)
    def rotate():
        A(f"""
        s_mov_b32 s{sT}, s{sA}
        s_mov_b32 s{sA}, s{sB}
        s_mov_b32 s{sB}, s{sCc}
        s_mov_b32 s{sCc}, s{sT}
        """)
    def mload(r):
        A(f"""
        buffer_load_dwordx4 {v(r,4)}, v{MOWN}, {srd}, s{sAM} offen sc1
        buffer_load_dwordx4 {v(r+4,4)}, v{MOWN}, {srd}, s{sAM} offen offset:1024 sc1
        """)
    def mcheck(r, t0, t1):
        A(f"""
        v_max3_u32 v{t0}, v{r}, v{r+1}, v{r+2}
        v_max3_u32 v{t1}, v{r+3}, v{r+4}, v{r+5}
        v_max3_u32 v{t0}, v{t0}, v{r+6}, v{r+7}
        v_max_u32 v{t0}, v{t0}, v{t1}
        v_cmp_eq_u32 vcc, -1, v{t0}
        """)
    def kvpoll(tag, ret):
        A.label(f"Lkv{tag}")
        A(f"""
        s_mov_b64 exec, 31
        buffer_load_dword v16, v{SMR}, s[{SRDW}:{SRDW+3}], 0 offen sc1
        s_waitcnt vmcnt(0)
        v_cmp_ge_u32 vcc, s{sRdy}, v16
        s_mov_b64 exec, -1
        s_cbranch_vccz {ret}
        s_sleep 1
        s_sub_u32 s{sSpin}, s{sSpin}, 1
        s_cbranch_scc0 Lkv{tag}
        s_mov_b32 s{sSpin}, 0
        """)
    def pub_all():
        A(f"""
        s_add_u32 s{sT}, s{sMH}, {PM_OFF}
        buffer_store_dwordx4 {v(0,4)}, v{MOWN}, {srd}, s{sT} offen sc1
        buffer_store_dwordx4 {v(4,4)}, v{MOWN}, {srd}, s{sT} offen offset:1024 sc1
        """)
    if diag: A("s_mov_b32 s70, 0")
    if steplog: A("s_memrealtime s[86:87]")
    A(f"""
    s_cmp_lg_u32 s{sH}, 0
    s_cbranch_scc1 Lnopub
    """)
    pub_all()
    A.label("Lnopub")
    A(f"""
    buffer_load_dwordx4 {v(KX,4)}, v{MOWN}, {srd}, s{sKV} offen sc1
    buffer_load_dwordx4 {v(KX+4,4)}, v{MOWN}, {srd}, s{sKV} offen offset:1024 sc1
    """)
    junk()
    assert psh and nsp == 1
    A(f"s_nop 0\nv_smfmac_f32_16x16x64_bf16 {v(AQ[0],4)}, {v(0,4)}, {reg_of(('Q', 0), 0)[0]}, v{IDX}\ns_branch Lp2cont")

    A(".p2align 6" if pad is None else f".p2align 11\n.fill {pad//4}, 4, 0xbf800000")
    A.label("Lp2a")
    A(f"s_waitcnt vmcnt({2*k2 - 1})")
    if trace: stamp("p2_w")
    A.label("Lstep")
    A(f"""
    v_max3_u32 v8, v0, v1, v2
    v_max_u32 v8, v8, v3
    s_waitcnt vmcnt({2*k2 - 2})
    v_max3_u32 v8, v8, v4, v5
    v_max3_u32 v8, v8, v6, v7
    v_cmp_le_u32 vcc, 0xffc00000, v8
    """)
    if nsp == 0: A("s_cbranch_vccnz Lp2r\nLp2cont:")
    stamp("m_in")
    def B(ch, t):
        if sa and ch in (("K", 2), ("K", 6)): return v(PB + 2*(ch[1] - 2), 8)
        if ch in STREAM: return v(STREAM[ch] + 8*t, 8)
        return reg_of(ch, t)[0]
    def QK(i): return [(AQ[0], 4*i, B(("Q", i), 0)), (AQ[1], 4*i, B(("Q", i), 1)), (AK[0], 4*i, B(("K", i), 0)), (AK[1], 4*i, B(("K", i), 1))]
    def VV(i): return [(AV[0], 4*i, B(("V", i), 0)), (AV[1], 4*i, B(("V", i), 1))]
    vown = VV(0) + VV(1)
    seq = QK(0) + QK(1) + vown[:nvown]
    if sa: seq = [seq[k] for k in (0, 4, 1, 5, 3, 7, 8, 10, 9, 11, 2, 6)]
    mreads = [f"ds_read_b128 {v(8*j + 4*ii, 4)}, v{MX[j]} offset:{1024*ii}" for j in (1, 2, 3) for ii in range(2)]
    fill = {k: [] for k in range(40)}
    if nsp: fill[nsp - 1] += ["s_cbranch_vccnz Lp2r", "Lp2cont:"]
    fill[max(nsp - 1, 0)] += [f"ds_write_b128 v{MOWN}, {v(0,4)}"]
    fill[max(nsp, 1)] += [f"ds_write_b128 v{MOWN}, {v(4,4)} offset:1024"]
    if not dl: fill[3] += [f"s_cmp_ge_u32 s{sStep}, {nsteps}", "s_cbranch_scc1 Lexit"]
    fill[barpos] += ["s_waitcnt lgkmcnt(0)", "s_barrier", mreads[0]]
    kstep = 0 if kvfix else 32*4*4096
    vl = [f"buffer_load_dwordx4 {v(VX,4)}, v{MOWN}, {srd}, s{sKV} offen offset:2048 sc1",
          f"buffer_load_dwordx4 {v(VX+4,4)}, v{MOWN}, {srd}, s{sKV} offen offset:3072 sc1", f"s_add_u32 s{sKV}, s{sKV}, {kstep}"]
    nA = len(seq)
    fb = {(i, k): [] for i in range(2, 8) for k in range(4)}
    FB = lambda x: fb[2 + x//4, x % 4] if x >= 0 else fill[nA + x]
    ex = lambda x, m: [f"s_mov_b64 exec, {m}", x, "s_mov_b64 exec, -1"] if mex else [x]
    FB(vp[0]).append(vl[0]); FB(vp[1]).extend(vl[1:])
    if not nopub: FB(mpos).extend(ex(f"buffer_store_dword v{PUB}, v{MST}, {srd}, s{sMP} offen sc1", f"s[{sEx1}:{sEx1+1}]"))
    if full:
        FB(kpos).extend(ex(f"buffer_load_dword v7, v{SMR}, s[{SRDW}:{SRDW+3}], 0 offen sc1", "31"))
        FB(ssl[0] if sa else 19).append(f"s_add_u32 s{sRdy}, s{sRdy}, 1")
        assert kpos >= 0
    FB(zpos).extend(ex(f"buffer_store_dword v{SENT}, v{MST}, {srd}, s{sB} offen", f"s[{sEx1}:{sEx1+1}]"))
    assert mpos >= 0
    if kvt is not None:
        assert kvt > vp[1] + 1
        FB(vp[1] + 1).extend([f"s_sub_u32 s{sT+3}, s{sKV}, s{sK6}", f"v_lshlrev_b32 v{KT}, 2, v{MOWN}"])
        FB(kvt).append(f"buffer_load_dword v{KT}, v{KT}, {srd}, s{sT+3} offen sc1")
    lastld = max([vp[1]] + ([kpos] if full else []) + (list(pp) if px is not None else []) + [-99])
    nyoung = 2 + sum(x > lastld for x in (zpos, rp[0], rp[1]) + (() if nopub else (mpos,)) + (() if kvt is None else (kvt,)))
    for k in range(1, 6): fill[min(barpos + k, nA - 1)] += [mreads[k]]
    if px is not None:
        fill[5] += [f"s_add_u32 s{sT}, s{sStep}, 1", f"v_mov_b32 v31, s{sT}"]
        fill[px] = [f"s_mov_b64 exec, s[{sExF}:{sExF+1}]", f"buffer_store_dword v31, v{MOWN}, {srd}, s{sFW} offen", "s_mov_b64 exec, -1"] + fill[px]
    for k, x in enumerate(seq):
        if fine and k: stamp(f"a{k}")
        sm(A, *x)
        for y in fill[k]: A(y)
    if not (trace and trace[0] == "A_end"): stamp("A_end")
    if trace: A(f"s_cmp_eq_u32 s{sStep}, {tstep}\ns_cbranch_scc1 Lexit2")
    if trace and trace[0] == "A_end": stamp("A_end")
    strm = {3: rd(("K", 6)), 4: rd(("V", 6)), 5: rd(("V", 7))}
    waits = {2: 5, 3: 4, 4: 7, 5: 10, 6: 8}
    if sa:
        st = strm[3] + strm[4][:2] + strm[5][:2] + strm[4][2:] + strm[5][2:]
        for x, y in zip(sds, st): FB(x).append(y)
        cvs = [(PB+2, AK[0]), (PB+3, AK[0]+2), (PB+0, AQ[0]), (PB+1, AQ[0]+2), (PB+4, AQ[1]), (PB+5, AQ[1]+2)]
        for x, (d, a) in zip(scv, cvs): FB(x).append(f"v_cvt_pk_bf16_f32 v{d}, v{a}, v{a+1}")
    else:
        for i in strm:
            for k in range(4): fb[i, k] += [strm[i][k]]
    fb[6, 2] += [f"s_add_u32 s{sAM}, s{sA}, {PM_OFF}"]
    if sa: FB(ssl[2])[:0] = [f"s_add_u32 s{sMH}, s{sMH}, {MHS}", f"s_mov_b32 s{sMP}, s{sMH}"]; assert ssl[2] > mpos
    else: FB(max(mpos + 1, 1)).extend([f"s_add_u32 s{sMH}, s{sMH}, {MHS}", f"s_mov_b32 s{sMP}, s{sMH}"])
    rw = f"dword v{SENT}"
    FB(rp[0]).append(f"buffer_store_{rw}, v{PLD}, {srd}, s{sCc} offen")
    FB(rp[1]).append(f"buffer_store_{rw}, v{PLD}, {srd}, s{sCc} offen offset:1024")
    FB(ssl[1] if sa else 23).append(f"s_add_u32 s{sStep}, s{sStep}, 1")
    if px is not None:
        for q, x in enumerate(pp):
            assert x < 16
            fb[2 + x//4, x % 4] = [f"buffer_load_dword v{q}, v{SMR}, {srd}, s{sFR} offen sc1"] + fb[2 + x//4, x % 4]
    if psh:
        FB(9).append(f"s_waitcnt vmcnt({sum(x <= 9 for x in list(vp) + list(rp) + [zpos] + ([kpos] if full else []) + ([] if nopub else [mpos]) + ([] if kvt is None else [kvt]))})")
        for k, x in enumerate([f"v_lshrrev_b32 v4, 1, v{MOWN}", "v_and_b32 v4, 128, v4", f"v_xor_b32 v0, v4, v{MOWN}"] +
                              [f"v_and_or_b32 v{j}, v{MX[j]}, s{sM7}, v4" for j in (1, 2, 3)]): FB(10 + k).append(x)
    if sa:
        for x in range(24):
            i = 2 + x % 6
            if x < 6: lg(5 - x + sum(y < x for y in sds))
            if x == 18: lg(sum(y < x for y in sds) - 4)
            if x == 0: stamp("B_start")
            if fine and x % 2 == 0: stamp(f"b{2 + x//4}{x % 4}")
            sm(A, *QK(i)[(2, 0, 1, 3)[x//6]])
            for y in FB(x): A(y)
    for i in range(2, 8) if not sa else ():
        if i in waits: A(f"s_waitcnt lgkmcnt({waits[i]})")
        if i == 2: stamp("B_start")
        for k, x in enumerate(QK(i)):
            if fine and k % 2 == 0: stamp(f"b{i}{k}")
            sm(A, *x)
            for y in fb[i, k]: A(y)
    stamp("QK_end")
    vq = VV(6) + VV(7) + VV(4) + VV(5) + VV(2) + VV(3) + vown[nvown:]
    if sa: vq = [vq[k] for k in (1, 3, 0, 2, 4, 6, 8, 10, 5, 7, 9, 11)]
    def vf(*after):
        sm(A, *vq.pop(0))
        for y in after: A(y)
    T = PB + 8
    if sa:
        A(f"v_mfma_f32_16x16x32_bf16 {v(PA,4)}, {v(PB,4)}, {v(SELT,4)}, 0")
        A.nop(sg0)
        cv(PB+6, AK[1], AK[1]+1); cv(PB+7, AK[1]+2, AK[1]+3)
        A("s_waitcnt lgkmcnt(0)\ns_nop 0")
        A(f"v_mfma_f32_16x16x32_bf16 {v(PA+4,4)}, {v(PB+4,4)}, {v(SELT,4)}, 0")
        vf()
        stamp("T_mfma")
        cv(T, PA, PA+1); cv(T+1, PA+2, PA+3); cv(T+2, PA+4, PA+5); cv(T+3, PA+6, PA+7)
    else:
        cv(PB+0, AQ[0], AQ[0]+1); cv(PB+1, AQ[0]+2, AQ[0]+3); cv(PB+4, AQ[1], AQ[1]+1); cv(PB+5, AQ[1]+2, AQ[1]+3)
        cv(PB+2, AK[0], AK[0]+1); cv(PB+3, AK[0]+2, AK[0]+3); cv(PB+6, AK[1], AK[1]+1); cv(PB+7, AK[1]+2, AK[1]+3)
        A(f"v_mfma_f32_16x16x32_bf16 {v(PA,4)}, {v(PB,4)}, {v(SELT,4)}, 0")
        A("s_waitcnt lgkmcnt(0)")
        A(f"v_mfma_f32_16x16x32_bf16 {v(PA+4,4)}, {v(PB+4,4)}, {v(SELT,4)}, 0")
        vf()
        T = PB + 8
        stamp("T_mfma")
        cv(T, PA, PA+1); cv(T+1, PA+2, PA+3); cv(T+2, PA+4, PA+5); cv(T+3, PA+6, PA+7)
    A.nop(2)
    wo = rd(("O", 1, 1))[:2] + rd(("O", 2, 1))[:2] + rd(("O", 1, 1))[2:] + rd(("O", 2, 1))[2:]
    nw = 0
    def W():
        nonlocal nw
        nw += 1
        return wo[nw - 1] if nw <= 8 - ndef else ""
    A(f"v_mfma_f32_16x16x32_bf16 {v(PA,4)}, {v(KX,4)}, {v(T,4)}, 0")
    if npre >= 1: A(W())
    A(f"v_mfma_f32_16x16x32_bf16 {v(PA+4,4)}, {v(KX+4,4)}, {v(T,4)}, 0")
    if npre >= 2: A(W())
    A(f"v_mfma_f32_16x16x32_bf16 {v(PA+8,4)}, {v(T,4)}, {v(T,4)}, 0")
    stamp("S_mfma")
    kl = [f"buffer_load_dwordx4 {v(KX,4)}, v{MOWN}, {srd}, s{sKV} offen sc1", f"buffer_load_dwordx4 {v(KX+4,4)}, v{MOWN}, {srd}, s{sKV} offen offset:1024 sc1"]
    if vs & 1: vf()
    else: A.nop(4)
    for g in range(4): A(f"v_mov_b32_dpp v{PA+g}, v{PA+4+g} row_ror:8 row_mask:0xf bank_mask:0xc")
    if vs & 2: vf()
    A(f"ds_write_b128 v{MOWN}, {v(PA,4)} offset:{LDS_SC}")
    for g in range(2): A(f"v_mov_b32_dpp v{PA+8+g}, v{PA+10+g} row_ror:8 row_mask:0xf bank_mask:0xc")
    if vs & 4: vf()
    A(f"ds_write_b64 v{SMW}, {v(PA+8,2)} offset:{LDS_SC+1024}")
    stamp("S_written")
    n0 = nw
    zs = [24, 26, 28, 30, 16, 18, 20, 22]
    def Z():
        done = 16 - nvown - len(vq)
        need = {24: 4, 26: 4, 28: 5, 30: 5, 16: 10, 18: 10, 20: 11, 22: 11} if sa else {24: 3, 26: 3, 28: 5, 30: 5, 16: 7, 18: 7, 20: 9, 22: 9}
        if zs and done >= need[zs[0]]: return f"v_mov_b64 {v(zs.pop(0),2)}, 0"
        return ""
    for k in range(npb):
        vf(*[kl[q] for q in range(2) if kp[q] == k])
        if zpre and k not in kp and k < npb - 1: A(Z())
    stamp("preB2")
    lg(nw - n0)
    A("s_barrier")
    stamp("B2")
    xr = [f"ds_read_b128 {v(PA+4*j,4)}, v{MX[j]} offset:{LDS_SC}" for j in (1, 2, 3)]
    mr = [f"ds_read_b128 {v(PB+4*pr,4)}, v{SMR} offset:{LDS_SC+2048*pr+1024}" for pr in range(2)]
    WA = [16, 20, 24, 28]
    sr = [xr[0], xr[1], xr[2], mr[0], mr[1]]
    for x in sr[:srn]: A(x)
    sr = sr[srn:]
    n0 = nw
    nz = 0
    while vq:
        nz += 1
        if sr: vf(*sr[:srs]); sr = sr[srs:]
        elif len(vq) <= nwv: vf(W())
        else: vf()
        if nz > zskip: A(Z())
    for k in range(zpost): A(Z())
    stamp("V_end")
    nl = nw - n0
    if inc == 0:
        lg(nl)
        stamp("S_read")
        pk("add", PA, PA, PA+4); pk("add", PA+2, PA+2, PA+6); pk("add", PB, PB, PB+2)
        pk("add", PA+8, PA+8, PA+12); pk("add", PA+10, PA+10, PA+14); pk("add", PB+4, PB+4, PB+6)
        pk("add", PA, PA, PA+8); pk("add", PA+2, PA+2, PA+10); pk("add", PB, PB, PB+4)
    elif inc == 1:
        lg(nl + 2)
        stamp("S_read")
        pk("add", PA, PA, PA+4); pk("add", PA+2, PA+2, PA+6)
        pk("add", PA+8, PA+8, PA+12); pk("add", PA+10, PA+10, PA+14)
        pk("add", PA, PA, PA+8); pk("add", PA+2, PA+2, PA+10)
        lg(nl)
        pk("add", PB, PB, PB+2); pk("add", PB+4, PB+4, PB+6); pk("add", PB, PB, PB+4)
    else:
        lg(nl + 4)
        stamp("S_read")
        pk("add", PA, PA, PA+4); pk("add", PA+2, PA+2, PA+6)
        lg(nl + 3)
        pk("add", PA, PA, PA+8); pk("add", PA+2, PA+2, PA+10)
        lg(nl + 2)
        pk("add", PA, PA, PA+12); pk("add", PA+2, PA+2, PA+14)
        lg(nl)
        pk("add", PB, PB, PB+2); pk("add", PB+4, PB+4, PB+6); pk("add", PB, PB, PB+4)
    stamp("adds")
    X, Y = PB+2, PB+3
    ON, SU = PA + 4, PA + 8
    VM = PB + 12
    A(f"""
    v_max3_f32 v{X}, v{PA}, v{PA+1}, v{PA+2}
    v_max3_f32 v{Y}, v{PA+3}, v{PB}, v{PB+1}
    v_max_f32 v{X}, v{X}, v{Y}
    """)
    cv(VM, AV[0], AV[0]+1); cv(VM+1, AV[0]+2, AV[0]+3)
    A(f"""
    v_max_f32_dpp v{Y}, v{X}, v{X} row_ror:8 row_mask:0xf bank_mask:0xf
    v_max_f32_dpp v{X}, v{X}, v{X} row_ror:8 row_mask:0xf bank_mask:0xf
    """)
    cv(VM+2, AV[1], AV[1]+1); cv(VM+3, AV[1]+2, AV[1]+3)
    A(f"""
    v_permlane16_swap_b32 v{X}, v{Y}
    v_max_f32 v{PB+4}, v{X}, v{Y}
    v_max_f32 v{PB+5}, v{X}, v{Y}
    v_pk_mov_b32 {v(ON+2*psh,2)}, s[{sOne}:{sOne+1}], s[{sOne}:{sOne+1}] op_sel:[0,0]
    v_pk_mov_b32 {v(ON+2-2*psh,2)}, s[{sOne}:{sOne+1}], s[{sOne}:{sOne+1}] op_sel:[1,1]
    v_permlane32_swap_b32 v{PB+4}, v{PB+5}
    v_max_f32 v{X}, v{PB+4}, v{PB+5}
    v_mul_f32 v{X}, s{sC}, v{X}
    """)
    stamp("max")
    for r in (PA, PA+2, PB):
        A(f"v_pk_fma_f32 {v(r,2)}, {v(r,2)}, s[{sC}:{sC+1}], {v(X,2)} op_sel_hi:[1,0,0] neg_lo:[0,0,1] neg_hi:[0,0,1]")
    for r in [PB, PB+1, PA, PA+1, PA+2, PA+3]: A(f"v_exp_f32 v{r}, v{r}")
    stamp("exp")
    if psh:
        PM, PX = PB + 4, PB + 6
        cv(PM, PB, PB+1); cv(PX, PA, PA+1); cv(PX+1, PA+2, PA+3)
        A(f"""
        v_mov_b32_dpp v{PM+1}, v{PM} row_ror:8 row_mask:0xf bank_mask:0xf
        v_mov_b32_dpp v{PX+2}, v{PX} row_ror:8 row_mask:0xf bank_mask:0xf
        v_mov_b32_dpp v{PX+3}, v{PX+1} row_ror:8 row_mask:0xf bank_mask:0xf
        v_mfma_f32_16x16x32_bf16 {v(SU,4)}, {v(ON,4)}, {v(PM,4)}, 0
        {W() if nw < 5 else ""}
        s_waitcnt vmcnt({nyoung})
        """)
    else:
        PX, PM = PB + 4, PB + 8
        cv(PM, PB, PB+1); cv(PM+1, PB, PB+1); cv(PX+2, PA, PA+1); cv(PX+3, PA+2, PA+3); cv(PX, PA, PA+1); cv(PX+1, PA+2, PA+3)
        A(f"""
        v_mfma_f32_16x16x32_bf16 {v(SU,4)}, {v(ON,4)}, {v(PX+2,4)}, 0
        {W() if nw < 4 else ""}
        s_waitcnt vmcnt({nyoung})
        v_mov_b32_dpp v{PX+2}, v{PX+2} row_ror:8 row_mask:0xf bank_mask:0x3
        v_mov_b32_dpp v{PX+3}, v{PX+3} row_ror:8 row_mask:0xf bank_mask:0x3
        v_mov_b32_dpp v{PX}, v{PX} row_ror:8 row_mask:0xf bank_mask:0xc
        v_mov_b32_dpp v{PX+1}, v{PX+1} row_ror:8 row_mask:0xf bank_mask:0xc
        v_mov_b32_dpp v{PM}, v{PM} row_ror:8 row_mask:0xf bank_mask:0xc
        v_mov_b32_dpp v{PM+1}, v{PM+1} row_ror:8 row_mask:0xf bank_mask:0x3
        """)
    stamp("Pcvt")
    sadd = f"v_add_f32_dpp v{X}, v{SU}, v{SU} row_ror:8 row_mask:0xf bank_mask:0xf"
    srcp = f"v_rcp_f32 v{X}, v{X}"
    OA = 0
    pvf = [[Z()], [sadd], [srcp]] if psh else [[sadd], [srcp], []]
    A(f"""
    v_mfma_f32_16x16x32_bf16 {v(AV[0],4)}, {v(VX,4)}, {v(PX,4)}, 0
    {W()}
    {"".join(pvf[0])}
    v_mfma_f32_16x16x32_bf16 {v(AV[1],4)}, {v(VX+4,4)}, {v(PX,4)}, 0
    {W()}
    {"".join(pvf[1])}
    v_mfma_f32_16x16x16_bf16 {v(AV[0],4)}, {v(VM,2)}, {v(PM,2)}, {v(AV[0],4)}
    {W()}
    {"".join(pvf[2])}
    v_mfma_f32_16x16x16_bf16 {v(AV[1],4)}, {v(VM+2,2)}, {v(PM,2)}, {v(AV[1],4)}
    """)
    left = max(0, 8 - ndef - nw)
    for k in range(left): A(W())
    nzz = min(len(zs), 4 - max(left, 1))
    A.nop(4 - left - nzz)
    for k in range(nzz): A(Z())
    zm = [Z() for k in range(len(zs))]
    assert nw >= 8 - ndef
    OF = [PB+4, VX, VX+4, PB+8]
    for k in range(2):
        A(f"v_pk_mul_f32 {v(AV[0]+2*k,2)}, {v(AV[0]+2*k,2)}, {v(X,2)} op_sel_hi:[1,0]")
    cv(OF[0], AV[0], AV[0]+1); cv(OF[0]+1, AV[0]+2, AV[0]+3)
    stamp("rcp")
    for k in range(2):
        A(f"v_pk_mul_f32 {v(AV[1]+2*k,2)}, {v(AV[1]+2*k,2)}, {v(X,2)} op_sel_hi:[1,0]")
    cv(OF[0]+2, AV[1], AV[1]+1); cv(OF[0]+3, AV[1]+2, AV[1]+3)
    A(f"ds_write_b128 v{OA if psh else MOWN}, {v(OF[0],4)}")
    stamp("o_written")
    if psh:
        for k in range(4): A(f"v_mov_b32_dpp v{OF[0]+k}, v{OF[0]+k} row_ror:8 row_mask:0xf bank_mask:0xc")
    for z in zm: A(z)
    if full: A(f"v_cmp_ge_u32 s[{sKM}:{sKM+1}], s{sRdy}, v7")
    if px is not None:
        for q in range(len(pp)): A(f"v_cmp_ne_u32 s[{sPM+2*q}:{sPM+2*q+1}], s{sStep}, v{q}")
    A.nop(2 - len(zm) - (1 if full else 0))
    def OO(j, i): return [(WA[2*i+t], OF[j], B(("O", j, i), t)) for t in range(2)]
    OG = lambda j, g: OO(j, g >> 1)[g & 1]
    own = [OG(0, 2), OG(0, 3), OG(0, 1), OG(0, 0)]
    for x in own[:nob]: sm(A, *x)
    A("s_waitcnt lgkmcnt(0)")
    A("s_barrier")
    stamp("B3")
    dsq = []
    def DS(x):
        A(x); dsq.append(set(parse_operand(x.split()[1].rstrip(","))))
    for j in (1, 2, 3): DS(f"ds_read_b128 {v(OF[j],4)}, v{OA + j if psh else MX[j]}")
    wo3 = rd(("O", 3, 1))
    PK = AV[0]
    wseq = [None]*(nob - 1) + own[nob:] + [OG(j, g) for g in range(4) for j in (1, 2, 3)]
    cvs = lambda g: [f"v_cvt_pk_bf16_f32 v{PK+2*g+q}, v{WA[g]+2*q}, v{WA[g]+2*q+1}" for q in range(2)]
    sG = [sA, sT, sT+1, sT+2]
    gst = lambda g: f"buffer_store_dwordx2 {v(PK+2*g,2)}, v{PST}, {srd}, s{sG[g]} offen"
    fw = {k: [] for k in range(16)}
    fw[0] += [f"s_add_u32 s{sT}, s{sA}, 65536"]; fw[1] += [f"s_add_u32 s{sT+1}, s{sA}, 131072"]
    fw[2] += [f"s_add_u32 s{sT+2}, s{sA}, 196608"]
    if w6: fw[6] += ["s_waitcnt vmcnt(2)"]
    for k, x in zip(wslots, wo3[:2] + wo[8 - ndef:] + wo3[2:]): fw[k] = [x] + fw[k]
    assert len(wslots) >= 4 + ndef
    for g in range(3):
        k = 3 + 3*g + 4
        if cpos == 0: fw[k] += cvs(g); fw[k+1] += [gst(g)]
        if cpos == 1: fw[k] += cvs(g) + [gst(g)]
        if cpos == 2: fw[k] += cvs(g)[:1]; fw[k+1] += cvs(g)[1:]; fw[k+2] = [gst(g)] + fw[k+2]
    got = [0]
    def ready(k):
        x = wseq[k]
        if not x: return
        use = set(parse_operand(v(x[1], 4))) | set(parse_operand(x[2]))
        need_ = max([i + 1 for i, d in enumerate(dsq) if d & use] + [0])
        if need_ > got[0]:
            if k >= 9: need_ = max(need_, len(dsq) - sum(q >= k - 4 and q < k for q in wslots[:4 + ndef]))
            lg(len(dsq) - need_); got[0] = need_
    for k, x in enumerate(wseq):
        if k == 3: stamp("o_read")
        if k == 9: stamp("early_end")
        if x: sm(A, *x)
        nv = next((i for i, y in enumerate(fw[k]) if y.startswith("v_")), len(fw[k]))
        for i, y in enumerate(fw[k] + [None]):
            if i == nv and k + 1 < len(wseq): ready(k + 1)
            if y is None: break
            if y.startswith("ds_read"): DS(y)
            else: A(y)
            if y == gst(0) and trace: stamp("est")
    stamp("late_end")
    tail = fw[15] + ([f"s_and_b32 s{sKM}, s{sKM}, s{sExK}", "s_cbranch_scc1 LkvB", "LkvBret:"] if 0 else [])
    for y in tail: A(y)
    if px is not None: A(f"s_cmp_eq_u64 s[{sPM}:{sPM+1}], 0")
    A.nop(8 - len(fw[14]) - len(tail) - (px is not None) - (2 if any(y.startswith("v_") for y in fw[14]) else 0))
    for y in cvs(3): A(y)
    A(gst(3))
    stamp("stored")
    RA = VX
    def pload(r):
        for k in range(2): A(f"buffer_load_dwordx4 {v(r+4*k,4)}, v{PLD}, {srd}, s{sA} offen offset:{1024*k} sc1")
    dacc = f"s_waitcnt lgkmcnt(0)\ns_sub_u32 s{sT+2}, s{sTM+2}, s{sTM}\ns_add_u32 s70, s70, s{sT+2}"
    if px is not None:
        for q in range(len(pp)):
            A("s_cbranch_scc1 Lsync")
            A.nop(eps[q])
            if q + 1 < len(pp): A(f"s_cmp_eq_u64 s[{sPM+2*q+2}:{sPM+2*q+3}], 0")
        A.label("Lsync")
    if bar: A("s_barrier")
    if trace: stamp("lbar")
    if diag: A(dacc)
    if timing: A(f"s_cmp_eq_u32 s{sStep}, 3\ns_cbranch_scc1 Ltm\nLtmret:")
    A(f"""
    s_cmp_eq_u32 s{sW}, 1
    s_cbranch_scc1 Lh1
    s_cmp_eq_u32 s{sW}, 2
    s_cbranch_scc1 Lh2
    s_cmp_eq_u32 s{sW}, 3
    s_cbranch_scc1 Lh3
    """)
    jr = rd(("Q", 2)) + rd(("Q", 3)) + rd(("K", 2))
    def pproc(r, base):
        for k in range(2):
            A(f"s_waitcnt vmcnt({base + 1 - k})")
            A(f"v_mfma_f32_16x16x32_bf16 {v(RA,4)}, {v(SELR,4)}, {v(r+4*k,4)}, {v(RA,4) if k else 0}")
        if trace: stamp("p1_data")
        A(f"""
        s_nop 7
        v_add_f32_dpp v{RA}, v{RA}, v{RA} row_ror:4 row_mask:0xf bank_mask:0xf
        v_add_f32_dpp v{RA+1}, v{RA+1}, v{RA+1} row_ror:4 row_mask:0xf bank_mask:0xf
        s_nop 0
        v_add_f32_dpp v{RA}, v{RA}, v{RA} row_ror:8 row_mask:0xf bank_mask:0xf
        v_add_f32_dpp v{RA+1}, v{RA+1}, v{RA+1} row_ror:8 row_mask:0xf bank_mask:0xf
        {f"s_mov_b64 exec, s[{sEx1}:{sEx1+1}]" if pex else ""}
        v_cvt_pk_bf16_f32 v{PUB}, v{RA}, v{RA+1}
        buffer_store_dword v{PUB}, v{MST}, {srd}, s{sA} offen
        """)
        if trace: stamp("pub")
        A(f"""
        v_cmp_u_f32 vcc, v{RA+1}, v{RA+1}
        {"s_mov_b64 exec, -1" if pex else ""}
        """)
    for w in range(4):
        d, g, e, h, jl = [(d0, g0, e0, h0, j0), (d1, g1, e1, h1, j1), (d2, g2, e2, h2, j2), (d3, g3, e3, h3, j3)][w]
        A.label(f"Lh{w}")
        ni = [i0, i1, i2, i3][w]; jl = min(12, ni + jl)
        for x in jr[:ni]: A(x); A.nop(2)
        A.nop(max(0, d - 3*ni - (3 if timing else 0) - [6, 8, 10, 12][w]))
        if trace: stamp("p1_first")
        pload(0)
        jz_()
        n1 = nb1 >> w & 1
        if not n1: A.nop(g); pload(8)
        for x in jr[ni:jl]: A(x)
        A.label(f"Lp1w{w}")
        pproc(0, 0 if n1 else 2)
        A(f"s_cbranch_vccnz Lp1r{w}")
        A.label(f"Lp1done{w}")
        if dl: A(f"s_cmp_ge_u32 s{sStep}, {nsteps}\ns_cbranch_scc1 Lexit"); e -= 2
        for x in jr[jl:]: A(x)
        if full and w == 0:
            A(f"s_and_b32 s{sKM}, s{sKM}, 31\ns_cbranch_scc1 LkvB")
        A.nop(e - (3 if full and w == 0 else 0))
        A.label(f"Lp2_{w}")
        if trace: stamp("p2_first")
        mload(0)
        if steplog and w == 0: A(f"s_memrealtime s[80:81]\ns_memtime s[82:83]\ns_cmp_eq_u32 s{sHW}, 0\ns_cbranch_scc1 Llog\nLlogret:")
        rotate()
        if nb2 >> w & 1:
            A("s_mov_b64 exec, 1"); mload(0); A("s_mov_b64 exec, -1")
        else:
            A.nop(h - 4); mload(0)
        A("s_branch Lp2a")
        A.label(f"Lp1r{w}")
        if n1: pload(0)
        else:
            pproc(8, 1)
            A(f"s_cbranch_vccz Lp1done{w}")
            pload(0); A.nop(24); pload(8)
        A(f"s_sub_u32 s{sSpin}, s{sSpin}, 1\ns_cbranch_scc0 Lp1w{w}")
        A(f"""
        s_mov_b32 s{sSpin}, 0
        v_mov_b32 v{PUB}, 0x7fc07fc0
        s_waitcnt vmcnt(0)
        buffer_store_dword v{PUB}, v{MST}, {srd}, s{sA} offen
        s_branch Lp1done{w}
        """)
    def chk2(n):
        A(f"""
        s_waitcnt vmcnt({n + 1})
        v_max3_u32 v8, v0, v1, v2
        v_max_u32 v8, v8, v3
        s_waitcnt vmcnt({n})
        v_max3_u32 v8, v8, v4, v5
        v_max3_u32 v8, v8, v6, v7
        v_cmp_le_u32 vcc, 0xffc00000, v8
        """)
        for k in range(0, 4*nsp, 2): A(f"v_mov_b64 {v(PA+k,2)}, 0")
        if nsp: A("s_nop 1")
        for x in seq[:nsp]: sm(A, *x)
        A("s_cbranch_vccz Lp2cont")
    def relook():
        A("s_mov_b64 exec, vcc")
        mload(0)
        A("s_mov_b64 exec, -1")
    A(".p2align 4")
    A.label("Lp2r")
    if early3: relook()
    for q in range(k2 - 1): chk2(2*(k2 - 2 - q) + (2 if early3 else 0))
    for q in range(kr - 1 - (1 if early3 else 0)):
        relook(); A.nop(rgap)
    A.label("Lp2q")
    relook()
    A(f"s_sub_u32 s{sSpin}, s{sSpin}, 1\ns_cbranch_scc1 Lp2giveup")
    chk2(2*(kr - 1))
    A("s_branch Lp2q")
    A.label("Lp2giveup")
    A(f"""
    s_mov_b32 s{sSpin}, 0
    s_waitcnt vmcnt(0)
    s_branch Lp2cont
    """)
    if timing:
        A.label("Ltm")
        A(f"s_memtime s[96:97]\ns_mov_b32 s98, s{sSpin}\ns_branch Ltmret")
    if steplog:
        A.label("Llog")
        A(f"""
        s_lshl_b32 s84, s{sStep}, 3
        s_add_u32 s84, s84, {WS_DBG + 8192 - 8}
        s_waitcnt lgkmcnt(0)
        v_mov_b32 v16, s80
        v_mov_b32 v17, s82
        s_mov_b64 exec, 1
        buffer_store_dwordx2 v[16:17], off, {srd}, s84
        s_mov_b64 exec, -1
        s_branch Llogret
        """)
    if full:
        kvpoll("B", "Lp2_0"); A("s_branch Lp2_0")
    A.label("Lexit")
    if dl:
        A(f"buffer_store_dword v{PUB}, v{MST}, {srd}, s{sMP} offen sc1\ns_waitcnt vmcnt(0) lgkmcnt(0)")
        if trace: A.label("Lexit2")
        return
    L = A.newlabel("Lfin")
    A(f"""
    s_cmp_lg_u32 s{sH}, 0
    s_cbranch_scc1 {L}
    """)
    pub_all()
    A(f"""
    buffer_store_dword v{PUB}, v{MST}, {srd}, s{sMH} offen sc1
    s_add_u32 s{sMH}, s{sMH}, {MHS}
    s_waitcnt vmcnt(0)
    s_barrier
    s_mov_b64 exec, 16
    buffer_store_dword v{PUB}, v{MST}, {srd}, s{sMH} offen sc1
    """)
    A.label(L)
    A("s_mov_b64 exec, -1")
    if trace: A.label("Lexit2")
```

```python
from asmlib import *
from layout import *
import struct, math
def fbits(x): return struct.unpack("<I", struct.pack("<f", x))[0]

SRD = 4; sU, sW, sJ, sSig = 10, 11, 12, 13
sS, sSpin = 14, 18
SRDW = 28; sT = 36
L16 = 1
UROW = 4608
KROW = 4160
L_U, L_K, L_Y = 0, 8*UROW, 8*UROW + 8*KROW
L_RED = 0

def emit_conv_out(A, stamps=False, slp=2, osc='', na=14):
    srd = f"s[{SRD}:{SRD+3}]"; srw = f"s[{SRDW}:{SRDW+3}]"
    cv = lambda d, a, b: A(f"v_cvt_pk_bf16_f32 v{d}, v{a}, v{b}")
    lo = lambda d, a: A(f"v_lshlrev_b32 v{d}, 16, v{a}")
    hi = lambda d, a: A(f"v_and_b32 v{d}, 0xffff0000, v{a}")
    A(f"""
    s_load_dwordx2 s[{SRD}:{SRD+1}], s[0:1], {KA['ws']}
    s_load_dwordx2 s[8:9], s[0:1], {KA['dbg']}
    s_load_dwordx4 s[48:51], s[0:1], {KA['Bk']}
    s_load_dwordx4 s[52:55], s[0:1], {KA['shift']}
    s_load_dwordx4 s[56:59], s[0:1], {KA['ssmD']}
    s_load_dwordx2 s[60:61], s[0:1], {KA['x']}
    s_load_dwordx2 s[62:63], s[0:1], {KA['Wo']}
    s_load_dwordx2 s[64:65], s[0:1], {KA['out']}
    v_lshrrev_b32 v5, 6, v0
    v_and_b32 v2, 63, v0
    v_readfirstlane_b32 s{sW}, v5
    v_and_b32 v3, 15, v2
    v_lshrrev_b32 v4, 4, v2
    v_lshlrev_b32 v{L16}, 4, v2
    s_mov_b32 s{SRD+2}, {WS_SIZE}
    s_mov_b32 s{SRD+3}, 0x00020000
    s_mov_b32 s{SRDW+2}, {2*MB}
    s_mov_b32 s{SRDW+3}, 0x00020000
    s_mov_b32 s66, {2*MB}
    s_mov_b32 s67, 0x00020000
    s_mov_b32 s{sSpin}, {SPIN}
    s_and_b32 s{sJ}, s{sU}, 15
    s_lshr_b32 s{sSig}, s{sU}, 4
    s_lshl_b32 s{sT}, s{sJ}, 2
    s_add_u32 s{sT}, s{sT}, s{sSig}
    s_lshl_b32 s{sT+1}, s{sT}, 4
    s_lshl_b32 s{sT+2}, s{sT}, 6
    s_waitcnt lgkmcnt(0)
    s_add_u32 s52, s52, s{sT+2}
    s_addc_u32 s53, s53, 0
    s_add_u32 s56, s56, s{sT+1}
    s_addc_u32 s57, s57, 0
    s_load_dwordx16 s[80:95], s[52:53], 0
    s_load_dwordx4 s[96:99], s[56:57], 0
    """)
    KR, VR, KV = 16, 60, 92
    A(f"""
    v_lshlrev_b32 v6, 13, v0
    v_add_u32 v6, s{sT+1}, v6
    v_subrev_u32 v7, 3072, v6
    v_add_u32 v8, 4096, v6
    s_mov_b32 s{SRDW}, s48
    s_mov_b32 s{SRDW+1}, s49
    """)
    for r in range(3): A(f"buffer_load_dwordx4 {v(KR + 4*r, 4)}, v7, {srw}, 0 offen offset:{r*1024}")
    for r in range(8): A(f"buffer_load_dwordx4 {v(KR + 12 + 4*r, 4)}, v{6 if r < 4 else 8}, {srw}, 0 offen offset:{(r & 3)*1024}")
    A(f"s_mov_b32 s{SRDW}, s50\ns_mov_b32 s{SRDW+1}, s51")
    for r in range(8): A(f"buffer_load_dwordx4 {v(VR + 4*r, 4)}, v{6 if r < 4 else 8}, {srw}, 0 offen offset:{(r & 3)*1024}")
    A(f"""
    s_mov_b32 s{SRDW}, s54
    s_mov_b32 s{SRDW+1}, s55
    s_lshl_b32 s{sT+2}, s{sT}, 15
    s_lshl_b32 s{sT+3}, s{sW}, 13
    s_add_u32 s{sT+2}, s{sT+2}, s{sT+3}
    s_mul_i32 s{sT+3}, s{sW}, {2*KROW}
    """)
    for c in range(2):
        for q in range(4):
            A(f"""
            s_add_u32 m0, s{sT+3}, {L_K + c*KROW + 64 + q*1024}
            s_add_u32 s{sT+4}, s{sT+2}, {c*4096 + q*1024}
            buffer_load_dwordx4 v{L16}, {srw}, s{sT+4} offen lds
            """)
    A(f"""
    v_mov_b32 v124, 0
    v_mov_b32 v125, 0
    v_mov_b32 v126, 0
    v_mov_b32 v127, 0
    v_lshrrev_b32 v9, 5, v0
    v_mul_u32_u24 v10, {UROW}, v9
    v_and_b32 v11, 31, v0
    v_lshl_add_u32 v10, v11, 4, v10
    ds_write_b128 v10, v[124:127] offset:{L_U}
    v_mul_u32_u24 v10, {KROW}, v9
    v_and_b32 v11, 3, v0
    v_lshl_add_u32 v10, v11, 4, v10
    ds_write_b128 v10, v[124:127] offset:{L_K}
    """)
    GX, GW = 128, 160
    A(f"""
    s_lshl_b32 s{sT+2}, s{sU}, 15
    s_lshl_b32 s{sT+3}, s{sW}, 13
    s_add_u32 s{sT+2}, s{sT+2}, s{sT+3}
    v_add_u32 v9, s{sT+2}, v{L16}
    v_add_u32 v10, 4096, v9
    global_load_dwordx4 {v(GW,4)}, v{L16}, s[58:59]
    """)
    for r in range(8): A(f"global_load_dwordx4 {v(GX + 4*r, 4)}, v{9 if r < 4 else 10}, s[60:61] offset:{(r & 3)*1024}")
    A("s_waitcnt vmcnt(0) lgkmcnt(0)")
    W8 = 164
    for k in range(4): lo(W8 + 2*k, GW + k); hi(W8 + 2*k + 1, GW + k)
    T0 = 172
    for r in range(8):
        for k in range(4):
            lo(T0, GX + 4*r + k); hi(T0 + 1, GX + 4*r + k)
            A(f"v_mul_f32 v{T0}, v{T0}, v{W8 + 2*k}\nv_mul_f32 v{T0+1}, v{T0+1}, v{W8 + 2*k + 1}")
            cv(T0 + 2, T0, T0 + 1)
            lo(T0, T0 + 2); hi(T0 + 1, T0 + 2)
            if k == 0: A(f"v_add_f32 v{180 + r}, v{T0}, v{T0+1}")
            else: A(f"v_add_f32 v{T0}, v{T0}, v{T0+1}\nv_add_f32 v{180 + r}, v{180 + r}, v{T0}")
    A.nop(2)
    for mod in ("quad_perm:[1,0,3,2]", "quad_perm:[2,3,0,1]", "row_ror:4", "row_ror:8"):
        for r in range(8): A(f"v_add_f32_dpp v{180+r}, v{180+r}, v{180+r} {mod} row_mask:0xf bank_mask:0xf")
    A(f"v_and_b32 v{T0}, 7, v3\nv_mov_b32 v{T0+1}, v180")
    for r in range(1, 8): A(f"v_cmp_eq_u32 vcc, {r}, v{T0}\ns_nop 1\nv_cndmask_b32 v{T0+1}, v{T0+1}, v{180+r}, vcc")
    A(f"""
    v_mov_b32 v{T0+2}, v{T0+1}
    s_nop 1
    v_permlane16_swap_b32 v{T0+1}, v{T0+2}
    v_add_f32 v{T0+3}, v{T0+1}, v{T0+2}
    v_add_f32 v{T0+4}, v{T0+1}, v{T0+2}
    s_nop 1
    v_permlane32_swap_b32 v{T0+3}, v{T0+4}
    v_add_f32 v{T0+1}, v{T0+3}, v{T0+4}
    v_cvt_pk_bf16_f32 v{T0+1}, v{T0+1}, v{T0+1}
    v_and_b32 v{T0+1}, 0xffff0000, v{T0+1}
    v_mul_f32 v{T0+1}, {fbits(-math.log2(math.e))}, v{T0+1}
    v_exp_f32 v{T0+1}, v{T0+1}
    s_nop 0
    v_add_f32 v{T0+1}, 1.0, v{T0+1}
    v_rcp_f32 v{T0+1}, v{T0+1}
    s_nop 0
    v_cvt_pk_bf16_f32 v{T0+1}, v{T0+1}, v{T0+1}
    v_and_b32 v{T0+1}, 0xffff0000, v{T0+1}
    s_lshr_b32 s{sT+2}, s{sT+2}, 8
    s_add_u32 s{sT+2}, s{sT+2}, {WS_G}
    v_lshlrev_b32 v{T0}, 2, v{T0}
    s_mov_b64 exec, 0xff
    buffer_store_dword v{T0+1}, v{T0}, {srd}, s{sT+2} offen sc1
    s_mov_b64 exec, -1
    """)
    XR = 128
    for r in range(8): A(f"global_load_dwordx4 {v(XR + 4*r, 4)}, v{6 if r < 4 else 8}, s[60:61] offset:{(r & 3)*1024}")
    KU, SH, P0, AC = 160, 100, 172, 176
    A(f"v_lshlrev_b32 v9, 4, v0\nv_add_u32 v9, {L_U + 512}, v9")
    shs = [100, 101, 68, 69]
    for ch in range(8):
        un = lo if ch % 2 == 0 else hi
        for r in range(11): un(KU + r, KR + 4*r + ch//2)
        A(f"""
        s_lshl_b32 s{shs[0]}, s{80 + 2*ch}, 16
        s_and_b32 s{shs[1]}, s{80 + 2*ch}, 0xffff0000
        s_lshl_b32 s{shs[2]}, s{81 + 2*ch}, 16
        s_and_b32 s{shs[3]}, s{81 + 2*ch}, 0xffff0000
        """)
        for p in range(4):
            for j in (3, 2, 1, 0):
                for e in range(2): A(f"v_mul_f32 v{P0+e}, s{shs[j]}, v{KU + 3 + 2*p + e - j}")
                cv(P0 + 2, P0, P0 + 1)
                if j == 3:
                    lo(AC, P0 + 2); hi(AC + 1, P0 + 2)
                else:
                    lo(P0, P0 + 2); hi(P0 + 1, P0 + 2)
                    for e in range(2): A(f"v_add_f32 v{AC+e}, v{AC+e}, v{P0+e}")
                    cv(P0 + 2, AC, AC + 1)
                    lo(AC, P0 + 2); hi(AC + 1, P0 + 2)
            for e in range(2):
                un(P0 + e, VR + 4*(2*p + e) + ch//2)
                A(f"v_mul_f32 v{P0+e}, v{P0+e}, v{AC+e}")
            cv(KV + 4*ch + 3 - p, P0 + 1, P0)
        A(f"ds_write_b128 v9, {v(KV + 4*ch, 4)} offset:{ch*UROW}")
    A("s_waitcnt lgkmcnt(0)\ns_barrier")
    if stamps: A('s_memrealtime s[76:77]')
    AF, BF, CA = 16, 48, 160
    A(f"""
    v_lshlrev_b32 v10, 3, v4
    v_sub_u32 v10, v3, v10
    v_lshlrev_b32 v10, 1, v10
    s_mul_i32 s{sT+2}, s{sW}, {2*KROW}
    s_add_u32 s{sT+2}, s{sT+2}, {L_K + 64 + 18}
    v_add_u32 v10, s{sT+2}, v10
    v_lshl_add_u32 v11, v3, 1, v4
    v_lshlrev_b32 v11, 4, v11
    s_mul_i32 s{sT+2}, s{sW}, {2*UROW}
    s_add_u32 s{sT+2}, s{sT+2}, {L_U + 512 - 32}
    v_add_u32 v11, s{sT+2}, v11
    v_lshlrev_b32 v12, 5, v3
    v_lshl_add_u32 v12, v4, 3, v12
    s_lshl_b32 s{sT+2}, s{sW}, 13
    s_add_u32 s{sT+2}, s{sT+2}, {L_Y}
    v_add_u32 v12, s{sT+2}, v12
    s_mov_b32 s{sT+2}, 0
    """)
    A.label("Cch")
    for k in range(32): A(f"v_mov_b32 v{CA+k}, 0")
    A(f"s_mov_b32 s{sT+3}, 0")
    A.label("Crho")
    for n in range(8): A(f"ds_read_b128 {v(BF + 4*n, 4)}, v11 offset:{512*n}")
    A("s_waitcnt lgkmcnt(4)")
    for m in range(8): A(f"ds_read_b128 {v(AF + 4*m, 4)}, v10 offset:{512*m}")
    for m in range(8):
        A(f"s_waitcnt lgkmcnt({7 - m})")
        for tau in range(m, 8):
            A(f"v_mfma_f32_16x16x32_bf16 {v(CA + 4*tau, 4)}, {v(AF + 4*m, 4)}, {v(BF + 4*(tau - m), 4)}, {v(CA + 4*tau, 4)}")
    A(f"""
    v_add_u32 v10, 64, v10
    v_subrev_u32 v11, 64, v11
    s_add_u32 s{sT+3}, s{sT+3}, 1
    s_cmp_lt_u32 s{sT+3}, 8
    s_cbranch_scc1 Crho
    s_nop 4
    """)
    for tau in range(8):
        cv(AF + 2*tau, CA + 4*tau, CA + 4*tau + 1); cv(AF + 2*tau + 1, CA + 4*tau + 2, CA + 4*tau + 3)
        A(f"ds_write_b64 v12, {v(AF + 2*tau, 2)} offset:{512*tau}")
    A(f"""
    v_add_u32 v10, {KROW - 512}, v10
    v_add_u32 v11, {UROW + 512}, v11
    v_add_u32 v12, 4096, v12
    s_waitcnt lgkmcnt(0)
    s_add_u32 s{sT+2}, s{sT+2}, 1
    s_cmp_lt_u32 s{sT+2}, 2
    s_cbranch_scc1 Cch
    s_barrier
    v_lshlrev_b32 v9, 4, v0
    v_add_u32 v9, {L_Y}, v9
    """)
    YR, BO = 16, 48
    for ch in range(8): A(f"ds_read_b128 {v(YR + 4*ch, 4)}, v9 offset:{4096*ch}")
    A("s_waitcnt lgkmcnt(0) vmcnt(0)")
    for cp in range(4):
        A(f"s_lshl_b32 s100, s{96+cp}, 16\ns_and_b32 s101, s{96+cp}, 0xffff0000")
        for r in range(8):
            for e in range(2):
                ch = 2*cp + e
                (hi if r % 2 == 0 else lo)(P0 + e, KV + 4*ch + 3 - r//2)
                A(f"v_mul_f32 v{P0+e}, s{100+e}, v{P0+e}")
            cv(P0 + 2, P0, P0 + 1)
            lo(P0, P0 + 2); hi(P0 + 1, P0 + 2)
            for e in range(2):
                (lo if r % 2 == 0 else hi)(AC + e, YR + 4*(2*cp + e) + r//2)
                A(f"v_add_f32 v{P0+e}, v{P0+e}, v{AC+e}")
            cv(P0 + 2, P0, P0 + 1)
            lo(P0, P0 + 2); hi(P0 + 1, P0 + 2)
            lo(AC, XR + 4*r + cp); hi(AC + 1, XR + 4*r + cp)
            for e in range(2): A(f"v_mul_f32 v{P0+e}, v{P0+e}, v{AC+e}")
            cv(BO + 4*r + cp, P0, P0 + 1)
    A(f"""
    s_lshl_b32 s{sT+2}, s{sJ}, 17
    s_lshl_b32 s{sT+3}, s{sSig}, 15
    s_add_u32 s{sT+2}, s{sT+2}, s{sT+3}
    s_add_u32 s{sT+2}, s{sT+2}, {WS_B}
    v_lshlrev_b32 v9, 4, v0
    """)
    for r in range(8): A(f"buffer_store_dwordx4 {v(BO + 4*r, 4)}, v9, {srd}, s{sT+2} offen sc1\ns_add_u32 s{sT+2}, s{sT+2}, 4096")
    A(f"""
    s_waitcnt vmcnt(0)
    s_barrier
    s_cmp_lg_u32 s{sW}, 0
    s_cbranch_scc1 Cnf
    v_mov_b32 v9, {DBG_CONV}
    v_mov_b32 v10, 1
    s_mov_b64 exec, 1
    global_atomic_add v9, v10, s[8:9]
    s_mov_b64 exec, -1
    """)
    A.label("Cnf")
    if stamps: A('s_memrealtime s[80:81]')
    A(f"""
    s_mov_b32 s{SRDW}, s62
    s_mov_b32 s{SRDW+1}, s63
    s_mov_b32 s{SRDW+2}, {4*MB}
    v_lshrrev_b32 v5, 2, v2
    v_lshlrev_b32 v5, 10, v5
    v_and_b32 v6, 3, v2
    v_lshl_add_u32 v5, v6, 4, v5
    s_lshl_b32 s{sT}, s{sW}, 20
    s_lshl_b32 s{sT+1}, s{sJ}, 6
    s_add_u32 s{sT}, s{sT}, s{sT+1}
    v_add_u32 v10, s{sT}, v5
    s_lshl_b32 s{sT+2}, s{sW}, 15
    v_lshrrev_b32 v5, 2, v3
    v_lshl_add_u32 v5, v4, 3, v5
    v_lshlrev_b32 v5, 6, v5
    v_lshl_add_u32 v5, v6, 4, v5
    v_add_u32 v12, s{sT+2}, v5
    """)
    def issue(n):
        for q in range(4):
            A(f"""
            s_add_u32 m0, s{sT+2}, {(n % 8)*4096 + q*1024}
            s_mov_b32 s{sT+1}, {(64*n + 16*q)*1024}
            buffer_load_dwordx4 v10, {srw}, s{sT+1} offen lds
            """)
    for n in range(8): issue(n)
    for n in range(16):
        A(f"s_waitcnt vmcnt({4*(min(n + 8, 16) - n - 1)})")
        for kk in range(2):
            for t in range(2):
                for u in range(2):
                    A(f"ds_read_b64_tr_b16 {a_(((2*n + kk)*2 + t)*4 + 2*u, 2)}, v12 offset:{(n % 8)*4096 + kk*2048 + u*256 + 8*t}")
        A("s_waitcnt lgkmcnt(0)")
        if n + 8 < 16: issue(n + 8)
    if stamps: A('s_memrealtime s[82:83]')
    A(f"v_mov_b32 v9, {DBG_CONV}")
    A.label("Ocw")
    A(f"""
    global_load_dwordx2 v[14:15], v9, s[8:9] sc1
    s_sub_u32 s{sSpin}, s{sSpin}, 1
    s_cbranch_scc1 Ocg
    s_waitcnt vmcnt(0)
    v_readfirstlane_b32 s{sT}, v14
    v_readfirstlane_b32 s{sT+1}, v15
    s_add_u32 s{sT}, s{sT}, s{sT+1}
    s_cmp_ge_u32 s{sT}, {64 + 32*NW}
    s_cbranch_scc1 Ocd
    s_sleep 32
    s_branch Ocw
    """)
    A.label("Ocg")
    A(f"s_mov_b32 s{sSpin}, 0")
    A.label("Ocd")
    A(f"""
    s_barrier
    s_and_b32 s{sT}, s{sSig}, 1
    s_lshl_b32 s{sT}, s{sT}, 2
    v_lshrrev_b32 v5, 2, v3
    v_lshlrev_b32 v5, 3, v5
    v_add_u32 v5, v5, v6
    v_add_u32 v5, s{sT}, v5
    v_lshlrev_b32 v7, 2, v5
    s_and_b32 s{sT}, s{sW}, 1
    s_lshl_b32 s{sT}, s{sT}, 3
    v_lshlrev_b32 v8, 4, v4
    v_add_u32 v8, s{sT}, v8
    v_and_b32 v9, 7, v5
    v_lshlrev_b32 v9, 12, v9
    v_lshl_add_u32 v9, v4, 15, v9
    v_lshrrev_b32 v14, 3, v5
    v_lshl_add_u32 v9, v14, 4, v9
    v_add_u32 v9, s{sT}, v9
    v_lshl_add_u32 v8, v5, 10, v8
    s_lshl_b32 s{sT}, s{sJ}, 6
    v_add_u32 v8, s{sT}, v8
    s_lshl_b32 s{sT}, s{sW}, 12
    v_add_u32 v10, s{sT}, v{L16}
    s_and_b32 s{sT}, s{sW}, 1
    s_lshl_b32 s{sT}, s{sT}, 10
    v_add_u32 v11, s{sT}, v{L16}
    v_and_b32 v13, 7, v2
    s_lshl_b32 s{sT}, s{sW}, 3
    v_add_lshl_u32 v13, s{sT}, v13, {OFS.bit_length() - 1}
    s_lshr_b32 s{sS}, s{sSig}, 1
    s_and_b32 s{sSig}, s{sSig}, 1
    s_lshl_b32 s{sSig}, s{sSig}, 10
    s_lshl_b32 s{sT}, s{sW}, 16
    s_add_u32 s{sSig}, s{sSig}, s{sT}
    s_add_u32 s{sSig}, s{sSig}, {WS_O}
    """)
    OB, NB = 32, 48
    OA, RD, EB, EG = 16, 224, 240, 242
    NE = 248
    def look(sseg):
        A(f"""
        s_lshl_b32 s{sT+3}, s{sseg}, 7
        s_add_u32 s{sT+1}, s{sT+3}, {WS_G}
        s_mul_i32 s{sT+3}, s{sseg}, {32*OFS}
        s_add_u32 s{sT+3}, s{sT+3}, {WS_OFL}
        buffer_load_dword v{NE+2}, v7, {srd}, s{sT+1} offen sc1
        s_lshl_b32 s{sT+1}, s{sseg}, 6
        s_lshl_b32 s{sT+2}, s{sJ}, 17
        s_add_u32 s{sT+1}, s{sT+1}, s{sT+2}
        s_add_u32 s{sT+1}, s{sT+1}, {WS_B}
        buffer_load_dwordx2 {v(NE,2)}, v9, {srd}, s{sT+1} offen sc1
        s_mov_b64 exec, 0xff
        buffer_load_dword v14, v13, {srd}, s{sT+3} offen sc1
        s_mov_b64 exec, -1
        """)
    A("v_mov_b32 v14, 1")
    look(sS)
    A("s_waitcnt vmcnt(0)")
    A.label("Otop")
    A(f"""
    v_cmp_eq_u32 vcc, 0, v14
    v_mov_b64 {v(EB,2)}, {v(NE,2)}
    v_mov_b32 v{EG}, v{NE+2}
    s_cbranch_vccz Ogo
    """)
    A.label("Opoll")
    A(f"""
    s_mov_b64 exec, vcc
    buffer_load_dword v14, v13, {srd}, s{sT+3} offen sc1
    s_mov_b64 exec, -1
    s_sub_u32 s{sSpin}, s{sSpin}, 1
    s_cbranch_scc1 Ogv
    s_waitcnt vmcnt(0)
    v_cmp_eq_u32 vcc, 0, v14
    s_cbranch_vccz Ogo
    s_sleep {slp}
    s_branch Opoll
    """)
    A.label("Ogv")
    A(f"s_mov_b32 s{sSpin}, 0\ns_waitcnt vmcnt(0)")
    A.label("Ogo")
    if stamps: A("s_memrealtime s[86:87]")
    A(f"""
    s_lshl_b32 s{sT}, s{sS}, 18
    s_add_u32 s{sT}, s{sT}, s{sSig}
    """)
    def oload(n):
        if n % 2 == 0 and n: A(f"s_add_u32 s{sT}, s{sT}, 4096")
        A(f"buffer_load_dwordx4 {v(OB + 4*n, 4)}, v{L16}, {srd}, s{sT} offen offset:{(n & 1)*2048} sc1")
    for n in range(na): oload(n)
    for ks in range(32):
        issued = min(32, na + ks) + (3 if na + ks > 32 else 0)
        A(f"s_waitcnt vmcnt({issued - ks - 1})")
        if stamps and ks == 0: A("s_memrealtime s[76:77]")
        for t in range(2):
            d = v(OA + t*4, 4)
            A(f"v_mfma_f32_16x16x32_bf16 {d}, {a_((ks*2 + t)*4, 4)}, {v(OB + 4*ks, 4)}, {d if ks else 0}")
        if na + ks < 32: oload(na + ks)
        if na + ks == 32:
            A(f"s_add_u32 s{sT+4}, s{sS}, 2\ns_min_u32 s{sT+4}, s{sT+4}, 63")
            look(sT+4)
    if stamps: A("s_memrealtime s[88:89]")
    A.nop(8)
    for k in range(2): A(f"ds_write_b128 v10, {v(OA + 4*k, 4)} offset:{L_RED + 1024*k}")
    A("s_waitcnt lgkmcnt(0)\ns_barrier")
    for k in range(4): A(f"ds_read_b128 {v(RD + 4*k, 4)}, v11 offset:{L_RED + 4096*k}")
    G1 = EG + 1
    A(f"""
    v_sub_f32 v{G1}, 1.0, v{EG}
    v_cvt_pk_bf16_f32 v{G1}, v{G1}, v{G1}
    v_and_b32 v{G1}, 0xffff0000, v{G1}
    """)
    BU = 244
    lo(BU, EB); hi(BU + 1, EB); lo(BU + 2, EB + 1); hi(BU + 3, EB + 1)
    for k in range(4): A(f"v_mul_f32 v{BU+k}, v{BU+k}, v{G1}")
    cv(EB, BU, BU + 1); cv(EB + 1, BU + 2, BU + 3)
    lo(BU, EB); hi(BU + 1, EB); lo(BU + 2, EB + 1); hi(BU + 3, EB + 1)
    A("s_waitcnt lgkmcnt(0)\ns_barrier")
    for k in range(4): A(f"v_add_f32 v{RD+k}, v{RD+k}, v{RD+4+k}\nv_add_f32 v{RD+8+k}, v{RD+8+k}, v{RD+12+k}")
    for k in range(4): A(f"v_add_f32 v{RD+k}, v{RD+k}, v{RD+8+k}")
    def rnd():
        cv(RD + 4, RD, RD + 1); cv(RD + 5, RD + 2, RD + 3)
        lo(RD, RD + 4); hi(RD + 1, RD + 4); lo(RD + 2, RD + 5); hi(RD + 3, RD + 5)
    rnd()
    for k in range(4): A(f"v_mul_f32 v{RD+k}, v{RD+k}, v{EG}")
    rnd()
    for k in range(4): A(f"v_add_f32 v{RD+k}, v{RD+k}, v{BU+k}")
    cv(RD + 4, RD, RD + 1); cv(RD + 5, RD + 2, RD + 3)
    A(f"""
    s_lshl_b32 s{sT}, s{sS}, 15
    s_waitcnt vmcnt(0)
    s_cmp_ge_u32 s{sW}, 2
    s_cbranch_scc1 Onst
    buffer_store_dwordx2 {v(RD+4,2)}, v8, s[64:67], s{sT} offen{osc}
    Onst:
    s_add_u32 s{sS}, s{sS}, 2
    s_cmp_lt_u32 s{sS}, 64
    s_cbranch_scc1 Otop
    s_branch Lend
    """)

if __name__ == "__main__":
    A = Asm(); emit_conv_out(A); A.label("Lend")
    for e in check(A.lines): print("HAZARD", e)
    print(len(A.lines), L_Y + 32768)
    assert all((s*52) >> 8 == s//5 for s in range(64))
```

```python
from asmlib import *
from layout import *
import struct, math
def fbits(x): return struct.unpack("<I", struct.pack("<f", x))[0]

SRD = 4; sH, sW, sI, sS = 10, 11, 12, 13
sCnt, sSpin, sKV, sQ, sC, sXB = 14, 18, 16, 17, 26, 19
SRDW = 28; sT = 36; sKF = 22
sMask = 60
L16 = 1
def KW(ks, t): return a_((ks*2 + t)*4, 4)
def VW(ks, t): return a_(128 + (ks*2 + t)*4, 4)
def QW(ks, t): return v(128 + (ks*2 + t)*4, 4)
XB0 = 131072
XB1 = 98304

def emit_head_worker(A, stamps=False, slq=1, slp=2, LA=3):
    srd = f"s[{SRD}:{SRD+3}]"; srw = f"s[{SRDW}:{SRDW+3}]"
    cv = lambda d, a, b: A(f"v_cvt_pk_bf16_f32 v{d}, v{a}, v{b}")
    A(f"""
    s_load_dwordx2 s[{SRD}:{SRD+1}], s[0:1], {KA['ws']}
    s_load_dwordx2 s[8:9], s[0:1], {KA['dbg']}
    s_load_dwordx4 s[48:51], s[0:1], {KA['Wq']}
    s_load_dwordx2 s[52:53], s[0:1], {KA['Wv']}
    s_load_dwordx2 s[56:57], s[0:1], {KA['x']}
    v_lshrrev_b32 v5, 6, v0
    v_and_b32 v2, 63, v0
    v_readfirstlane_b32 s{sW}, v5
    v_and_b32 v3, 15, v2
    v_lshrrev_b32 v4, 4, v2
    v_lshlrev_b32 v{L16}, 4, v2
    s_mov_b32 s{SRD+2}, {WS_SIZE}
    s_mov_b32 s{SRD+3}, 0x00020000
    s_mov_b32 s{SRDW+2}, {4*MB}
    s_mov_b32 s{SRDW+3}, 0x00020000
    s_mov_b32 s58, {2*MB}
    s_mov_b32 s59, 0x00020000
    s_mov_b32 s{sSpin}, {SPIN}
    s_mov_b32 s{sC}, {fbits(128**-0.5 * math.log2(math.e))}
    """)
    A(f"""
    v_lshlrev_b32 v5, 2, v4
    v_xor_b32 v5, v5, v3
    v_lshlrev_b32 v5, 4, v5
    v_lshl_add_u32 v5, v4, 13, v5
    s_lshl_b32 s{sT}, s{sH}, 8
    s_lshl_b32 s{sT+1}, s{sW}, 18
    s_add_u32 s{sT}, s{sT}, s{sT+1}
    v_add_u32 v10, s{sT}, v5
    v_lshrrev_b32 v5, 2, v3
    v_lshl_add_u32 v12, v4, 3, v5
    v_lshlrev_b32 v12, 8, v12
    v_xor_b32 v5, s{sW}, v5
    v_and_b32 v11, 3, v3
    v_lshl_add_u32 v5, v5, 2, v11
    v_lshl_add_u32 v12, v5, 4, v12
    v_add_u32 v13, 65536, v12
    v_xor_b32 v5, v4, v3
    v_lshlrev_b32 v11, 10, v3
    v_add_u32 v11, {XB0}, v11
    """)
    for b in range(4):
        A(f"v_xor_b32 v14, {4*b}, v5\nv_lshl_add_u32 v{6+b}, v14, 4, v11")
    A(f"""
    s_lshl_b32 s{sT+2}, s{sW}, 13
    s_mov_b32 s{sS}, s{sI}
    s_mov_b32 s{sXB}, {XB0}
    s_waitcnt lgkmcnt(0)
    """)
    def xdma(sseg):
        A(f"""
        s_lshl_b32 s{sT}, s{sseg}, 15
        s_and_b32 s{sT+1}, s{sW}, 1
        s_lshl_b32 s{sT+3}, s{sT+1}, 14
        s_add_u32 s{sT}, s{sT}, s{sT+3}
        s_lshr_b32 s{sT+3}, s{sW}, 1
        s_lshl_b32 s{sT+3}, s{sT+3}, 12
        s_add_u32 s{sT}, s{sT}, s{sT+3}
        s_lshl_b32 s{sT+1}, s{sT+1}, 7
        s_add_u32 s{sT+4}, s{sXB}, s{sT+2}
        """)
        for q in range(8):
            A(f"""
            s_xor_b32 s{sT+3}, s{sT+1}, {q*16}
            v_xor_b32 v14, s{sT+3}, v{L16}
            s_add_u32 m0, s{sT+4}, {q*1024}
            s_add_u32 s{sT+3}, s{sT}, {(8*(q >> 2) + (q & 3))*1024}
            buffer_load_dwordx4 v14, s[56:59], s{sT+3} offen lds
            """)
    A(f"""
    v_mul_u32_u24 v14, {160*OFS}, v2
    s_mul_i32 s{sT}, s{sI}, {32*OFS}
    s_mul_i32 s{sT+1}, s{sH}, {OFS}
    s_add_u32 s{sT}, s{sT}, s{sT+1}
    v_add_u32 v14, s{sT}, v14
    s_lshl_b32 s{sKF}, s{sH}, 7
    s_lshl_b32 s{sT+1}, s{sI}, 4
    s_add_u32 s{sKF}, s{sKF}, s{sT+1}
    s_add_u32 s{sKF}, s{sKF}, {2048*OFS}
    v_mov_b32 v15, s{sKF}
    v_cmp_gt_u32 vcc, {2048*OFS}, v14
    s_add_u32 s{sKF}, s{sKF}, {WS_FL}
    s_mov_b32 s{sT}, {WS_FL}
    v_cndmask_b32 v14, v15, v14, vcc
    v_mov_b32 v15, s{sI}
    v_cndmask_b32 v15, v15, 0, vcc
    s_cmp_lg_u32 s{sW}, 0
    s_cbranch_scc1 Hnz
    s_mov_b64 exec, 0x3fff
    buffer_store_dword v15, v14, {srd}, s{sT} offen sc1
    s_mov_b64 exec, -1
    """)
    A.label("Hnz")
    xdma(sS)
    base = [50, 52, 48]
    dst = [lambda ks, t: ("a", (ks*2 + t)*4), lambda ks, t: ("a", 128 + (ks*2 + t)*4), lambda ks, t: ("v", 128 + (ks*2 + t)*4)]
    def wdma(n):
        if n % 4 == 0: A(f"s_mov_b32 s{SRDW}, s{base[n//4]}\ns_mov_b32 s{SRDW+1}, s{base[n//4]+1}")
        for q in range(8):
            A(f"""
            s_add_u32 m0, s{sT+2}, {(n % 4)*32768 + q*1024}
            s_mov_b32 s{sT+1}, {(128*(n % 4) + 4*q)*8192}
            buffer_load_dwordx4 v10, {srw}, s{sT+1} offen lds
            """)
    for n in range(3): wdma(n)
    for n in range(12):
        A(f"s_waitcnt vmcnt({8*(min(n + 3, 12) - n - 1)})")
        A("s_barrier")
        if stamps: A(f"s_memrealtime s[84:85]\ns_waitcnt lgkmcnt(0)\nv_writelane_b32 v116, s84, {n}")
        if n == 0:
            A(f"""
            s_cmp_lg_u32 s{sW}, 0
            s_cbranch_scc1 Hna
            v_mov_b32 v14, {DBG_ZERO}
            v_mov_b32 v15, 1
            s_mov_b64 exec, 1
            global_atomic_add v14, v15, s[8:9]
            s_mov_b64 exec, -1
            """)
            A.label("Hna")
        if n + 3 < 12: wdma(n + 3)
        for kk in range(4):
            for t in range(2):
                k, r0 = dst[n//4](4*(n % 4) + kk, t)
                for u in range(2):
                    A(f"ds_read_b64_tr_b16 {R(k, r0 + 2*u, 2)}, v{12 + ((n % 4) >> 1)} offset:{(n & 1)*32768 + kk*8192 + u*1024 + 8*t}")
            if kk == 1: A("s_waitcnt lgkmcnt(0)")
        A("s_waitcnt lgkmcnt(0)")
    if stamps:
        A(f"""
        s_memrealtime s[80:81]
        s_lshl_b32 s84, s2, 8
        s_add_u32 s84, s84, {WS_DBG + 65536}
        v_lshlrev_b32 v117, 2, v2
        buffer_store_dword v116, v117, {srd}, s84 offen
        """)
    sP, sPr, sRW, sRR = 15, 14, 20, 21
    EX = 73728; SLOT = 24576
    XF, ACC, PK = 20, 44, 92
    QF, AK_, AV_, SX, SM, KF, MF = 20, 36, 44, 52, 60, 64, 64
    VF, KM, VMr, PX, PM, OA, OP = 64, 80, 96, 104, 108, 36, 112
    X, Y, Z0, Z1 = 16, 17, 18, 19
    A(f"""
    v_lshrrev_b32 v5, 2, v3
    v_sub_u32 v5, v5, v4
    v_lshlrev_b32 v5, 3, v5
    v_and_b32 v11, 3, v3
    v_add_u32 v5, v5, v11
    s_and_b32 s{sT}, s{sW}, 1
    s_lshl_b32 s{sT}, s{sT}, 2
    v_add_u32 v5, s{sT}, v5
    """)
    for k in range(8): A(f"v_cmp_le_i32 s[{sMask+2*k}:{sMask+2*k+1}], {k}, v5")
    A(f"""
    v_cmp_gt_u32 s[76:77], 2, v4
    v_and_b32 v2, 7, v3
    v_lshl_add_u32 v2, v4, 3, v2
    v_lshlrev_b32 v2, 4, v2
    s_lshl_b32 s{sT}, s{sW}, 11
    v_add_u32 v3, s{sT}, v{L16}
    v_add_u32 v3, {EX}, v3
    v_add_u32 v4, {EX}, v{L16}
    s_lshr_b32 s{sT}, s{sW}, 1
    s_lshl_b32 s{sT}, s{sT}, 12
    v_add_u32 v5, s{sT}, v4
    v_mov_b32 v10, {DBG_TEAM}
    v_mov_b32 v11, 0xff800000
    s_mov_b32 s{sP}, s{sI}
    s_mov_b32 s{sPr}, 0
    s_mov_b32 s{sRW}, 0
    s_mov_b32 s{sRR}, 0
    s_barrier
    """)
    def flag(tag, soff, val):
        A(f"""
        s_waitcnt vmcnt(0) lgkmcnt(0)
        s_barrier
        s_cmp_lg_u32 s{sW}, 0
        s_cbranch_scc1 Hnf{tag}
        v_mov_b32 v14, {val}
        s_mov_b64 exec, 1
        buffer_store_dword v14, off, {srd}, s{soff} sc1
        s_mov_b64 exec, -1
        """)
        A.label(f"Hnf{tag}")
    A.label("H1top")
    if stamps:
        A(f"""
        s_memrealtime s[84:85]
        s_lshl_b32 s86, s2, 4
        s_and_b32 s87, s{sPr}, 15
        s_add_u32 s86, s86, s87
        s_lshl_b32 s86, s86, 2
        s_add_u32 s86, s86, {WS_DBG + 16384}
        s_waitcnt lgkmcnt(0)
        v_mov_b32 v14, s84
        buffer_store_dword v14, off, {srd}, s86
        """)
    A(f"""
    s_lshl_b32 s{sKV}, s{sP}, 5
    s_add_u32 s{sKV}, s{sKV}, s{sH}
    s_lshl_b32 s{sKV}, s{sKV}, 2
    s_add_u32 s{sKV}, s{sKV}, s{sW}
    s_lshl_b32 s{sKV}, s{sKV}, 12
    s_add_u32 s{sP}, s{sP}, 5
    s_xor_b32 s{sXB}, s{sXB}, {XB0 ^ XB1}
    s_cmp_ge_u32 s{sP}, 64
    s_cbranch_scc1 H1nx
    """)
    xdma(sP)
    A.label("H1nx")
    def xread(ks):
        for kt in range(2):
            A(f"ds_read_b128 {v(XF + (ks % 3)*8 + 4*kt, 4)}, v{6 + (ks & 3)} offset:{(ks >> 2)*256 + kt*16384}")
    xread(0); xread(1)
    for ks in range(16):
        if ks + 2 < 16:
            xread(ks + 2); A("s_waitcnt lgkmcnt(4)")
        else: A(f"s_waitcnt lgkmcnt({2*(15 - ks)})")
        for kt in range(2):
            xf = v(XF + (ks % 3)*8 + 4*kt, 4)
            for t in range(2):
                for m in range(3):
                    d = v(ACC + m*16 + (kt*2 + t)*4, 4)
                    c = d if ks else "0"
                    if m == 0: A(f"v_mfma_f32_16x16x32_bf16 {d}, {KW(ks,t)}, {xf}, {c}")
                    if m == 1: A(f"v_mfma_f32_16x16x32_bf16 {d}, {xf}, {VW(ks,t)}, {c}")
                    if m == 2: A(f"v_mfma_f32_16x16x32_bf16 {d}, {QW(ks,t)}, {xf}, {c}")
    for b in range(4): A(f"v_xor_b32 v{6+b}, {XB0 ^ XB1}, v{6+b}")
    A(f"""
    s_mul_i32 s{sT}, s{sW}, 6144
    s_add_u32 s{sT}, s{sT}, s{sRW}
    v_add_u32 v12, s{sT}, v{L16}
    s_nop 1
    """)
    ac = lambda m, kt, t: ACC + m*16 + (kt*2 + t)*4
    for kt in range(2):
        for t in range(2):
            cv(PK + kt*4 + 2*t, ac(0,kt,t), ac(0,kt,t)+1); cv(PK + kt*4 + 2*t + 1, ac(0,kt,t)+2, ac(0,kt,t)+3)
        A(f"buffer_store_dwordx4 {v(PK + kt*4, 4)}, v{L16}, {srd}, s{sKV} offen offset:{kt*1024} sc1")
    for t in range(2):
        for kt in range(2):
            cv(PK + 8 + t*4 + 2*kt, ac(1,kt,t), ac(1,kt,t)+1); cv(PK + 8 + t*4 + 2*kt + 1, ac(1,kt,t)+2, ac(1,kt,t)+3)
        A(f"buffer_store_dwordx4 {v(PK + 8 + t*4, 4)}, v{L16}, {srd}, s{sKV} offen offset:{2048 + t*1024} sc1")
    for kt in range(2):
        for t in range(2):
            cv(PK + 16 + kt*4 + 2*t, ac(2,kt,t), ac(2,kt,t)+1); cv(PK + 16 + kt*4 + 2*t + 1, ac(2,kt,t)+2, ac(2,kt,t)+3)
    for k in range(6): A(f"ds_write_b128 v12, {v(PK + 4*k, 4)} offset:{1024*k}")
    A(f"""
    s_add_u32 s{sRW}, s{sRW}, {SLOT}
    s_cmp_eq_u32 s{sRW}, {3*SLOT}
    s_cselect_b32 s{sRW}, 0, s{sRW}
    s_add_u32 s{sPr}, s{sPr}, 1
    s_cmp_ge_u32 s{sP}, 64
    s_cselect_b32 s{sPr}, 15, s{sPr}
    """)
    A(f"s_cselect_b32 s{sT}, 99, s{sP}")
    flag("1", sKF, f"s{sT}")
    A(f"""
    s_cmp_lt_u32 s{sPr}, {LA}
    s_cbranch_scc1 H1top
    """)
    A.label("H3top")
    A(f"""
    s_lshl_b32 s{sQ}, s{sS}, 5
    s_add_u32 s{sQ}, s{sQ}, s{sH}
    s_lshl_b32 s{sQ}, s{sQ}, 13
    s_and_b32 s{sT}, s{sW}, 1
    s_lshl_b32 s{sT}, s{sT}, 10
    s_add_u32 s{sQ}, s{sQ}, s{sT}
    s_add_u32 s{sT}, s{sT}, s{sRR}
    v_add_u32 v12, s{sRR}, v{L16}
    v_add_u32 v13, s{sT}, v{L16}
    s_lshr_b32 s{sT}, s{sW}, 1
    s_lshl_b32 s{sT+1}, s{sT}, 12
    s_add_u32 s{sQ}, s{sQ}, s{sT+1}
    s_add_u32 s{sQ}, s{sQ}, {WS_O}
    s_mul_i32 s{sT}, s{sT}, 12288
    """)
    for sl in range(4):
        A(f"ds_read_b128 {v(QF + 4*sl, 4)}, v13 offset:{sl*6144 + 4096}")
        for kt in range(2): A(f"ds_read_b128 {v(KF + 8*sl + 4*kt, 4)}, v12 offset:{sl*6144 + kt*1024}")
    A(f"v_add_u32 v12, s{sT}, v12")
    A("s_waitcnt lgkmcnt(0)")
    for sl in range(4):
        for kt in range(2):
            d = v(SX + 4*kt, 4)
            A(f"v_mfma_f32_16x16x32_bf16 {d}, {v(KF + 8*sl + 4*kt, 4)}, {v(QF + 4*sl, 4)}, {d if sl else 0}")
    A.nop(8)
    for k in range(8): A(f"v_cndmask_b32 v{SX+k}, v11, v{SX+k}, s[{sMask+2*k}:{sMask+2*k+1}]")
    A(f"""
    v_max3_f32 v{X}, v{SX}, v{SX+1}, v{SX+2}
    v_max3_f32 v{X}, v{X}, v{SX+3}, v{SX+4}
    v_max3_f32 v{X}, v{X}, v{SX+5}, v{SX+6}
    v_max_f32 v{X}, v{X}, v{SX+7}
    v_add_u32 v13, {EX + 8192}, v2
    s_cmp_lg_u32 s{sW}, 0
    s_cbranch_scc1 H3go
    s_cmp_ge_u32 s{sS}, {Q0}
    s_cbranch_scc1 H3go
    """)
    A(f"s_cmp_lg_u32 s{sS}, s{sI}\ns_cbranch_scc1 Htd")
    A.label("Htw")
    A(f"""
    global_load_dword v14, v10, s[8:9] sc1
    s_sub_u32 s{sSpin}, s{sSpin}, 1
    s_cbranch_scc1 Htg
    s_waitcnt vmcnt(0)
    v_readfirstlane_b32 s{sT}, v14
    s_cmp_ge_u32 s{sT}, 32
    s_cbranch_scc1 Htd
    s_sleep 16
    s_branch Htw
    """)
    A.label("Htg")
    A(f"s_mov_b32 s{sSpin}, 0")
    A.label("Htd")
    A(f"""
    s_mul_i32 s{sT+1}, s{sS}, {MHS}
    s_add_u32 s{sT+1}, s{sT+1}, {WS_MH + MHS + 8192}
    """)
    A.label("H3poll")
    A(f"""
    buffer_load_dword v14, off, {srd}, s{sT+1} sc1
    s_sub_u32 s{sSpin}, s{sSpin}, 1
    s_cbranch_scc1 H3gv
    s_waitcnt vmcnt(0)
    v_readfirstlane_b32 s{sT}, v14
    s_cmp_lg_u32 s{sT}, -1
    s_cbranch_scc1 H3go
    s_sleep {slp}
    s_branch H3poll
    """)
    A.label("H3gv")
    A(f"s_mov_b32 s{sSpin}, 0")
    A.label("H3go")
    A(f"""
    s_barrier
    s_mul_i32 s{sT}, s{sS}, {MHS}
    s_lshl_b32 s{sT+1}, s{sW}, 11
    s_add_u32 s{sT}, s{sT}, {WS_MH}
    s_add_u32 s{sT}, s{sT}, s{sT+1}
    """)
    A.label("H3q")
    A(f"""
    buffer_load_dwordx4 {v(MF, 4)}, v{L16}, {srd}, s{sT} offen sc1
    buffer_load_dwordx4 {v(MF + 4, 4)}, v{L16}, {srd}, s{sT} offen offset:1024 sc1
    s_cmp_lt_u32 s{sS}, {Q0}
    s_waitcnt vmcnt(0)
    s_cbranch_scc1 H3d
    v_max3_u32 v14, v{MF}, v{MF+1}, v{MF+2}
    v_max3_u32 v14, v14, v{MF+3}, v{MF+4}
    v_max3_u32 v14, v14, v{MF+5}, v{MF+6}
    v_max_u32 v14, v14, v{MF+7}
    v_cmp_eq_u32 vcc, -1, v14
    s_cbranch_vccz H3d
    s_sleep {slq}
    s_sub_u32 s{sSpin}, s{sSpin}, 1
    s_cbranch_scc0 H3q
    s_mov_b32 s{sSpin}, 0
    """)
    A.label("H3d")
    A(f"""
    ds_write_b128 v3, {v(MF, 4)} offset:8192
    ds_write_b128 v3, {v(MF + 4, 4)} offset:9216
    s_waitcnt lgkmcnt(0)
    s_barrier
    """)
    if stamps: A("s_memrealtime s[82:83]\ns_waitcnt lgkmcnt(0)")
    for ks in range(16): A(f"ds_read_b128 {v(MF + 4*ks, 4)}, v13 offset:{ks_off(ks)}")
    for ks in range(16):
        if ks < 9: A(f"s_waitcnt lgkmcnt({15 - ks if ks < 8 else 0})")
        mf = v(MF + 4*ks, 4)
        for t in range(2):
            d = v(AK_ + 4*t, 4); A(f"v_mfma_f32_16x16x32_bf16 {d}, {KW(ks,t)}, {mf}, {d if ks else 0}")
        for t in range(2):
            d = v(AV_ + 4*t, 4); A(f"v_mfma_f32_16x16x32_bf16 {d}, {mf}, {VW(ks,t)}, {d if ks else 0}")
        if 8 <= ks < 12:
            sl, t = (ks - 8) >> 1, ks & 1
            A(f"ds_read_b128 {v(VF + 8*sl + 4*t, 4)}, v12 offset:{sl*6144 + 2048 + t*1024}")
    if stamps: A("s_memrealtime s[88:89]")
    A.nop(4)
    for k in range(4): cv(KM + k, AK_ + 2*k, AK_ + 2*k + 1)
    for k in range(4): cv(KM + 4 + k, AV_ + 2*k, AV_ + 2*k + 1)
    A(f"""
    ds_write_b128 v3, {v(KM,4)}
    ds_write_b128 v3, {v(KM+4,4)} offset:1024
    s_waitcnt lgkmcnt(0)
    s_barrier
    """)
    for sl in range(4): A(f"ds_read_b128 {v(KM + 4*sl, 4)}, v4 offset:{2048*sl}")
    for sl in range(2): A(f"ds_read_b128 {v(VMr + 4*sl, 4)}, v5 offset:{2048*sl + 1024}")
    for sl in range(4):
        A(f"s_waitcnt lgkmcnt({5 - sl})")
        A(f"v_mfma_f32_16x16x32_bf16 {v(SM,4)}, {v(KM + 4*sl, 4)}, {v(QF + 4*sl, 4)}, {v(SM,4) if sl else 0}")
    A.nop(8)
    for k in range(4): A(f"v_cndmask_b32 v{SM+k}, v11, v{SM+k}, s[76:77]")
    A(f"""
    v_max3_f32 v{X}, v{X}, v{SM}, v{SM+1}
    v_max3_f32 v{Y}, v{X}, v{SM+2}, v{SM+3}
    v_max3_f32 v{X}, v{X}, v{SM+2}, v{SM+3}
    s_nop 1
    v_permlane16_swap_b32 v{X}, v{Y}
    v_max_f32 v{Z0}, v{X}, v{Y}
    v_max_f32 v{Z1}, v{X}, v{Y}
    s_nop 1
    v_permlane32_swap_b32 v{Z0}, v{Z1}
    v_max_f32 v{X}, v{Z0}, v{Z1}
    v_mul_f32 v{X}, s{sC}, v{X}
    """)
    for k in range(12): A(f"v_fma_f32 v{SX+k}, v{SX+k}, s{sC}, -v{X}")
    for k in range(12): A(f"v_exp_f32 v{SX+k}, v{SX+k}")
    for k in range(6): cv(PX + k, SX + 2*k, SX + 2*k + 1)
    A("s_waitcnt lgkmcnt(0)\ns_nop 0")
    for sl in range(2):
        for t in range(2):
            A(f"v_mfma_f32_16x16x32_bf16 {v(OA + 8*sl + 4*t, 4)}, {v(VF + 8*sl + 4*t, 4)}, {v(PX,4)}, 0")
    for sl in range(2):
        for t in range(2):
            d = v(OA + 8*sl + 4*t, 4)
            A(f"v_mfma_f32_16x16x16_bf16 {d}, {v(VMr + 4*sl + 2*t, 2)}, {v(PM,2)}, {d}")
    for k in range(0, 12, 2): A(f"v_add_f32 v{SX+k}, v{SX+k}, v{SX+k+1}")
    for k in range(0, 12, 4): A(f"v_add_f32 v{SX+k}, v{SX+k}, v{SX+k+2}")
    A(f"""
    v_add_f32 v{X}, v{SX}, v{SX+4}
    v_add_f32 v{Y}, v{X}, v{SX+8}
    v_add_f32 v{X}, v{X}, v{SX+8}
    s_nop 1
    v_permlane16_swap_b32 v{X}, v{Y}
    v_add_f32 v{Z0}, v{X}, v{Y}
    v_add_f32 v{Z1}, v{X}, v{Y}
    s_nop 1
    v_permlane32_swap_b32 v{Z0}, v{Z1}
    v_add_f32 v{X}, v{Z0}, v{Z1}
    v_rcp_f32 v{X}, v{X}
    s_nop 0
    """)
    for k in range(16): A(f"v_mul_f32 v{OA+k}, v{OA+k}, v{X}")
    for k in range(8): cv(OP + k, OA + 2*k, OA + 2*k + 1)
    for sl in range(2):
        A(f"buffer_store_dwordx4 {v(OP + 4*sl, 4)}, v{L16}, {srd}, s{sQ} offen offset:{2048*sl} sc1")
    if stamps: A("s_memrealtime s[80:81]")
    A(f"""
    s_add_u32 s{sRR}, s{sRR}, {SLOT}
    s_cmp_eq_u32 s{sRR}, {3*SLOT}
    s_cselect_b32 s{sRR}, 0, s{sRR}
    s_lshl_b32 s{sT}, s{sS}, 5
    s_add_u32 s{sT}, s{sT}, s{sH}
    s_mul_i32 s{sT}, s{sT}, {OFS}
    s_add_u32 s{sT}, s{sT}, {WS_OFL}
    s_add_u32 s{sS}, s{sS}, 5
    """)
    flag("3", sT, "1")
    A(f"""
    s_cmp_lt_u32 s{sP}, 64
    s_cbranch_scc1 H1top
    s_cmp_lt_u32 s{sS}, 64
    s_cbranch_scc1 H3top
    s_branch Lend
    """)

if __name__ == "__main__":
    A = Asm(); emit_head_worker(A); A.label("Lend")
    for e in check(A.lines): print("HAZARD", e)
    print(len(A.lines))
```

```python
MB = 1 << 20
WS_KV = 0
WS_Q  = 32*MB
WS_O  = 48*MB
WS_Y  = 64*MB
WS_P  = 72*MB
P_SLOT = 128*32*64
WS_M  = 73*MB
WS_MH = 74*MB
WS_FL = 75*MB
WS_DBG = 76*MB
WS_SIZE = 256*MB
KA = dict(x=0, mem0=8, Wq=16, Wk=24, Wv=32, Wo=40, seg=48, Bq=56, Bk=64, Bv=72, shift=80, ssmk=88, ssmD=96, gate=104, out=112, dbg=120, ws=128)
def ks_off(ks):
    return (4*(ks & 3) + (ks >> 2))*512
DBG_XCC = 0
DBG_TEAM = 32
DBG_CONV = 36
DBG_ZERO = 40
DBG_MPROG = 128
import os
OFS = int(os.environ.get("OFS", "128"))
WS_OFL = WS_FL
WS_KVF = WS_FL + 2048*OFS
WS_B = WS_Y
WS_G = WS_Y + 4*MB
SPIN = 0x40000

PM_OFF = 262144
import os
RS = PM_OFF + 8192 + int(os.environ.get("RSPAD", "4096"))
MHS = 8320
WS_SY = WS_M
Q0 = int(os.environ.get("Q0", "58"))
NW = int(os.environ.get("NW", "4"))
NWM = (1 << NW) - 1
```

```python
import sys
from asmlib import *
from layout import *
import chain, headw, convout
NAME = "gated_mix__memory_aug_recurrent_mem_tr__ssm_conv_h3__prompt"
CHAIN_CFG = dict()
def prefetch_code(A, tag, end, n=1):
    A(f"s_getpc_b64 s[40:41]")
    A.label(f"Lpc{tag}")
    for k in range(n):
        A(f"""
        v_lshlrev_b32 v255, 7, v0
        v_add_u32 v255, {k*32768}, v255
        v_min_u32 v255, {end}-Lpc{tag}-4, v255
        global_load_dword v254, v255, s[40:41]
        """)
def body(stamps=False, roles="CHO", pf=1, slp=2, LA=3, spread=1, nt=1, bal=0, tc=0, th=0, fn=14, rt=(2, 0, 3), osc='', na=14, slo=2, tm=0, slq=1, **kw):
    A = Asm()
    A(f"""
    s_cmp_ge_u32 s2, 256
    s_cbranch_scc1 Lend2
    s_load_dwordx2 s[8:9], s[0:1], {KA['dbg']}
    s_load_dwordx4 s[48:51], s[0:1], {KA['Wq']}
    s_load_dwordx4 s[52:55], s[0:1], {KA['Wv']}
    s_getreg_b32 s3, hwreg(HW_REG_XCC_ID, 0, 3)
    """)
    if stamps: A("s_memrealtime s[78:79]")
    if spread: A(f"""
    s_lshl_b32 s4, s3, 2
    s_add_u32 s5, s3, 2
    s_mul_i32 s5, s5, 86
    s_lshr_b32 s5, s5, 8
    s_lshl_b32 s5, s5, 6
    s_add_u32 s4, s4, s5
    """)
    else: A("s_lshl_b32 s4, s3, 2")
    A(f"""
    v_mov_b32 v1, s4
    v_mov_b32 v2, 1
    v_mov_b32 v4, 0
    s_lshr_b32 s5, s2, 3
    s_sub_u32 s6, s3, 1
    s_mul_i32 s6, s6, 1639
    s_lshr_b32 s6, s6, 8
    s_min_u32 s6, s6, 24
    s_lshl_b32 s6, s6, 8
    s_lshl_b32 s7, s5, 17
    s_add_u32 s7, s7, s6
    s_lshl_b32 s5, s5, 15
    v_lshlrev_b32 v5, 7, v0
    v_add_u32 v5, s5, v5
    v_lshrrev_b32 v6, 4, v0
    v_and_b32 v7, 15, v0
    v_lshlrev_b32 v7, 7, v7
    v_lshl_add_u32 v6, v6, 13, v7
    v_add_u32 v6, s7, v6
    v_cmp_eq_u32 vcc, 0, v0
    s_waitcnt lgkmcnt(0)
    s_and_saveexec_b64 s[20:21], vcc
    s_cbranch_execz Lnoat
    global_atomic_add v3, v1, v2, s[8:9] sc0
    """)
    A.label("Lnoat")
    A("s_mov_b64 exec, s[20:21]\ns_cmp_lg_u32 s3, 0\ns_cbranch_scc1 Lnt0")
    for k in range(tc): A(f"global_load_dword v253, v5, s[48:49]\nv_add_u32 v5, {MB}, v5")
    A(f"s_waitcnt vmcnt({tc})\ns_branch Lnt2")
    A.label("Lnt0")
    A("s_cmp_ge_u32 s3, 6\ns_cbranch_scc1 Lnt1")
    for k in range(th): A(f"global_load_dword v253, v6, s[{[50, 52, 48][k]}:{[51, 53, 49][k]}]")
    A(f"s_waitcnt vmcnt({th})\ns_branch Lnt2")
    A.label("Lnt1")
    A("s_waitcnt vmcnt(0)")
    A.label("Lnt2")
    A(f"""
    s_and_saveexec_b64 s[20:21], vcc
    ds_write_b32 v4, v3
    s_waitcnt lgkmcnt(0)
    """)
    assert all(min(((x - 1)*1639) >> 8, 24) == min(32*(x - 1)//5, 24) for x in range(1, 6))
    A(f"""
    s_mov_b64 exec, s[20:21]
    s_barrier
    ds_read_b32 v3, v4
    s_waitcnt lgkmcnt(0)
    v_readfirstlane_b32 s10, v3
    s_barrier
    {"s_memrealtime s[88:89]" if stamps else ""}
    s_cmp_ge_u32 s10, 32
    s_cbranch_scc1 Lend2
    s_lshl_b32 s2, s3, 5
    s_add_u32 s2, s2, s10
    s_cmp_eq_u32 s3, 0
    s_cbranch_scc1 Rchain
    s_sub_u32 s10, s2, 32
    s_cmp_ge_u32 s10, 160
    s_cbranch_scc1 Rconv
    s_mul_i32 s4, s10, 205
    s_lshr_b32 s4, s4, 10
    s_mul_i32 s5, s4, 5
    s_sub_u32 s12, s10, s5
    s_mov_b32 s10, s4
    """)
    assert all((r*205) >> 10 == r//5 for r in range(160))
    if pf: prefetch_code(A, "H", "Rconv")
    if "H" in roles: headw.emit_head_worker(A, stamps, slq, slp, LA)
    else: A("s_branch Lend2")
    A.label("Rconv")
    A("s_sub_u32 s10, s10, 160")
    if pf: prefetch_code(A, "O", "Rchain")
    if "O" in roles: convout.emit_conv_out(A, stamps, slo, osc, na)
    else: A("s_branch Lend2")
    A.label("Rchain")
    if pf: prefetch_code(A, "C", "Lend2")
    if "C" in roles:
        chain.emit_chain_init(A, nzero=160, stamps=stamps, full=1, have_w=True, nt=nt, bal=bal, fn=fn, rt=rt)
        if stamps: A("s_memrealtime s[76:77]")
        chain.emit_chain_loop(A, full=1, steplog=stamps and not tm, timing=tm, **dict(CHAIN_CFG, **kw))
        if tm: A('s_memtime s[94:95]\ns_waitcnt lgkmcnt(0)\ns_sub_u32 s80, s94, s96')
    else: A("s_branch Lend2")
    A.label("Lend")
    if stamps:
        A(f"""
        s_memrealtime s[74:75]
        s_waitcnt vmcnt(0) lgkmcnt(0)
        s_nop 15
        s_lshl_b32 s36, s2, 4
        s_add_u32 s36, s36, {WS_DBG}
        v_mov_b32 v0, s78
        v_mov_b32 v1, s76
        v_mov_b32 v2, s74
        v_mov_b32 v3, s18
        buffer_store_dwordx4 v[0:3], off, s[4:7], s36
        v_mov_b32 v4, s80
        v_mov_b32 v5, s82
        s_add_u32 s36, s36, 4096
        v_mov_b32 v6, s86
        v_mov_b32 v7, s88
        buffer_store_dwordx4 v[4:7], off, s[4:7], s36
        """)
    A.label("Lend2")
    errs = check(A.lines)
    for e in errs: print("HAZARD", e, file=sys.stderr)
    return A.text()
def full_file(**kw):
    ref = open(f"cdna_kernels/{NAME}.s.ref").read() if len(sys.argv) < 0 else None
    hdr = open("header.txt").read()
    return hdr + f"""; @launch grid=(256,1,1) block=(256,1,1) lds=163840
.amdgcn_target "amdgcn-amd-amdhsa--gfx950"
.text
.globl {NAME}_kernel
.p2align 8
.type {NAME}_kernel,@function
{NAME}_kernel:
""" + body(**kw) + f"""s_endpgm
.section .rodata,"a"
.p2align 6
.amdhsa_kernel {NAME}_kernel
  .amdhsa_next_free_vgpr 512
  .amdhsa_next_free_sgpr 102
  .amdhsa_accum_offset 256
  .amdhsa_group_segment_fixed_size 0
  .amdhsa_kernarg_size 136
  .amdhsa_user_sgpr_count 2
  .amdhsa_user_sgpr_kernarg_segment_ptr 1
  .amdhsa_system_sgpr_workgroup_id_x 1
  .amdhsa_float_denorm_mode_32 3
.end_amdhsa_kernel
"""
if __name__ == "__main__":
    out = sys.argv[1] if len(sys.argv) > 1 else f"cdna_kernels/{NAME}.s"
    open(out, "w").write(full_file())
    print("written", out)
```

```python
from asmlib import *
from layout import *
import struct, math

def fbits(x): return struct.unpack("<I", struct.pack("<f", x))[0]

M0_, S0_ = 0, 32
AQ = [64, 68]; AK = [72, 76]; AV = [80, 84]; PA = 64
KX, VX = 88, 96
PB = 104
SELT, SELR = 120, 124
IDX, SMW, PST, PLD, MST, MOWN = 128, 129, 130, 131, 132, 133
L16 = 15
MX = [None, 134, 135, 136]
SMR, PUB, WL = 137, 138, 139
SENT = 140
SRD = 4
sH, sW = 10, 11
sA, sB, sCc, sAM, sKV, sStep, sSpin, sA2, sMH = 12, 13, 14, 15, 16, 17, 18, 19, 20
sEx1 = 60
sM7 = 35
sBk1, sBk2 = 42, 56
sHW, sMP = 22, 23
sKF = 62
sExK, sKM = 34, 24
sExF, sFR, sPM = 46, 45, 48
sC = 26
SRDW = 28
sF = 32
sT = 36
sOne = 58
sRdy = 21
sTM = 72
LDS_SC = 8192
LDS_W = 16384
WPW = 36864

LDS_CH = [("Q", 2), ("Q", 3), ("K", 2), ("K", 6), ("V", 6), ("V", 7), ("O", 1, 1), ("O", 2, 1), ("O", 3, 1)]
ALL_CH = [(m, i) for m in "QKV" for i in range(8)] + [("O", j, i) for j in range(4) for i in range(2)]
REG_CH = [c for c in ALL_CH if c not in LDS_CH]
ORDER = REG_CH + LDS_CH
def reg_of(ch, t):
    n = REG_CH.index(ch)*2 + t
    if n < 32: return a_(8*n, 8), ("a", 8*n)
    return v(144 + 8*(n-32), 8), ("v", 144 + 8*(n-32))
WLB, WLC, KT = 141, 142, 143
sK6 = 63
SLOT = {("V", 6): (WL, 0), ("K", 6): (WL, 4096), ("K", 2): (WL, 32768), ("Q", 3): (WL, 36864), ("Q", 2): (WLB, 0), ("O", 1, 1): (WLB, 4096),
        ("V", 7): (WLB, 32768), ("O", 3, 1): (WLB, 36864), ("O", 2, 1): (WLC, 0)}

def sm(A, acc, afrag, b):
    A(f"v_smfmac_f32_16x16x64_bf16 {v(acc,4)}, {v(afrag,4)}, {b}, v{IDX}")

def emit_chain_init(A, dbg_team_off=DBG_TEAM, nzero=0, stamps=False, have_w=False, nt=1, bal=0, full=0, fn=14, rt=(0, 2)):
    sW13, sW12 = 33, 34
    ntf = " nt" if nt else ""
    if not have_w:
        A(f"""
        s_load_dwordx4 s[48:51], s[0:1], {KA['Wq']}
        s_load_dwordx4 s[52:55], s[0:1], {KA['Wv']}
        """)
    A(f"""
    v_lshrrev_b32 v1, 6, v0
    v_and_b32 v2, 63, v0
    v_readfirstlane_b32 s{sW}, v1
    v_and_b32 v3, 15, v2
    v_lshrrev_b32 v4, 4, v2
    s_mov_b32 s{SRDW+2}, {4*MB}
    s_mov_b32 s{SRDW+3}, 0x00020000
    v_lshrrev_b32 v5, 1, v4
    v_and_b32 v7, 1, v4
    v_lshl_add_u32 v6, v5, 3, v7
    v_lshlrev_b32 v6, 13, v6
    v_lshlrev_b32 v8, 2, v4
    v_xor_b32 v8, v8, v3
    v_lshl_add_u32 v6, v8, 4, v6
    s_lshl_b32 s{sT}, s{sH}, 8
    v_add_u32 v0, s{sT}, v6
    s_lshl_b32 s{sF}, s{sW}, 18
    s_lshl_b32 s{sW13}, s{sW}, 13
    s_lshl_b32 s{sW12}, s{sW}, 12
    s_waitcnt lgkmcnt(0)
    s_load_dwordx2 s[{SRD}:{SRD+1}], s[0:1], {KA['ws']}
    s_load_dwordx2 s[56:57], s[0:1], {KA['mem0']}
    """)
    srw = f"s[{SRDW}:{SRDW+3}]"; srd = f"s[{SRD}:{SRD+3}]"
    base = {"Q": 48, "K": 50, "V": 52, "O": 54}
    HELD = {("Q", 2): 8, ("Q", 3): 24, ("K", 2): 40, ("K", 6): 56, ("V", 6): 72, ("V", 7): 88, ("O", 3, 1): 104, ("O", 2, 1): 88, ("O", 1, 1): 24}
    STG = [(m, ii, hf) for m in "QKV" for ii in range(2) for hf in range(2)] + [("O", 0, 0), ("O", 0, 2), ("O", 1, 0)]
    NS = len(STG)
    cur = [None]; vm = []
    def VM(x, tag): A(x); vm.append(tag)
    def wait(tag): A(f"s_waitcnt vmcnt({len(vm) - 1 - max(i for i, t in enumerate(vm) if t == tag)})")
    def setm(m):
        if cur[0] != m:
            cur[0] = m
            A(f"s_mov_b32 s{SRDW}, s{base[m]}\ns_mov_b32 s{SRDW+1}, s{base[m]+1}")
    def ochunk(j, i, sreg, off, tag):
        setm("O")
        A(f"s_xor_b32 s{sT}, s{sW}, {j}\ns_lshl_b32 s{sT}, s{sT}, 15")
        for q in range(4):
            A(f"s_add_u32 m0, s{sreg}, {off + q*1024}\ns_add_u32 s{sT+1}, s{sT}, {q*8192 + i*128}")
            VM(f"buffer_load_dwordx4 v1, {srw}, s{sT+1} offen{ntf} lds", tag)
    def issue(n):
        st = STG[n]; buf = LDS_W + (n % 4)*32768
        if st[0] == "O":
            for jj in range(2): ochunk(st[2] + jj, st[1], sW13, buf + jj*4096, n)
        else:
            setm(st[0])
            for q in range(8):
                gb = q >> 1
                d = 256*st[1] + 128*st[2] + 16*(gb >> 1) + 4*(gb & 1) + 2*(q & 1)
                A(f"s_add_u32 m0, s{sW13}, {buf + q*1024}\ns_add_u32 s{sT+1}, s{sF}, {d*8192}")
                VM(f"buffer_load_dwordx4 v0, {srw}, s{sT+1} offen{ntf} lds", n)
    def dest(ch, t):
        if ch in HELD: return "v", HELD[ch] + 8*t
        return reg_of(ch, t)[1]
    def oread(ch, ad, off):
        for t in range(2):
            kind, r0 = dest(ch, t)
            for u in range(4):
                A(f"ds_read_b64_tr_b16 {R(kind, r0 + 2*u, 2)}, v{ad} offset:{off + (16*(u >> 1) + 2*(u & 1))*128 + 64*t}")
        A("s_waitcnt lgkmcnt(0)")
    def wr(ch):
        for k in range(4): A(f"ds_write_b128 v{SLOT[ch][0]}, {v(HELD[ch] + 4*k, 4)} offset:{SLOT[ch][1] + 1024*k}")
    for n in range(3): issue(n)
    A(f"""
    v_lshrrev_b32 v6, 3, v2
    v_lshlrev_b32 v6, 10, v6
    v_and_b32 v8, 7, v2
    v_lshl_add_u32 v6, v8, 4, v6
    s_lshl_b32 s{sT}, s{sH}, 17
    s_lshl_b32 s{sT+1}, s{sW}, 8
    s_add_u32 s{sT}, s{sT}, s{sT+1}
    v_add_u32 v1, s{sT}, v6
    """)
    ochunk(2, 1, sW12, 147456, "park"); ochunk(3, 1, sW12, 0, "park")
    A(f"""
    v_lshlrev_b32 v{L16}, 4, v2
    s_mov_b32 s{SRD+2}, {WS_SIZE}
    s_mov_b32 s{SRD+3}, 0x00020000
    """)
    A(f"""
    v_mov_b32 v5, 0x4444
    v_mov_b32 v6, 0xeeee
    v_cmp_gt_u32 vcc, 8, v3
    s_nop 1
    v_cndmask_b32 v{IDX}, v6, v5, vcc
    """)
    A(f"""
    v_lshrrev_b32 v5, 1, v4
    v_lshlrev_b32 v5, 2, v5
    v_lshrrev_b32 v6, 3, v3
    v_lshl_add_u32 v5, v6, 1, v5
    v_and_b32 v6, 1, v4
    v_add_u32 v5, v5, v6
    s_lshl_b32 s{sT}, s{sW}, 3
    v_add_u32 v5, s{sT}, v5
    v_lshlrev_b32 v5, 11, v5
    v_and_b32 v8, 7, v3
    v_lshl_add_u32 v5, v8, 3, v5
    s_lshl_b32 s{sT+1}, s{sH}, 6
    v_add_u32 v{PST}, s{sT+1}, v5
    """)
    A(f"""
    s_lshl_b32 s{sT}, s{sW}, 5
    s_add_u32 s{sT}, s{sT}, s{sH}
    s_lshl_b32 s{sT+2}, s{sT}, 11
    v_add_u32 v{PLD}, s{sT+2}, v{L16}
    s_lshl_b32 s{sT}, s{sT}, 6
    s_add_u32 s{sT}, s{sT}, {PM_OFF}
    v_and_b32 v5, 3, v3
    v_lshlrev_b32 v5, 2, v5
    v_lshl_add_u32 v5, v4, 4, v5
    v_add_u32 v{MST}, s{sT}, v5
    v_lshrrev_b32 v5, 2, v3
    v_lshl_add_u32 v{MST}, v5, 29, v{MST}
    """)
    A(f"""
    s_lshl_b32 s{sT}, s{sW}, 11
    v_add_u32 v{MOWN}, s{sT}, v{L16}
    v_xor_b32 v{MX[1]}, 2048, v{MOWN}
    v_xor_b32 v{MX[2]}, 4096, v{MOWN}
    v_xor_b32 v{MX[3]}, 6144, v{MOWN}
    """)
    A(f"""
    v_and_b32 v5, 31, v2
    v_lshlrev_b32 v{SMR}, 4, v5
    v_lshrrev_b32 v7, 3, v3
    s_lshr_b32 s{sT}, s{sW}, 1
    s_lshl_b32 s{sT}, s{sT}, 11
    s_and_b32 s{sT+1}, s{sW}, 1
    s_lshl_b32 s{sT+1}, s{sT+1}, 3
    s_add_u32 s{sT}, s{sT}, s{sT+1}
    v_mov_b32 v{PUB}, 1
    v_xor_b32 v5, 32, v2
    v_lshlrev_b32 v5, 4, v5
    v_add_u32 v{SMW}, s{sT}, v5
    s_add_u32 s{sT+2}, s{sW13}, {LDS_W}
    v_add_u32 v{WL}, s{sT+2}, v{L16}
    v_mov_b32 v{SENT}, -1
    """)
    A(f"""
    v_mov_b32 v6, 0x3f80
    v_and_b32 v5, 4, v3
    v_lshlrev_b32 v5, 2, v5
    v_lshlrev_b32 v9, v5, v6
    v_and_b32 v5, 1, v8
    v_lshlrev_b32 v5, 4, v5
    v_lshlrev_b32 v5, v5, v6
    v_and_b32 v6, 3, v3
    v_lshl_add_u32 v6, v6, 1, v7
    """)
    for r in range(4):
        A(f"v_cmp_eq_u32 vcc, {r}, v6\ns_nop 1\nv_cndmask_b32 v{SELR+r}, 0, v9, vcc")
    A(f"""
    v_lshrrev_b32 v6, 1, v3
    v_and_b32 v6, 1, v6
    v_lshl_add_u32 v6, v7, 1, v6
    v_lshrrev_b32 v9, 2, v3
    v_xor_b32 v9, v9, v4
    v_and_b32 v9, 1, v9
    v_lshl_add_u32 v6, v9, 3, v6
    """)
    for r in range(4):
        A(f"v_cmp_eq_u32 vcc, {r}, v6\ns_nop 1\nv_cndmask_b32 v{SELT+r}, 0, v5, vcc")
    A(f"""
    s_mov_b32 s{sEx1}, 0x000f001f
    s_mov_b32 s{sEx1+1}, 0x000f000f
    s_mov_b32 s{sM7}, 0xffffff7f
    s_mul_i32 s{sK6}, s{sW}, 6144
    s_add_u32 s{sHW}, s{sH}, s{sW}
    s_mov_b32 s{sMP}, {WS_MH - PM_OFF - MHS}
    s_mov_b32 s{sAM}, {WS_P + PM_OFF}
    s_mov_b32 s{sC}, {fbits(128**-0.5 * math.log2(math.e))}
    s_mov_b32 s{sOne}, 0x3f803f80
    s_mov_b32 s{sOne+1}, 0x3e803e80
    s_mov_b32 s{sA}, {WS_P}
    s_mov_b32 s{sB}, {WS_P + RS}
    s_mov_b32 s{sCc}, {WS_P + 2*RS}
    s_mov_b32 s{sMH}, {WS_MH - PM_OFF}
    s_lshl_b32 s{sKV}, s{sH}, 3
    s_add_u32 s{sKV}, s{sKV}, s{sW}
    s_lshl_b32 s{sKV}, s{sKV}, 11
    s_mov_b32 s{sStep}, 0
    s_mov_b32 s{sSpin}, {SPIN}
    """)
    A(f"""
    v_lshrrev_b32 v5, 1, v4
    v_and_b32 v7, 1, v4
    v_lshrrev_b32 v9, 2, v3
    v_and_b32 v6, 3, v3
    v_lshl_add_u32 v12, v4, 3, v9
    v_lshlrev_b32 v12, 8, v12
    v_xor_b32 v10, s{sW}, v9
    v_lshl_add_u32 v10, v10, 2, v6
    v_lshl_add_u32 v12, v10, 4, v12
    v_lshrrev_b32 v8, 3, v3
    v_and_b32 v9, 1, v9
    v_lshlrev_b32 v13, 3, v5
    v_lshl_add_u32 v13, v7, 2, v13
    v_add_u32 v13, v13, v9
    v_lshlrev_b32 v13, 7, v13
    v_lshl_add_u32 v13, v8, 5, v13
    v_lshl_add_u32 v13, v6, 3, v13
    v_and_b32 v14, 7, v3
    v_lshlrev_b32 v14, 10, v14
    v_lshl_add_u32 v14, v5, 8, v14
    v_lshl_add_u32 v14, v7, 5, v14
    v_lshl_add_u32 v14, v8, 4, v14
    s_lshr_b32 s{sT}, s{sF}, 12
    v_add_u32 v4, s{sT}, v14
    v_mul_u32_u24 v5, {MHS}, v2
    v_mov_b32 v2, v12
    v_mov_b32 v3, v13
    s_waitcnt lgkmcnt(0)
    """)
    A(f"v_mov_b64 v[8:9], -1\nv_mov_b64 v[10:11], -1")
    for so in (sA, sB, sCc):
        VM(f"buffer_store_dwordx4 v[8:11], v{PLD}, {srd}, s{so} offen", "fill")
        VM(f"buffer_store_dwordx4 v[8:11], v{PLD}, {srd}, s{so} offen offset:1024", "fill")
        VM(f"buffer_store_dword v{SENT}, v{MST}, {srd}, s{so} offen", "fill")
    for q in range(Q0, 64):
        A(f"s_mov_b32 s{sT}, {WS_MH - PM_OFF + q*MHS}")
        VM(f"buffer_store_dword v{SENT}, v{MST}, {srd}, s{sT} offen sc1", "fill")
    A(f"""
    s_cmp_lg_u32 s{sHW}, 0
    s_cbranch_scc1 Lnofl
    s_mov_b32 s{sT}, {WS_MH + MHS + 8192}
    buffer_store_dword v{SENT}, v5, {srd}, s{sT} offen sc1
    s_mov_b64 exec, 16
    v_mov_b32 v{MST}, {PM_OFF + 8192}
    s_mov_b64 exec, -1
    """)
    A.label("Lnofl")
    A(f"""
    s_sub_u32 s{sT}, {147456 - LDS_W}, s{sW12}
    v_add_u32 v{WLB}, 65536, v{WL}
    v_add_u32 v{WLC}, s{sT}, v{WL}
    s_lshl_b32 s{sKF}, s{sH}, 7
    s_add_u32 s{sKF}, s{sKF}, {WS_KVF}
    s_mov_b32 s{sRdy}, 1
    """)
    kvl = f"buffer_load_dword v0, v{SMR}, {srd}, s{sKF} offen sc1"
    for n in range(NS):
        st = STG[n]; buf = LDS_W + (n % 4)*32768
        wait(n)
        if n <= 12: A("s_barrier")
        if stamps: A(f"s_memrealtime s[84:85]\ns_waitcnt lgkmcnt(0)\nv_writelane_b32 v7, s84, {n}")
        if n == 3:
            A(f"""
            s_cmp_lg_u32 s{sW}, 0
            s_cbranch_scc1 Lann
            v_mov_b32 v5, {dbg_team_off}
            s_mov_b64 exec, 1
            global_atomic_add v5, v{PUB}, s[8:9]
            s_mov_b64 exec, -1
            """)
            A.label("Lann")
        if n == 9:
            A(f"v_mov_b32 v5, {dbg_team_off}")
            VM("global_load_dword v0, v5, s[8:9] sc1", "team"); VM(f"global_load_dword v{SENT+3}, v5, s[8:9] offset:8 sc1", "team")
        if bal and n + 3 < NS and n <= bal[1]:
            ix = [i for i, t in enumerate(vm) if t in (n + 1, n + 2)][bal[0] - 1]
            A(f"s_and_b32 s{sT}, s{sH}, 3\ns_cmp_eq_u32 s{sT}, 1\ns_cbranch_scc1 Lbal{n}\ns_waitcnt vmcnt({len(vm) - 1 - ix})")
            A.label(f"Lbal{n}")
        if n + 3 < NS: issue(n + 3)
        if n == 3:
            A(f"s_add_u32 s{sT}, s{sW12}, 147456\nv_add_u32 v5, s{sT}, v3\nv_add_u32 v6, s{sW12}, v3")
            oread(("O", 2, 1), 5, 0); wr(("O", 2, 1)); oread(("O", 3, 1), 6, 0)
        if n == 12:
            wr(("V", 7)); wr(("O", 3, 1))
            A(f"v_mov_b32 v5, {dbg_team_off}")
            A.label("Lteam")
            A(f"""
            v_readfirstlane_b32 s{sT}, v0
            v_readfirstlane_b32 s{sT+1}, v{SENT+3}
            s_add_u32 s{sT}, s{sT}, s{sT+1}
            s_cmp_ge_u32 s{sT}, {32 + nzero}
            s_cbranch_scc1 Lteamx
            global_load_dword v0, v5, s[8:9] sc1
            global_load_dword v{SENT+3}, v5, s[8:9] offset:8 sc1
            s_sub_u32 s{sSpin}, s{sSpin}, 1
            s_waitcnt vmcnt(0)
            s_cbranch_scc0 Lteam
            s_mov_b32 s{sSpin}, 0
            """)
            A.label("Lteamx")
            A("s_waitcnt lgkmcnt(0)")
            VM(f"global_load_dwordx4 {v(PB,4)}, v4, s[56:57]", "m0"); VM(f"global_load_dwordx4 {v(PB+4,4)}, v4, s[56:57] offset:512", "m0")
        if n == fn:
            A(f"""
            v_mbcnt_lo_u32_b32 v1, -1, 0
            v_mbcnt_hi_u32_b32 v1, -1, v1
            v_lshrrev_b32 v2, 4, v1
            v_min_u32 v2, 2, v2
            v_mul_u32_u24 v2, {RS}, v2
            v_and_b32 v1, 15, v1
            v_lshl_add_u32 v1, v1, 7, v2
            s_lshl_b32 s{sT}, s{sW}, 11
            s_add_u32 s{sT}, s{sT}, {WS_P + PM_OFF}
            """)
            VM(f"buffer_load_dword v{KX}, v1, {srd}, s{sT} offen sc1", "rt")
            for x in rt:
                A(f"""
                s_xor_b32 s{sT}, s{sH}, {x}
                s_lshl_b32 s{sT+1}, s{sW}, 5
                s_add_u32 s{sT}, s{sT}, s{sT+1}
                s_lshl_b32 s{sT}, s{sT}, 11
                s_add_u32 s{sT}, s{sT}, {WS_P}
                """)
                VM(f"buffer_load_dword v{KX}, v1, {srd}, s{sT} offen sc1", "rt")
        if n == 13 and full:
            A("s_mov_b64 exec, 31"); VM(kvl, "kv"); A("s_mov_b64 exec, -1")
        if st[0] == "O":
            A(f"s_add_u32 s{sT}, s{sW13}, {buf}\nv_add_u32 v5, s{sT}, v3")
            if n >= 13: A("s_waitcnt lgkmcnt(0)")
            for jj in range(2): oread(("O", st[2] + jj, st[1]), 5, jj*4096)
            for ch in {12: [("V", 6), ("K", 6)], 13: [("K", 2), ("Q", 3)], 14: [("Q", 2), ("O", 1, 1)]}[n]: wr(ch)
        else:
            for j in range(4):
                A(f"""
                s_xor_b32 s{sT}, s{sW}, {j}
                s_lshl_b32 s{sT}, s{sT}, 13
                s_add_u32 s{sT}, s{sT}, {buf}
                v_add_u32 v{5 + (j & 1)}, s{sT}, v2
                """)
                ch = (st[0], 2*j + st[1])
                for t in range(2):
                    kind, r0 = dest(ch, t)
                    for u in range(2):
                        A(f"ds_read_b64_tr_b16 {R(kind, r0 + 4*st[2] + 2*u, 2)}, v{5 + (j & 1)} offset:{u*1024 + 8*t}")
                if j == 1: A("s_waitcnt lgkmcnt(0)")
            A("s_waitcnt lgkmcnt(0)")
    if stamps:
        A(f"""
        s_memrealtime s[84:85]
        s_waitcnt lgkmcnt(0)
        v_writelane_b32 v7, s84, 15
        s_lshl_b32 s84, s2, 8
        s_add_u32 s84, s84, {WS_DBG + 65536}
        v_mbcnt_lo_u32_b32 v5, -1, 0
        v_mbcnt_hi_u32_b32 v5, -1, v5
        v_lshlrev_b32 v5, 2, v5
        buffer_store_dword v7, v5, {srd}, s84 offen
        """)
    A(f"""
    s_add_u32 s{SRDW}, s{SRD}, s{sKF}
    s_addc_u32 s{SRDW+1}, s{SRD+1}, 0
    s_cmp_eq_u32 s{sW}, 0
    s_cselect_b32 s{SRDW+2}, 80, 0
    """)
    if stamps: vm.append("st")
    wait("kv" if full else "m0")
    if full:
        A("s_mov_b64 exec, 31")
        A.label("LkvA")
        A(f"""
        v_cmp_ge_u32 vcc, s{sRdy}, v0
        s_cbranch_vccz LkvAx
        {kvl}
        s_sub_u32 s{sSpin}, s{sSpin}, 1
        s_waitcnt vmcnt(0)
        s_cbranch_scc0 LkvA
        s_mov_b32 s{sSpin}, 0
        """)
        A.label("LkvAx")
        A("s_mov_b64 exec, -1")
    for k in range(0, 8, 2): A(f"v_mov_b64 {v(k,2)}, {v(PB+k,2)}")
    A("s_waitcnt lgkmcnt(0)")


def ldsw_reads(ch, dst):
    return [f"ds_read_b128 {v(dst + 4*k, 4)}, v{SLOT[ch][0]} offset:{SLOT[ch][1] + 1024*k}" for k in range(4)]

MARKS = []
STREAM = {("Q", 2): S0_, ("Q", 3): S0_ + 16, ("K", 2): PB, ("K", 6): PB, ("V", 6): S0_, ("V", 7): S0_ + 16,
          ("O", 1, 1): S0_, ("O", 2, 1): S0_ + 16, ("O", 3, 1): M0_}

def emit_chain_loop(A, nsteps=63, diag=False, nvown=4, barpos=6, nopub=0, kvfix=0, trace=None, timing=0, full=0, steplog=0, tstep=31,
                    d0=18, d1=37, d2=51, d3=54, g0=36, g1=22, g2=15, g3=23, e0=25, e1=36, e2=27, e3=23, h0=36, h1=42, h2=40, h3=33,
                    j0=7, j1=7, j2=0, j3=11, i0=2, i1=8, i2=1, i3=11, nsp=1, bar=1, vp=(0, 2), mpos=16, zpos=18, mex=0, pex=1, cpos=0, rwid=1, rp=(20, 22),
                    fine=0, kpos=9, kr=2, rgap=16, srn=1, srs=2, nwv=0, npb=4, kp=(0, 2), vs=7, psh=1, zskip=0, zpre=1, zpost=0, zgap=0, nob=1, inc=1, ndef=3, wslots=(2, 3, 4, 5, 6, 7, 9), w6=0, kvt=None, pad=None, sa=1, sds=(1, 2, 5, 6, 10, 11, 12, 13, 14, 15, 17, 19), scv=(19, 21, 23, 23, 23, 23), sg0=0, svp=(0, 4), ssl=(3, 7, 21), nb1=0, nb2=0, dl=1):
    if sa: vp = svp
    px, k2, early3 = None, 2, 0
    assert nvown == 4
    npre = 0
    srd = f"s[{SRD}:{SRD+3}]"
    def stamp(k):
        MARKS.append(k)
        if diag and diag[0] == k: A(f"s_memtime s[{sTM}:{sTM+1}]")
        if diag and diag[1] == k: A(f"s_memtime s[{sTM+2}:{sTM+3}]")
        if trace and k in trace:
            r = 64 + 2*trace.index(k)
            A(f"s_memtime s[{r}:{r+1}]")
    def lg(n): A(f"s_waitcnt lgkmcnt({n})")
    del MARKS[:]
    def rd(ch):
        if sa and ch == ("K", 2): return ldsw_reads(("K", 2), PB)[:2] + ldsw_reads(("K", 6), PB + 8)[:2]
        if sa and ch == ("K", 6): return ldsw_reads(("K", 2), PB - 8)[2:] + ldsw_reads(("K", 6), PB)[2:]
        return ldsw_reads(ch, STREAM[ch])
    cv = lambda d, a, b: A(f"v_cvt_pk_bf16_f32 v{d}, v{a}, v{b}")
    pk = lambda op, d, a, b: A(f"v_pk_{op}_f32 {v(d,2)}, {v(a,2)}, {v(b,2)}")
    def junk():
        for x in rd(("Q", 2)) + rd(("Q", 3)) + rd(("K", 2)): A(x)
        for k in range(0, 24, 2): A(f"v_mov_b64 {v(PA+k,2)}, 0")
    def jz_():
        for k in range(0, 24, 2): A(f"v_mov_b64 {v(PA+k,2)}, 0")
    def rladder(xs, to):
        for k in range(3):
            if any(xs[k:]):
                A(f"s_cmp_eq_u32 s{sW}, {3 - k}\ns_cbranch_scc1 {to}")
                A.nop(xs[k])
        A.label(to)
    def rotate():
        A(f"""
        s_mov_b32 s{sT}, s{sA}
        s_mov_b32 s{sA}, s{sB}
        s_mov_b32 s{sB}, s{sCc}
        s_mov_b32 s{sCc}, s{sT}
        """)
    def mload(r):
        A(f"""
        buffer_load_dwordx4 {v(r,4)}, v{MOWN}, {srd}, s{sAM} offen sc1
        buffer_load_dwordx4 {v(r+4,4)}, v{MOWN}, {srd}, s{sAM} offen offset:1024 sc1
        """)
    def mcheck(r, t0, t1):
        A(f"""
        v_max3_u32 v{t0}, v{r}, v{r+1}, v{r+2}
        v_max3_u32 v{t1}, v{r+3}, v{r+4}, v{r+5}
        v_max3_u32 v{t0}, v{t0}, v{r+6}, v{r+7}
        v_max_u32 v{t0}, v{t0}, v{t1}
        v_cmp_eq_u32 vcc, -1, v{t0}
        """)
    def kvpoll(tag, ret):
        A.label(f"Lkv{tag}")
        A(f"""
        s_mov_b64 exec, 31
        buffer_load_dword v16, v{SMR}, s[{SRDW}:{SRDW+3}], 0 offen sc1
        s_waitcnt vmcnt(0)
        v_cmp_ge_u32 vcc, s{sRdy}, v16
        s_mov_b64 exec, -1
        s_cbranch_vccz {ret}
        s_sleep 1
        s_sub_u32 s{sSpin}, s{sSpin}, 1
        s_cbranch_scc0 Lkv{tag}
        s_mov_b32 s{sSpin}, 0
        """)
    def pub_all():
        A(f"""
        s_add_u32 s{sT}, s{sMH}, {PM_OFF}
        buffer_store_dwordx4 {v(0,4)}, v{MOWN}, {srd}, s{sT} offen sc1
        buffer_store_dwordx4 {v(4,4)}, v{MOWN}, {srd}, s{sT} offen offset:1024 sc1
        """)
    if diag: A("s_mov_b32 s70, 0")
    if steplog: A("s_memrealtime s[86:87]")
    A(f"""
    s_cmp_lg_u32 s{sH}, 0
    s_cbranch_scc1 Lnopub
    """)
    pub_all()
    A.label("Lnopub")
    A(f"""
    buffer_load_dwordx4 {v(KX,4)}, v{MOWN}, {srd}, s{sKV} offen sc1
    buffer_load_dwordx4 {v(KX+4,4)}, v{MOWN}, {srd}, s{sKV} offen offset:1024 sc1
    """)
    junk()
    assert psh and nsp == 1
    A(f"s_nop 0\nv_smfmac_f32_16x16x64_bf16 {v(AQ[0],4)}, {v(0,4)}, {reg_of(('Q', 0), 0)[0]}, v{IDX}\ns_branch Lp2cont")

    A(".p2align 6" if pad is None else f".p2align 11\n.fill {pad//4}, 4, 0xbf800000")
    A.label("Lp2a")
    A(f"s_waitcnt vmcnt({2*k2 - 1})")
    if trace: stamp("p2_w")
    A.label("Lstep")
    A(f"""
    v_max3_u32 v8, v0, v1, v2
    v_max_u32 v8, v8, v3
    s_waitcnt vmcnt({2*k2 - 2})
    v_max3_u32 v8, v8, v4, v5
    v_max3_u32 v8, v8, v6, v7
    v_cmp_le_u32 vcc, 0xffc00000, v8
    """)
    if nsp == 0: A("s_cbranch_vccnz Lp2r\nLp2cont:")
    stamp("m_in")
    def B(ch, t):
        if sa and ch in (("K", 2), ("K", 6)): return v(PB + 2*(ch[1] - 2), 8)
        if ch in STREAM: return v(STREAM[ch] + 8*t, 8)
        return reg_of(ch, t)[0]
    def QK(i): return [(AQ[0], 4*i, B(("Q", i), 0)), (AQ[1], 4*i, B(("Q", i), 1)), (AK[0], 4*i, B(("K", i), 0)), (AK[1], 4*i, B(("K", i), 1))]
    def VV(i): return [(AV[0], 4*i, B(("V", i), 0)), (AV[1], 4*i, B(("V", i), 1))]
    vown = VV(0) + VV(1)
    seq = QK(0) + QK(1) + vown[:nvown]
    if sa: seq = [seq[k] for k in (0, 4, 1, 5, 3, 7, 8, 10, 9, 11, 2, 6)]
    mreads = [f"ds_read_b128 {v(8*j + 4*ii, 4)}, v{MX[j]} offset:{1024*ii}" for j in (1, 2, 3) for ii in range(2)]
    fill = {k: [] for k in range(40)}
    if nsp: fill[nsp - 1] += ["s_cbranch_vccnz Lp2r", "Lp2cont:"]
    fill[max(nsp - 1, 0)] += [f"ds_write_b128 v{MOWN}, {v(0,4)}"]
    fill[max(nsp, 1)] += [f"ds_write_b128 v{MOWN}, {v(4,4)} offset:1024"]
    if not dl: fill[3] += [f"s_cmp_ge_u32 s{sStep}, {nsteps}", "s_cbranch_scc1 Lexit"]
    fill[barpos] += ["s_waitcnt lgkmcnt(0)", "s_barrier", mreads[0]]
    kstep = 0 if kvfix else 32*4*4096
    vl = [f"buffer_load_dwordx4 {v(VX,4)}, v{MOWN}, {srd}, s{sKV} offen offset:2048 sc1",
          f"buffer_load_dwordx4 {v(VX+4,4)}, v{MOWN}, {srd}, s{sKV} offen offset:3072 sc1", f"s_add_u32 s{sKV}, s{sKV}, {kstep}"]
    nA = len(seq)
    fb = {(i, k): [] for i in range(2, 8) for k in range(4)}
    FB = lambda x: fb[2 + x//4, x % 4] if x >= 0 else fill[nA + x]
    ex = lambda x, m: [f"s_mov_b64 exec, {m}", x, "s_mov_b64 exec, -1"] if mex else [x]
    FB(vp[0]).append(vl[0]); FB(vp[1]).extend(vl[1:])
    if not nopub: FB(mpos).extend(ex(f"buffer_store_dword v{PUB}, v{MST}, {srd}, s{sMP} offen sc1", f"s[{sEx1}:{sEx1+1}]"))
    if full:
        FB(kpos).extend(ex(f"buffer_load_dword v7, v{SMR}, s[{SRDW}:{SRDW+3}], 0 offen sc1", "31"))
        FB(ssl[0] if sa else 19).append(f"s_add_u32 s{sRdy}, s{sRdy}, 1")
        assert kpos >= 0
    FB(zpos).extend(ex(f"buffer_store_dword v{SENT}, v{MST}, {srd}, s{sB} offen", f"s[{sEx1}:{sEx1+1}]"))
    assert mpos >= 0
    if kvt is not None:
        assert kvt > vp[1] + 1
        FB(vp[1] + 1).extend([f"s_sub_u32 s{sT+3}, s{sKV}, s{sK6}", f"v_lshlrev_b32 v{KT}, 2, v{MOWN}"])
        FB(kvt).append(f"buffer_load_dword v{KT}, v{KT}, {srd}, s{sT+3} offen sc1")
    lastld = max([vp[1]] + ([kpos] if full else []) + (list(pp) if px is not None else []) + [-99])
    nyoung = 2 + sum(x > lastld for x in (zpos, rp[0], rp[1]) + (() if nopub else (mpos,)) + (() if kvt is None else (kvt,)))
    for k in range(1, 6): fill[min(barpos + k, nA - 1)] += [mreads[k]]
    if px is not None:
        fill[5] += [f"s_add_u32 s{sT}, s{sStep}, 1", f"v_mov_b32 v31, s{sT}"]
        fill[px] = [f"s_mov_b64 exec, s[{sExF}:{sExF+1}]", f"buffer_store_dword v31, v{MOWN}, {srd}, s{sFW} offen", "s_mov_b64 exec, -1"] + fill[px]
    for k, x in enumerate(seq):
        if fine and k: stamp(f"a{k}")
        sm(A, *x)
        for y in fill[k]: A(y)
    if not (trace and trace[0] == "A_end"): stamp("A_end")
    if trace: A(f"s_cmp_eq_u32 s{sStep}, {tstep}\ns_cbranch_scc1 Lexit2")
    if trace and trace[0] == "A_end": stamp("A_end")
    strm = {3: rd(("K", 6)), 4: rd(("V", 6)), 5: rd(("V", 7))}
    waits = {2: 5, 3: 4, 4: 7, 5: 10, 6: 8}
    if sa:
        st = strm[3] + strm[4][:2] + strm[5][:2] + strm[4][2:] + strm[5][2:]
        for x, y in zip(sds, st): FB(x).append(y)
        cvs = [(PB+2, AK[0]), (PB+3, AK[0]+2), (PB+0, AQ[0]), (PB+1, AQ[0]+2), (PB+4, AQ[1]), (PB+5, AQ[1]+2)]
        for x, (d, a) in zip(scv, cvs): FB(x).append(f"v_cvt_pk_bf16_f32 v{d}, v{a}, v{a+1}")
    else:
        for i in strm:
            for k in range(4): fb[i, k] += [strm[i][k]]
    fb[6, 2] += [f"s_add_u32 s{sAM}, s{sA}, {PM_OFF}"]
    if sa: FB(ssl[2])[:0] = [f"s_add_u32 s{sMH}, s{sMH}, {MHS}", f"s_mov_b32 s{sMP}, s{sMH}"]; assert ssl[2] > mpos
    else: FB(max(mpos + 1, 1)).extend([f"s_add_u32 s{sMH}, s{sMH}, {MHS}", f"s_mov_b32 s{sMP}, s{sMH}"])
    rw = f"dword v{SENT}"
    FB(rp[0]).append(f"buffer_store_{rw}, v{PLD}, {srd}, s{sCc} offen")
    FB(rp[1]).append(f"buffer_store_{rw}, v{PLD}, {srd}, s{sCc} offen offset:1024")
    FB(ssl[1] if sa else 23).append(f"s_add_u32 s{sStep}, s{sStep}, 1")
    if px is not None:
        for q, x in enumerate(pp):
            assert x < 16
            fb[2 + x//4, x % 4] = [f"buffer_load_dword v{q}, v{SMR}, {srd}, s{sFR} offen sc1"] + fb[2 + x//4, x % 4]
    if psh:
        FB(9).append(f"s_waitcnt vmcnt({sum(x <= 9 for x in list(vp) + list(rp) + [zpos] + ([kpos] if full else []) + ([] if nopub else [mpos]) + ([] if kvt is None else [kvt]))})")
        for k, x in enumerate([f"v_lshrrev_b32 v4, 1, v{MOWN}", "v_and_b32 v4, 128, v4", f"v_xor_b32 v0, v4, v{MOWN}"] +
                              [f"v_and_or_b32 v{j}, v{MX[j]}, s{sM7}, v4" for j in (1, 2, 3)]): FB(10 + k).append(x)
    if sa:
        for x in range(24):
            i = 2 + x % 6
            if x < 6: lg(5 - x + sum(y < x for y in sds))
            if x == 18: lg(sum(y < x for y in sds) - 4)
            if x == 0: stamp("B_start")
            if fine and x % 2 == 0: stamp(f"b{2 + x//4}{x % 4}")
            sm(A, *QK(i)[(2, 0, 1, 3)[x//6]])
            for y in FB(x): A(y)
    for i in range(2, 8) if not sa else ():
        if i in waits: A(f"s_waitcnt lgkmcnt({waits[i]})")
        if i == 2: stamp("B_start")
        for k, x in enumerate(QK(i)):
            if fine and k % 2 == 0: stamp(f"b{i}{k}")
            sm(A, *x)
            for y in fb[i, k]: A(y)
    stamp("QK_end")
    vq = VV(6) + VV(7) + VV(4) + VV(5) + VV(2) + VV(3) + vown[nvown:]
    if sa: vq = [vq[k] for k in (1, 3, 0, 2, 4, 6, 8, 10, 5, 7, 9, 11)]
    def vf(*after):
        sm(A, *vq.pop(0))
        for y in after: A(y)
    T = PB + 8
    if sa:
        A(f"v_mfma_f32_16x16x32_bf16 {v(PA,4)}, {v(PB,4)}, {v(SELT,4)}, 0")
        A.nop(sg0)
        cv(PB+6, AK[1], AK[1]+1); cv(PB+7, AK[1]+2, AK[1]+3)
        A("s_waitcnt lgkmcnt(0)\ns_nop 0")
        A(f"v_mfma_f32_16x16x32_bf16 {v(PA+4,4)}, {v(PB+4,4)}, {v(SELT,4)}, 0")
        vf()
        stamp("T_mfma")
        cv(T, PA, PA+1); cv(T+1, PA+2, PA+3); cv(T+2, PA+4, PA+5); cv(T+3, PA+6, PA+7)
    else:
        cv(PB+0, AQ[0], AQ[0]+1); cv(PB+1, AQ[0]+2, AQ[0]+3); cv(PB+4, AQ[1], AQ[1]+1); cv(PB+5, AQ[1]+2, AQ[1]+3)
        cv(PB+2, AK[0], AK[0]+1); cv(PB+3, AK[0]+2, AK[0]+3); cv(PB+6, AK[1], AK[1]+1); cv(PB+7, AK[1]+2, AK[1]+3)
        A(f"v_mfma_f32_16x16x32_bf16 {v(PA,4)}, {v(PB,4)}, {v(SELT,4)}, 0")
        A("s_waitcnt lgkmcnt(0)")
        A(f"v_mfma_f32_16x16x32_bf16 {v(PA+4,4)}, {v(PB+4,4)}, {v(SELT,4)}, 0")
        vf()
        T = PB + 8
        stamp("T_mfma")
        cv(T, PA, PA+1); cv(T+1, PA+2, PA+3); cv(T+2, PA+4, PA+5); cv(T+3, PA+6, PA+7)
    A.nop(2)
    wo = rd(("O", 1, 1))[:2] + rd(("O", 2, 1))[:2] + rd(("O", 1, 1))[2:] + rd(("O", 2, 1))[2:]
    nw = 0
    def W():
        nonlocal nw
        nw += 1
        return wo[nw - 1] if nw <= 8 - ndef else ""
    A(f"v_mfma_f32_16x16x32_bf16 {v(PA,4)}, {v(KX,4)}, {v(T,4)}, 0")
    if npre >= 1: A(W())
    A(f"v_mfma_f32_16x16x32_bf16 {v(PA+4,4)}, {v(KX+4,4)}, {v(T,4)}, 0")
    if npre >= 2: A(W())
    A(f"v_mfma_f32_16x16x32_bf16 {v(PA+8,4)}, {v(T,4)}, {v(T,4)}, 0")
    stamp("S_mfma")
    kl = [f"buffer_load_dwordx4 {v(KX,4)}, v{MOWN}, {srd}, s{sKV} offen sc1", f"buffer_load_dwordx4 {v(KX+4,4)}, v{MOWN}, {srd}, s{sKV} offen offset:1024 sc1"]
    if vs & 1: vf()
    else: A.nop(4)
    for g in range(4): A(f"v_mov_b32_dpp v{PA+g}, v{PA+4+g} row_ror:8 row_mask:0xf bank_mask:0xc")
    if vs & 2: vf()
    A(f"ds_write_b128 v{MOWN}, {v(PA,4)} offset:{LDS_SC}")
    for g in range(2): A(f"v_mov_b32_dpp v{PA+8+g}, v{PA+10+g} row_ror:8 row_mask:0xf bank_mask:0xc")
    if vs & 4: vf()
    A(f"ds_write_b64 v{SMW}, {v(PA+8,2)} offset:{LDS_SC+1024}")
    stamp("S_written")
    n0 = nw
    zs = [24, 26, 28, 30, 16, 18, 20, 22]
    def Z():
        done = 16 - nvown - len(vq)
        need = {24: 4, 26: 4, 28: 5, 30: 5, 16: 10, 18: 10, 20: 11, 22: 11} if sa else {24: 3, 26: 3, 28: 5, 30: 5, 16: 7, 18: 7, 20: 9, 22: 9}
        if zs and done >= need[zs[0]]: return f"v_mov_b64 {v(zs.pop(0),2)}, 0"
        return ""
    for k in range(npb):
        vf(*[kl[q] for q in range(2) if kp[q] == k])
        if zpre and k not in kp and k < npb - 1: A(Z())
    stamp("preB2")
    lg(nw - n0)
    A("s_barrier")
    stamp("B2")
    xr = [f"ds_read_b128 {v(PA+4*j,4)}, v{MX[j]} offset:{LDS_SC}" for j in (1, 2, 3)]
    mr = [f"ds_read_b128 {v(PB+4*pr,4)}, v{SMR} offset:{LDS_SC+2048*pr+1024}" for pr in range(2)]
    WA = [16, 20, 24, 28]
    sr = [xr[0], xr[1], xr[2], mr[0], mr[1]]
    for x in sr[:srn]: A(x)
    sr = sr[srn:]
    n0 = nw
    nz = 0
    while vq:
        nz += 1
        if sr: vf(*sr[:srs]); sr = sr[srs:]
        elif len(vq) <= nwv: vf(W())
        else: vf()
        if nz > zskip: A(Z())
    for k in range(zpost): A(Z())
    stamp("V_end")
    nl = nw - n0
    if inc == 0:
        lg(nl)
        stamp("S_read")
        pk("add", PA, PA, PA+4); pk("add", PA+2, PA+2, PA+6); pk("add", PB, PB, PB+2)
        pk("add", PA+8, PA+8, PA+12); pk("add", PA+10, PA+10, PA+14); pk("add", PB+4, PB+4, PB+6)
        pk("add", PA, PA, PA+8); pk("add", PA+2, PA+2, PA+10); pk("add", PB, PB, PB+4)
    elif inc == 1:
        lg(nl + 2)
        stamp("S_read")
        pk("add", PA, PA, PA+4); pk("add", PA+2, PA+2, PA+6)
        pk("add", PA+8, PA+8, PA+12); pk("add", PA+10, PA+10, PA+14)
        pk("add", PA, PA, PA+8); pk("add", PA+2, PA+2, PA+10)
        lg(nl)
        pk("add", PB, PB, PB+2); pk("add", PB+4, PB+4, PB+6); pk("add", PB, PB, PB+4)
    else:
        lg(nl + 4)
        stamp("S_read")
        pk("add", PA, PA, PA+4); pk("add", PA+2, PA+2, PA+6)
        lg(nl + 3)
        pk("add", PA, PA, PA+8); pk("add", PA+2, PA+2, PA+10)
        lg(nl + 2)
        pk("add", PA, PA, PA+12); pk("add", PA+2, PA+2, PA+14)
        lg(nl)
        pk("add", PB, PB, PB+2); pk("add", PB+4, PB+4, PB+6); pk("add", PB, PB, PB+4)
    stamp("adds")
    X, Y = PB+2, PB+3
    ON, SU = PA + 4, PA + 8
    VM = PB + 12
    A(f"""
    v_max3_f32 v{X}, v{PA}, v{PA+1}, v{PA+2}
    v_max3_f32 v{Y}, v{PA+3}, v{PB}, v{PB+1}
    v_max_f32 v{X}, v{X}, v{Y}
    """)
    cv(VM, AV[0], AV[0]+1); cv(VM+1, AV[0]+2, AV[0]+3)
    A(f"""
    v_max_f32_dpp v{Y}, v{X}, v{X} row_ror:8 row_mask:0xf bank_mask:0xf
    v_max_f32_dpp v{X}, v{X}, v{X} row_ror:8 row_mask:0xf bank_mask:0xf
    """)
    cv(VM+2, AV[1], AV[1]+1); cv(VM+3, AV[1]+2, AV[1]+3)
    A(f"""
    v_permlane16_swap_b32 v{X}, v{Y}
    v_max_f32 v{PB+4}, v{X}, v{Y}
    v_max_f32 v{PB+5}, v{X}, v{Y}
    v_pk_mov_b32 {v(ON+2*psh,2)}, s[{sOne}:{sOne+1}], s[{sOne}:{sOne+1}] op_sel:[0,0]
    v_pk_mov_b32 {v(ON+2-2*psh,2)}, s[{sOne}:{sOne+1}], s[{sOne}:{sOne+1}] op_sel:[1,1]
    v_permlane32_swap_b32 v{PB+4}, v{PB+5}
    v_max_f32 v{X}, v{PB+4}, v{PB+5}
    v_mul_f32 v{X}, s{sC}, v{X}
    """)
    stamp("max")
    for r in (PA, PA+2, PB):
        A(f"v_pk_fma_f32 {v(r,2)}, {v(r,2)}, s[{sC}:{sC+1}], {v(X,2)} op_sel_hi:[1,0,0] neg_lo:[0,0,1] neg_hi:[0,0,1]")
    for r in [PB, PB+1, PA, PA+1, PA+2, PA+3]: A(f"v_exp_f32 v{r}, v{r}")
    stamp("exp")
    if psh:
        PM, PX = PB + 4, PB + 6
        cv(PM, PB, PB+1); cv(PX, PA, PA+1); cv(PX+1, PA+2, PA+3)
        A(f"""
        v_mov_b32_dpp v{PM+1}, v{PM} row_ror:8 row_mask:0xf bank_mask:0xf
        v_mov_b32_dpp v{PX+2}, v{PX} row_ror:8 row_mask:0xf bank_mask:0xf
        v_mov_b32_dpp v{PX+3}, v{PX+1} row_ror:8 row_mask:0xf bank_mask:0xf
        v_mfma_f32_16x16x32_bf16 {v(SU,4)}, {v(ON,4)}, {v(PM,4)}, 0
        {W() if nw < 5 else ""}
        s_waitcnt vmcnt({nyoung})
        """)
    else:
        PX, PM = PB + 4, PB + 8
        cv(PM, PB, PB+1); cv(PM+1, PB, PB+1); cv(PX+2, PA, PA+1); cv(PX+3, PA+2, PA+3); cv(PX, PA, PA+1); cv(PX+1, PA+2, PA+3)
        A(f"""
        v_mfma_f32_16x16x32_bf16 {v(SU,4)}, {v(ON,4)}, {v(PX+2,4)}, 0
        {W() if nw < 4 else ""}
        s_waitcnt vmcnt({nyoung})
        v_mov_b32_dpp v{PX+2}, v{PX+2} row_ror:8 row_mask:0xf bank_mask:0x3
        v_mov_b32_dpp v{PX+3}, v{PX+3} row_ror:8 row_mask:0xf bank_mask:0x3
        v_mov_b32_dpp v{PX}, v{PX} row_ror:8 row_mask:0xf bank_mask:0xc
        v_mov_b32_dpp v{PX+1}, v{PX+1} row_ror:8 row_mask:0xf bank_mask:0xc
        v_mov_b32_dpp v{PM}, v{PM} row_ror:8 row_mask:0xf bank_mask:0xc
        v_mov_b32_dpp v{PM+1}, v{PM+1} row_ror:8 row_mask:0xf bank_mask:0x3
        """)
    stamp("Pcvt")
    sadd = f"v_add_f32_dpp v{X}, v{SU}, v{SU} row_ror:8 row_mask:0xf bank_mask:0xf"
    srcp = f"v_rcp_f32 v{X}, v{X}"
    OA = 0
    pvf = [[Z()], [sadd], [srcp]] if psh else [[sadd], [srcp], []]
    A(f"""
    v_mfma_f32_16x16x32_bf16 {v(AV[0],4)}, {v(VX,4)}, {v(PX,4)}, 0
    {W()}
    {"".join(pvf[0])}
    v_mfma_f32_16x16x32_bf16 {v(AV[1],4)}, {v(VX+4,4)}, {v(PX,4)}, 0
    {W()}
    {"".join(pvf[1])}
    v_mfma_f32_16x16x16_bf16 {v(AV[0],4)}, {v(VM,2)}, {v(PM,2)}, {v(AV[0],4)}
    {W()}
    {"".join(pvf[2])}
    v_mfma_f32_16x16x16_bf16 {v(AV[1],4)}, {v(VM+2,2)}, {v(PM,2)}, {v(AV[1],4)}
    """)
    left = max(0, 8 - ndef - nw)
    for k in range(left): A(W())
    nzz = min(len(zs), 4 - max(left, 1))
    A.nop(4 - left - nzz)
    for k in range(nzz): A(Z())
    zm = [Z() for k in range(len(zs))]
    assert nw >= 8 - ndef
    OF = [PB+4, VX, VX+4, PB+8]
    for k in range(2):
        A(f"v_pk_mul_f32 {v(AV[0]+2*k,2)}, {v(AV[0]+2*k,2)}, {v(X,2)} op_sel_hi:[1,0]")
    cv(OF[0], AV[0], AV[0]+1); cv(OF[0]+1, AV[0]+2, AV[0]+3)
    stamp("rcp")
    for k in range(2):
        A(f"v_pk_mul_f32 {v(AV[1]+2*k,2)}, {v(AV[1]+2*k,2)}, {v(X,2)} op_sel_hi:[1,0]")
    cv(OF[0]+2, AV[1], AV[1]+1); cv(OF[0]+3, AV[1]+2, AV[1]+3)
    A(f"ds_write_b128 v{OA if psh else MOWN}, {v(OF[0],4)}")
    stamp("o_written")
    if psh:
        for k in range(4): A(f"v_mov_b32_dpp v{OF[0]+k}, v{OF[0]+k} row_ror:8 row_mask:0xf bank_mask:0xc")
    for z in zm: A(z)
    if full: A(f"v_cmp_ge_u32 s[{sKM}:{sKM+1}], s{sRdy}, v7")
    if px is not None:
        for q in range(len(pp)): A(f"v_cmp_ne_u32 s[{sPM+2*q}:{sPM+2*q+1}], s{sStep}, v{q}")
    A.nop(2 - len(zm) - (1 if full else 0))
    def OO(j, i): return [(WA[2*i+t], OF[j], B(("O", j, i), t)) for t in range(2)]
    OG = lambda j, g: OO(j, g >> 1)[g & 1]
    own = [OG(0, 2), OG(0, 3), OG(0, 1), OG(0, 0)]
    for x in own[:nob]: sm(A, *x)
    A("s_waitcnt lgkmcnt(0)")
    A("s_barrier")
    stamp("B3")
    dsq = []
    def DS(x):
        A(x); dsq.append(set(parse_operand(x.split()[1].rstrip(","))))
    for j in (1, 2, 3): DS(f"ds_read_b128 {v(OF[j],4)}, v{OA + j if psh else MX[j]}")
    wo3 = rd(("O", 3, 1))
    PK = AV[0]
    wseq = [None]*(nob - 1) + own[nob:] + [OG(j, g) for g in range(4) for j in (1, 2, 3)]
    cvs = lambda g: [f"v_cvt_pk_bf16_f32 v{PK+2*g+q}, v{WA[g]+2*q}, v{WA[g]+2*q+1}" for q in range(2)]
    sG = [sA, sT, sT+1, sT+2]
    gst = lambda g: f"buffer_store_dwordx2 {v(PK+2*g,2)}, v{PST}, {srd}, s{sG[g]} offen"
    fw = {k: [] for k in range(16)}
    fw[0] += [f"s_add_u32 s{sT}, s{sA}, 65536"]; fw[1] += [f"s_add_u32 s{sT+1}, s{sA}, 131072"]
    fw[2] += [f"s_add_u32 s{sT+2}, s{sA}, 196608"]
    if w6: fw[6] += ["s_waitcnt vmcnt(2)"]
    for k, x in zip(wslots, wo3[:2] + wo[8 - ndef:] + wo3[2:]): fw[k] = [x] + fw[k]
    assert len(wslots) >= 4 + ndef
    for g in range(3):
        k = 3 + 3*g + 4
        if cpos == 0: fw[k] += cvs(g); fw[k+1] += [gst(g)]
        if cpos == 1: fw[k] += cvs(g) + [gst(g)]
        if cpos == 2: fw[k] += cvs(g)[:1]; fw[k+1] += cvs(g)[1:]; fw[k+2] = [gst(g)] + fw[k+2]
    got = [0]
    def ready(k):
        x = wseq[k]
        if not x: return
        use = set(parse_operand(v(x[1], 4))) | set(parse_operand(x[2]))
        need_ = max([i + 1 for i, d in enumerate(dsq) if d & use] + [0])
        if need_ > got[0]:
            if k >= 9: need_ = max(need_, len(dsq) - sum(q >= k - 4 and q < k for q in wslots[:4 + ndef]))
            lg(len(dsq) - need_); got[0] = need_
    for k, x in enumerate(wseq):
        if k == 3: stamp("o_read")
        if k == 9: stamp("early_end")
        if x: sm(A, *x)
        nv = next((i for i, y in enumerate(fw[k]) if y.startswith("v_")), len(fw[k]))
        for i, y in enumerate(fw[k] + [None]):
            if i == nv and k + 1 < len(wseq): ready(k + 1)
            if y is None: break
            if y.startswith("ds_read"): DS(y)
            else: A(y)
            if y == gst(0) and trace: stamp("est")
    stamp("late_end")
    tail = fw[15] + ([f"s_and_b32 s{sKM}, s{sKM}, s{sExK}", "s_cbranch_scc1 LkvB", "LkvBret:"] if 0 else [])
    for y in tail: A(y)
    if px is not None: A(f"s_cmp_eq_u64 s[{sPM}:{sPM+1}], 0")
    A.nop(8 - len(fw[14]) - len(tail) - (px is not None) - (2 if any(y.startswith("v_") for y in fw[14]) else 0))
    for y in cvs(3): A(y)
    A(gst(3))
    stamp("stored")
    RA = VX
    def pload(r):
        for k in range(2): A(f"buffer_load_dwordx4 {v(r+4*k,4)}, v{PLD}, {srd}, s{sA} offen offset:{1024*k} sc1")
    dacc = f"s_waitcnt lgkmcnt(0)\ns_sub_u32 s{sT+2}, s{sTM+2}, s{sTM}\ns_add_u32 s70, s70, s{sT+2}"
    if px is not None:
        for q in range(len(pp)):
            A("s_cbranch_scc1 Lsync")
            A.nop(eps[q])
            if q + 1 < len(pp): A(f"s_cmp_eq_u64 s[{sPM+2*q+2}:{sPM+2*q+3}], 0")
        A.label("Lsync")
    if bar: A("s_barrier")
    if trace: stamp("lbar")
    if diag: A(dacc)
    if timing: A(f"s_cmp_eq_u32 s{sStep}, 3\ns_cbranch_scc1 Ltm\nLtmret:")
    A(f"""
    s_cmp_eq_u32 s{sW}, 1
    s_cbranch_scc1 Lh1
    s_cmp_eq_u32 s{sW}, 2
    s_cbranch_scc1 Lh2
    s_cmp_eq_u32 s{sW}, 3
    s_cbranch_scc1 Lh3
    """)
    jr = rd(("Q", 2)) + rd(("Q", 3)) + rd(("K", 2))
    def pproc(r, base):
        for k in range(2):
            A(f"s_waitcnt vmcnt({base + 1 - k})")
            A(f"v_mfma_f32_16x16x32_bf16 {v(RA,4)}, {v(SELR,4)}, {v(r+4*k,4)}, {v(RA,4) if k else 0}")
        if trace: stamp("p1_data")
        A(f"""
        s_nop 7
        v_add_f32_dpp v{RA}, v{RA}, v{RA} row_ror:4 row_mask:0xf bank_mask:0xf
        v_add_f32_dpp v{RA+1}, v{RA+1}, v{RA+1} row_ror:4 row_mask:0xf bank_mask:0xf
        s_nop 0
        v_add_f32_dpp v{RA}, v{RA}, v{RA} row_ror:8 row_mask:0xf bank_mask:0xf
        v_add_f32_dpp v{RA+1}, v{RA+1}, v{RA+1} row_ror:8 row_mask:0xf bank_mask:0xf
        {f"s_mov_b64 exec, s[{sEx1}:{sEx1+1}]" if pex else ""}
        v_cvt_pk_bf16_f32 v{PUB}, v{RA}, v{RA+1}
        buffer_store_dword v{PUB}, v{MST}, {srd}, s{sA} offen
        """)
        if trace: stamp("pub")
        A(f"""
        v_cmp_u_f32 vcc, v{RA+1}, v{RA+1}
        {"s_mov_b64 exec, -1" if pex else ""}
        """)
    for w in range(4):
        d, g, e, h, jl = [(d0, g0, e0, h0, j0), (d1, g1, e1, h1, j1), (d2, g2, e2, h2, j2), (d3, g3, e3, h3, j3)][w]
        A.label(f"Lh{w}")
        ni = [i0, i1, i2, i3][w]; jl = min(12, ni + jl)
        for x in jr[:ni]: A(x); A.nop(2)
        A.nop(max(0, d - 3*ni - (3 if timing else 0) - [6, 8, 10, 12][w]))
        if trace: stamp("p1_first")
        pload(0)
        jz_()
        n1 = nb1 >> w & 1
        if not n1: A.nop(g); pload(8)
        for x in jr[ni:jl]: A(x)
        A.label(f"Lp1w{w}")
        pproc(0, 0 if n1 else 2)
        A(f"s_cbranch_vccnz Lp1r{w}")
        A.label(f"Lp1done{w}")
        if dl: A(f"s_cmp_ge_u32 s{sStep}, {nsteps}\ns_cbranch_scc1 Lexit"); e -= 2
        for x in jr[jl:]: A(x)
        if full and w == 0:
            A(f"s_and_b32 s{sKM}, s{sKM}, 31\ns_cbranch_scc1 LkvB")
        A.nop(e - (3 if full and w == 0 else 0))
        A.label(f"Lp2_{w}")
        if trace: stamp("p2_first")
        mload(0)
        if steplog and w == 0: A(f"s_memrealtime s[80:81]\ns_memtime s[82:83]\ns_cmp_eq_u32 s{sHW}, 0\ns_cbranch_scc1 Llog\nLlogret:")
        rotate()
        if nb2 >> w & 1:
            A("s_mov_b64 exec, 1"); mload(0); A("s_mov_b64 exec, -1")
        else:
            A.nop(h - 4); mload(0)
        A("s_branch Lp2a")
        A.label(f"Lp1r{w}")
        if n1: pload(0)
        else:
            pproc(8, 1)
            A(f"s_cbranch_vccz Lp1done{w}")
            pload(0); A.nop(24); pload(8)
        A(f"s_sub_u32 s{sSpin}, s{sSpin}, 1\ns_cbranch_scc0 Lp1w{w}")
        A(f"""
        s_mov_b32 s{sSpin}, 0
        v_mov_b32 v{PUB}, 0x7fc07fc0
        s_waitcnt vmcnt(0)
        buffer_store_dword v{PUB}, v{MST}, {srd}, s{sA} offen
        s_branch Lp1done{w}
        """)
    def chk2(n):
        A(f"""
        s_waitcnt vmcnt({n + 1})
        v_max3_u32 v8, v0, v1, v2
        v_max_u32 v8, v8, v3
        s_waitcnt vmcnt({n})
        v_max3_u32 v8, v8, v4, v5
        v_max3_u32 v8, v8, v6, v7
        v_cmp_le_u32 vcc, 0xffc00000, v8
        """)
        for k in range(0, 4*nsp, 2): A(f"v_mov_b64 {v(PA+k,2)}, 0")
        if nsp: A("s_nop 1")
        for x in seq[:nsp]: sm(A, *x)
        A("s_cbranch_vccz Lp2cont")
    def relook():
        A("s_mov_b64 exec, vcc")
        mload(0)
        A("s_mov_b64 exec, -1")
    A(".p2align 4")
    A.label("Lp2r")
    if early3: relook()
    for q in range(k2 - 1): chk2(2*(k2 - 2 - q) + (2 if early3 else 0))
    for q in range(kr - 1 - (1 if early3 else 0)):
        relook(); A.nop(rgap)
    A.label("Lp2q")
    relook()
    A(f"s_sub_u32 s{sSpin}, s{sSpin}, 1\ns_cbranch_scc1 Lp2giveup")
    chk2(2*(kr - 1))
    A("s_branch Lp2q")
    A.label("Lp2giveup")
    A(f"""
    s_mov_b32 s{sSpin}, 0
    s_waitcnt vmcnt(0)
    s_branch Lp2cont
    """)
    if timing:
        A.label("Ltm")
        A(f"s_memtime s[96:97]\ns_mov_b32 s98, s{sSpin}\ns_branch Ltmret")
    if steplog:
        A.label("Llog")
        A(f"""
        s_lshl_b32 s84, s{sStep}, 3
        s_add_u32 s84, s84, {WS_DBG + 8192 - 8}
        s_waitcnt lgkmcnt(0)
        v_mov_b32 v16, s80
        v_mov_b32 v17, s82
        s_mov_b64 exec, 1
        buffer_store_dwordx2 v[16:17], off, {srd}, s84
        s_mov_b64 exec, -1
        s_branch Llogret
        """)
    if full:
        kvpoll("B", "Lp2_0"); A("s_branch Lp2_0")
    A.label("Lexit")
    if dl:
        A(f"buffer_store_dword v{PUB}, v{MST}, {srd}, s{sMP} offen sc1\ns_waitcnt vmcnt(0) lgkmcnt(0)")
        if trace: A.label("Lexit2")
        return
    L = A.newlabel("Lfin")
    A(f"""
    s_cmp_lg_u32 s{sH}, 0
    s_cbranch_scc1 {L}
    """)
    pub_all()
    A(f"""
    buffer_store_dword v{PUB}, v{MST}, {srd}, s{sMH} offen sc1
    s_add_u32 s{sMH}, s{sMH}, {MHS}
    s_waitcnt vmcnt(0)
    s_barrier
    s_mov_b64 exec, 16
    buffer_store_dword v{PUB}, v{MST}, {srd}, s{sMH} offen sc1
    """)
    A.label(L)
    A("s_mov_b64 exec, -1")
    if trace: A.label("Lexit2")
```

```python
import sys
from asmlib import *
from layout import *
import chain, headw, convout
NAME = "gated_mix__memory_aug_recurrent_mem_tr__ssm_conv_h3__prompt"
CHAIN_CFG = dict()
def prefetch_code(A, tag, end, n=1):
    A(f"s_getpc_b64 s[40:41]")
    A.label(f"Lpc{tag}")
    for k in range(n):
        A(f"""
        v_lshlrev_b32 v255, 7, v0
        v_add_u32 v255, {k*32768}, v255
        v_min_u32 v255, {end}-Lpc{tag}-4, v255
        global_load_dword v254, v255, s[40:41]
        """)
def body(stamps=False, roles="CHO", pf=1, slp=2, LA=3, spread=1, nt=1, bal=0, tc=0, th=0, fn=14, rt=(2, 0, 3), osc='', na=14, slo=2, tm=0, slq=1, hx=0, cx=(1, 6, 2, 0, 3, 7, 4, 5), **kw):
    A = Asm()
    A(f"""
    s_cmp_ge_u32 s2, 256
    s_cbranch_scc1 Lend2
    s_load_dwordx2 s[8:9], s[0:1], {KA['dbg']}
    s_load_dwordx4 s[48:51], s[0:1], {KA['Wq']}
    s_load_dwordx4 s[52:55], s[0:1], {KA['Wv']}
    s_getreg_b32 s3, hwreg(HW_REG_XCC_ID, 0, 3)
    """)
    assert sorted(cx) == list(range(8))
    A(f"s_lshl_b32 s3, s3, 2\ns_lshr_b32 s3, {hex(sum(r << 4*i for i, r in enumerate(cx)))}, s3\ns_and_b32 s3, s3, 7")
    if stamps: A("s_memrealtime s[78:79]")
    if spread: A(f"""
    s_lshl_b32 s4, s3, 2
    s_add_u32 s5, s3, 2
    s_mul_i32 s5, s5, 86
    s_lshr_b32 s5, s5, 8
    s_lshl_b32 s5, s5, 6
    s_add_u32 s4, s4, s5
    """)
    else: A("s_lshl_b32 s4, s3, 2")
    A(f"""
    v_mov_b32 v1, s4
    v_mov_b32 v2, 1
    v_mov_b32 v4, 0
    s_lshr_b32 s5, s2, 3
    s_sub_u32 s6, s3, 1
    s_mul_i32 s6, s6, 1639
    s_lshr_b32 s6, s6, 8
    s_min_u32 s6, s6, 24
    s_lshl_b32 s6, s6, 8
    s_lshl_b32 s7, s5, 17
    s_add_u32 s7, s7, s6
    s_lshl_b32 s5, s5, 15
    v_lshlrev_b32 v5, 7, v0
    v_add_u32 v5, s5, v5
    v_lshrrev_b32 v6, 4, v0
    v_and_b32 v7, 15, v0
    v_lshlrev_b32 v7, 7, v7
    v_lshl_add_u32 v6, v6, 13, v7
    v_add_u32 v6, s7, v6
    v_cmp_eq_u32 vcc, 0, v0
    s_waitcnt lgkmcnt(0)
    s_and_saveexec_b64 s[20:21], vcc
    s_cbranch_execz Lnoat
    global_atomic_add v3, v1, v2, s[8:9] sc0
    """)
    A.label("Lnoat")
    A("s_mov_b64 exec, s[20:21]\ns_cmp_lg_u32 s3, 0\ns_cbranch_scc1 Lnt0")
    for k in range(tc): A(f"global_load_dword v253, v5, s[48:49]\nv_add_u32 v5, {MB}, v5")
    A(f"s_waitcnt vmcnt({tc})\ns_branch Lnt2")
    A.label("Lnt0")
    A("s_cmp_ge_u32 s3, 6\ns_cbranch_scc1 Lnt1")
    for k in range(th): A(f"global_load_dword v253, v6, s[{[50, 52, 48][k]}:{[51, 53, 49][k]}]")
    A(f"s_waitcnt vmcnt({th})\ns_branch Lnt2")
    A.label("Lnt1")
    A("s_waitcnt vmcnt(0)")
    A.label("Lnt2")
    A(f"""
    s_and_saveexec_b64 s[20:21], vcc
    ds_write_b32 v4, v3
    s_waitcnt lgkmcnt(0)
    """)
    assert all(min(((x - 1)*1639) >> 8, 24) == min(32*(x - 1)//5, 24) for x in range(1, 6))
    A(f"""
    s_mov_b64 exec, s[20:21]
    s_barrier
    ds_read_b32 v3, v4
    s_waitcnt lgkmcnt(0)
    v_readfirstlane_b32 s10, v3
    s_barrier
    {"s_memrealtime s[88:89]" if stamps else ""}
    s_cmp_ge_u32 s10, 32
    s_cbranch_scc1 Lend2
    s_lshl_b32 s2, s3, 5
    s_add_u32 s2, s2, s10
    s_cmp_eq_u32 s3, 0
    s_cbranch_scc1 Rchain
    s_sub_u32 s10, s2, 32
    s_cmp_ge_u32 s10, 160
    s_cbranch_scc1 Rconv
    s_mul_i32 s4, s10, 205
    s_lshr_b32 s4, s4, 10
    s_mul_i32 s5, s4, 5
    s_sub_u32 s12, s10, s5
    s_mov_b32 s10, s4
    """)
    assert all((r*205) >> 10 == r//5 for r in range(160))
    if pf: prefetch_code(A, "H", "Rconv")
    if "H" in roles: headw.emit_head_worker(A, stamps, slq, slp, LA)
    else: A("s_branch Lend2")
    A.label("Rconv")
    A("s_sub_u32 s10, s10, 160")
    if pf: prefetch_code(A, "O", "Rchain")
    if "O" in roles: convout.emit_conv_out(A, stamps, slo, osc, na)
    else: A("s_branch Lend2")
    A.label("Rchain")
    if hx: A(f"s_xor_b32 s10, s10, {hx}")
    if pf: prefetch_code(A, "C", "Lend2")
    if "C" in roles:
        chain.emit_chain_init(A, nzero=160, stamps=stamps, full=1, have_w=True, nt=nt, bal=bal, fn=fn, rt=rt)
        if stamps: A("s_memrealtime s[76:77]")
        chain.emit_chain_loop(A, full=1, steplog=stamps and not tm, timing=tm, **dict(CHAIN_CFG, **kw))
        if tm: A('s_memtime s[94:95]\ns_waitcnt lgkmcnt(0)\ns_sub_u32 s80, s94, s96')
    else: A("s_branch Lend2")
    A.label("Lend")
    if stamps:
        A(f"""
        s_memrealtime s[74:75]
        s_waitcnt vmcnt(0) lgkmcnt(0)
        s_nop 15
        s_lshl_b32 s36, s2, 4
        s_add_u32 s36, s36, {WS_DBG}
        v_mov_b32 v0, s78
        v_mov_b32 v1, s76
        v_mov_b32 v2, s74
        v_mov_b32 v3, s18
        buffer_store_dwordx4 v[0:3], off, s[4:7], s36
        v_mov_b32 v4, s80
        v_mov_b32 v5, s82
        s_add_u32 s36, s36, 4096
        v_mov_b32 v6, s86
        v_mov_b32 v7, s88
        buffer_store_dwordx4 v[4:7], off, s[4:7], s36
        """)
    A.label("Lend2")
    errs = check(A.lines)
    for e in errs: print("HAZARD", e, file=sys.stderr)
    return A.text()
def full_file(**kw):
    ref = open(f"cdna_kernels/{NAME}.s.ref").read() if len(sys.argv) < 0 else None
    hdr = open("header.txt").read()
    return hdr + f"""; @launch grid=(256,1,1) block=(256,1,1) lds=163840
.amdgcn_target "amdgcn-amd-amdhsa--gfx950"
.text
.globl {NAME}_kernel
.p2align 8
.type {NAME}_kernel,@function
{NAME}_kernel:
""" + body(**kw) + f"""s_endpgm
.section .rodata,"a"
.p2align 6
.amdhsa_kernel {NAME}_kernel
  .amdhsa_next_free_vgpr 512
  .amdhsa_next_free_sgpr 102
  .amdhsa_accum_offset 256
  .amdhsa_group_segment_fixed_size 0
  .amdhsa_kernarg_size 136
  .amdhsa_user_sgpr_count 2
  .amdhsa_user_sgpr_kernarg_segment_ptr 1
  .amdhsa_system_sgpr_workgroup_id_x 1
  .amdhsa_float_denorm_mode_32 3
.end_amdhsa_kernel
"""
if __name__ == "__main__":
    out = sys.argv[1] if len(sys.argv) > 1 else f"cdna_kernels/{NAME}.s"
    open(out, "w").write(full_file())
    print("written", out)
```

```python
from asmlib import *
from layout import *
import struct, math

def fbits(x): return struct.unpack("<I", struct.pack("<f", x))[0]

M0_, S0_ = 0, 32
AQ = [64, 68]; AK = [72, 76]; AV = [80, 84]; PA = 64
KX, VX = 88, 96
PB = 104
SELT, SELR = 120, 124
IDX, SMW, PST, PLD, MST, MOWN = 128, 129, 130, 131, 132, 133
L16 = 15
MX = [None, 134, 135, 136]
SMR, PUB, WL = 137, 138, 139
SENT = 140
SRD = 4
sH, sW = 10, 11
sA, sB, sCc, sAM, sKV, sStep, sSpin, sA2, sMH = 12, 13, 14, 15, 16, 17, 18, 19, 20
sEx1 = 60
sM7 = 35
sBk1, sBk2 = 42, 56
sHW, sMP = 22, 23
sKF = 62
sExK, sKM = 34, 24
sExF, sFR, sPM = 46, 45, 48
sC = 26
SRDW = 28
sF = 32
sT = 36
sOne = 58
sRdy = 21
sTM = 72
LDS_SC = 8192
LDS_W = 16384
WPW = 36864

LDS_CH = [("Q", 2), ("Q", 3), ("K", 2), ("K", 6), ("V", 6), ("V", 7), ("O", 1, 1), ("O", 2, 1), ("O", 3, 1)]
ALL_CH = [(m, i) for m in "QKV" for i in range(8)] + [("O", j, i) for j in range(4) for i in range(2)]
REG_CH = [c for c in ALL_CH if c not in LDS_CH]
ORDER = REG_CH + LDS_CH
def reg_of(ch, t):
    n = REG_CH.index(ch)*2 + t
    if n < 32: return a_(8*n, 8), ("a", 8*n)
    return v(144 + 8*(n-32), 8), ("v", 144 + 8*(n-32))
WLB, WLC, KT = 141, 142, 143
sK6 = 63
SLOT = {("V", 6): (WL, 0), ("K", 6): (WL, 4096), ("K", 2): (WL, 32768), ("Q", 3): (WL, 36864), ("Q", 2): (WLB, 0), ("O", 1, 1): (WLB, 4096),
        ("V", 7): (WLB, 32768), ("O", 3, 1): (WLB, 36864), ("O", 2, 1): (WLC, 0)}

def sm(A, acc, afrag, b):
    A(f"v_smfmac_f32_16x16x64_bf16 {v(acc,4)}, {v(afrag,4)}, {b}, v{IDX}")

def emit_chain_init(A, dbg_team_off=DBG_TEAM, nzero=0, stamps=False, have_w=False, nt=1, bal=0, full=0, fn=14, rt=(0, 2)):
    sW13, sW12 = 33, 34
    ntf = " nt" if nt else ""
    if not have_w:
        A(f"""
        s_load_dwordx4 s[48:51], s[0:1], {KA['Wq']}
        s_load_dwordx4 s[52:55], s[0:1], {KA['Wv']}
        """)
    A(f"""
    v_lshrrev_b32 v1, 6, v0
    v_and_b32 v2, 63, v0
    v_readfirstlane_b32 s{sW}, v1
    v_and_b32 v3, 15, v2
    v_lshrrev_b32 v4, 4, v2
    s_mov_b32 s{SRDW+2}, {4*MB}
    s_mov_b32 s{SRDW+3}, 0x00020000
    v_lshrrev_b32 v5, 1, v4
    v_and_b32 v7, 1, v4
    v_lshl_add_u32 v6, v5, 3, v7
    v_lshlrev_b32 v6, 13, v6
    v_lshlrev_b32 v8, 2, v4
    v_xor_b32 v8, v8, v3
    v_lshl_add_u32 v6, v8, 4, v6
    s_lshl_b32 s{sT}, s{sH}, 8
    v_add_u32 v0, s{sT}, v6
    s_lshl_b32 s{sF}, s{sW}, 18
    s_lshl_b32 s{sW13}, s{sW}, 13
    s_lshl_b32 s{sW12}, s{sW}, 12
    s_waitcnt lgkmcnt(0)
    s_load_dwordx2 s[{SRD}:{SRD+1}], s[0:1], {KA['ws']}
    s_load_dwordx2 s[56:57], s[0:1], {KA['mem0']}
    """)
    srw = f"s[{SRDW}:{SRDW+3}]"; srd = f"s[{SRD}:{SRD+3}]"
    base = {"Q": 48, "K": 50, "V": 52, "O": 54}
    HELD = {("Q", 2): 8, ("Q", 3): 24, ("K", 2): 40, ("K", 6): 56, ("V", 6): 72, ("V", 7): 88, ("O", 3, 1): 104, ("O", 2, 1): 88, ("O", 1, 1): 24}
    STG = [(m, ii, hf) for m in "QKV" for ii in range(2) for hf in range(2)] + [("O", 0, 0), ("O", 0, 2), ("O", 1, 0)]
    NS = len(STG)
    cur = [None]; vm = []
    def VM(x, tag): A(x); vm.append(tag)
    def wait(tag): A(f"s_waitcnt vmcnt({len(vm) - 1 - max(i for i, t in enumerate(vm) if t == tag)})")
    def setm(m):
        if cur[0] != m:
            cur[0] = m
            A(f"s_mov_b32 s{SRDW}, s{base[m]}\ns_mov_b32 s{SRDW+1}, s{base[m]+1}")
    def ochunk(j, i, sreg, off, tag):
        setm("O")
        A(f"s_xor_b32 s{sT}, s{sW}, {j}\ns_lshl_b32 s{sT}, s{sT}, 15")
        for q in range(4):
            A(f"s_add_u32 m0, s{sreg}, {off + q*1024}\ns_add_u32 s{sT+1}, s{sT}, {q*8192 + i*128}")
            VM(f"buffer_load_dwordx4 v1, {srw}, s{sT+1} offen{ntf} lds", tag)
    def issue(n):
        st = STG[n]; buf = LDS_W + (n % 4)*32768
        if st[0] == "O":
            for jj in range(2): ochunk(st[2] + jj, st[1], sW13, buf + jj*4096, n)
        else:
            setm(st[0])
            for q in range(8):
                gb = q >> 1
                d = 256*st[1] + 128*st[2] + 16*(gb >> 1) + 4*(gb & 1) + 2*(q & 1)
                A(f"s_add_u32 m0, s{sW13}, {buf + q*1024}\ns_add_u32 s{sT+1}, s{sF}, {d*8192}")
                VM(f"buffer_load_dwordx4 v0, {srw}, s{sT+1} offen{ntf} lds", n)
    def dest(ch, t):
        if ch in HELD: return "v", HELD[ch] + 8*t
        return reg_of(ch, t)[1]
    def oread(ch, ad, off):
        for t in range(2):
            kind, r0 = dest(ch, t)
            for u in range(4):
                A(f"ds_read_b64_tr_b16 {R(kind, r0 + 2*u, 2)}, v{ad} offset:{off + (16*(u >> 1) + 2*(u & 1))*128 + 64*t}")
        A("s_waitcnt lgkmcnt(0)")
    def wr(ch):
        for k in range(4): A(f"ds_write_b128 v{SLOT[ch][0]}, {v(HELD[ch] + 4*k, 4)} offset:{SLOT[ch][1] + 1024*k}")
    for n in range(3): issue(n)
    A(f"""
    v_lshrrev_b32 v6, 3, v2
    v_lshlrev_b32 v6, 10, v6
    v_and_b32 v8, 7, v2
    v_lshl_add_u32 v6, v8, 4, v6
    s_lshl_b32 s{sT}, s{sH}, 17
    s_lshl_b32 s{sT+1}, s{sW}, 8
    s_add_u32 s{sT}, s{sT}, s{sT+1}
    v_add_u32 v1, s{sT}, v6
    """)
    ochunk(2, 1, sW12, 147456, "park"); ochunk(3, 1, sW12, 0, "park")
    A(f"""
    v_lshlrev_b32 v{L16}, 4, v2
    s_mov_b32 s{SRD+2}, {WS_SIZE}
    s_mov_b32 s{SRD+3}, 0x00020000
    """)
    A(f"""
    v_mov_b32 v5, 0x4444
    v_mov_b32 v6, 0xeeee
    v_cmp_gt_u32 vcc, 8, v3
    s_nop 1
    v_cndmask_b32 v{IDX}, v6, v5, vcc
    """)
    A(f"""
    v_lshrrev_b32 v5, 1, v4
    v_lshlrev_b32 v5, 2, v5
    v_lshrrev_b32 v6, 3, v3
    v_lshl_add_u32 v5, v6, 1, v5
    v_and_b32 v6, 1, v4
    v_add_u32 v5, v5, v6
    s_lshl_b32 s{sT}, s{sW}, 3
    v_add_u32 v5, s{sT}, v5
    v_lshlrev_b32 v5, 11, v5
    v_and_b32 v8, 7, v3
    v_lshl_add_u32 v5, v8, 3, v5
    s_lshl_b32 s{sT+1}, s{sH}, 6
    v_add_u32 v{PST}, s{sT+1}, v5
    """)
    A(f"""
    s_lshl_b32 s{sT}, s{sW}, 5
    s_add_u32 s{sT}, s{sT}, s{sH}
    s_lshl_b32 s{sT+2}, s{sT}, 11
    v_add_u32 v{PLD}, s{sT+2}, v{L16}
    s_lshl_b32 s{sT}, s{sT}, 6
    s_add_u32 s{sT}, s{sT}, {PM_OFF}
    v_and_b32 v5, 3, v3
    v_lshlrev_b32 v5, 2, v5
    v_lshl_add_u32 v5, v4, 4, v5
    v_add_u32 v{MST}, s{sT}, v5
    v_lshrrev_b32 v5, 2, v3
    v_lshl_add_u32 v{MST}, v5, 29, v{MST}
    """)
    A(f"""
    s_lshl_b32 s{sT}, s{sW}, 11
    v_add_u32 v{MOWN}, s{sT}, v{L16}
    v_xor_b32 v{MX[1]}, 2048, v{MOWN}
    v_xor_b32 v{MX[2]}, 4096, v{MOWN}
    v_xor_b32 v{MX[3]}, 6144, v{MOWN}
    """)
    A(f"""
    v_and_b32 v5, 31, v2
    v_lshlrev_b32 v{SMR}, 4, v5
    v_lshrrev_b32 v7, 3, v3
    s_lshr_b32 s{sT}, s{sW}, 1
    s_lshl_b32 s{sT}, s{sT}, 11
    s_and_b32 s{sT+1}, s{sW}, 1
    s_lshl_b32 s{sT+1}, s{sT+1}, 3
    s_add_u32 s{sT}, s{sT}, s{sT+1}
    v_mov_b32 v{PUB}, 1
    v_xor_b32 v5, 32, v2
    v_lshlrev_b32 v5, 4, v5
    v_add_u32 v{SMW}, s{sT}, v5
    s_add_u32 s{sT+2}, s{sW13}, {LDS_W}
    v_add_u32 v{WL}, s{sT+2}, v{L16}
    v_mov_b32 v{SENT}, -1
    """)
    A(f"""
    v_mov_b32 v6, 0x3f80
    v_and_b32 v5, 4, v3
    v_lshlrev_b32 v5, 2, v5
    v_lshlrev_b32 v9, v5, v6
    v_and_b32 v5, 1, v8
    v_lshlrev_b32 v5, 4, v5
    v_lshlrev_b32 v5, v5, v6
    v_and_b32 v6, 3, v3
    v_lshl_add_u32 v6, v6, 1, v7
    """)
    for r in range(4):
        A(f"v_cmp_eq_u32 vcc, {r}, v6\ns_nop 1\nv_cndmask_b32 v{SELR+r}, 0, v9, vcc")
    A(f"""
    v_lshrrev_b32 v6, 1, v3
    v_and_b32 v6, 1, v6
    v_lshl_add_u32 v6, v7, 1, v6
    v_lshrrev_b32 v9, 2, v3
    v_xor_b32 v9, v9, v4
    v_and_b32 v9, 1, v9
    v_lshl_add_u32 v6, v9, 3, v6
    """)
    for r in range(4):
        A(f"v_cmp_eq_u32 vcc, {r}, v6\ns_nop 1\nv_cndmask_b32 v{SELT+r}, 0, v5, vcc")
    A(f"""
    s_mov_b32 s{sEx1}, 0x000f001f
    s_mov_b32 s{sEx1+1}, 0x000f000f
    s_mov_b32 s{sM7}, 0xffffff7f
    s_mul_i32 s{sK6}, s{sW}, 6144
    s_add_u32 s{sHW}, s{sH}, s{sW}
    s_mov_b32 s{sMP}, {WS_MH - PM_OFF - MHS}
    s_mov_b32 s{sAM}, {WS_P + PM_OFF}
    s_mov_b32 s{sC}, {fbits(128**-0.5 * math.log2(math.e))}
    s_mov_b32 s{sOne}, 0x3f803f80
    s_mov_b32 s{sOne+1}, 0x3e803e80
    s_mov_b32 s{sA}, {WS_P}
    s_mov_b32 s{sB}, {WS_P + RS}
    s_mov_b32 s{sCc}, {WS_P + 2*RS}
    s_mov_b32 s{sMH}, {WS_MH - PM_OFF}
    s_lshl_b32 s{sKV}, s{sH}, 3
    s_add_u32 s{sKV}, s{sKV}, s{sW}
    s_lshl_b32 s{sKV}, s{sKV}, 11
    s_mov_b32 s{sStep}, 0
    s_mov_b32 s{sSpin}, {SPIN}
    """)
    A(f"""
    v_lshrrev_b32 v5, 1, v4
    v_and_b32 v7, 1, v4
    v_lshrrev_b32 v9, 2, v3
    v_and_b32 v6, 3, v3
    v_lshl_add_u32 v12, v4, 3, v9
    v_lshlrev_b32 v12, 8, v12
    v_xor_b32 v10, s{sW}, v9
    v_lshl_add_u32 v10, v10, 2, v6
    v_lshl_add_u32 v12, v10, 4, v12
    v_lshrrev_b32 v8, 3, v3
    v_and_b32 v9, 1, v9
    v_lshlrev_b32 v13, 3, v5
    v_lshl_add_u32 v13, v7, 2, v13
    v_add_u32 v13, v13, v9
    v_lshlrev_b32 v13, 7, v13
    v_lshl_add_u32 v13, v8, 5, v13
    v_lshl_add_u32 v13, v6, 3, v13
    v_and_b32 v14, 7, v3
    v_lshlrev_b32 v14, 10, v14
    v_lshl_add_u32 v14, v5, 8, v14
    v_lshl_add_u32 v14, v7, 5, v14
    v_lshl_add_u32 v14, v8, 4, v14
    s_lshr_b32 s{sT}, s{sF}, 12
    v_add_u32 v4, s{sT}, v14
    v_mul_u32_u24 v5, {MHS}, v2
    v_mov_b32 v2, v12
    v_mov_b32 v3, v13
    s_waitcnt lgkmcnt(0)
    """)
    A(f"v_mov_b64 v[8:9], -1\nv_mov_b64 v[10:11], -1")
    for so in (sA, sB, sCc):
        VM(f"buffer_store_dwordx4 v[8:11], v{PLD}, {srd}, s{so} offen", "fill")
        VM(f"buffer_store_dwordx4 v[8:11], v{PLD}, {srd}, s{so} offen offset:1024", "fill")
        VM(f"buffer_store_dword v{SENT}, v{MST}, {srd}, s{so} offen", "fill")
    for q in range(Q0, 64):
        A(f"s_mov_b32 s{sT}, {WS_MH - PM_OFF + q*MHS}")
        VM(f"buffer_store_dword v{SENT}, v{MST}, {srd}, s{sT} offen sc1", "fill")
    A(f"""
    s_cmp_lg_u32 s{sHW}, 0
    s_cbranch_scc1 Lnofl
    s_mov_b32 s{sT}, {WS_MH + MHS + 8192}
    buffer_store_dword v{SENT}, v5, {srd}, s{sT} offen sc1
    s_mov_b64 exec, 16
    v_mov_b32 v{MST}, {PM_OFF + 8192}
    s_mov_b64 exec, -1
    """)
    A.label("Lnofl")
    A(f"""
    s_sub_u32 s{sT}, {147456 - LDS_W}, s{sW12}
    v_add_u32 v{WLB}, 65536, v{WL}
    v_add_u32 v{WLC}, s{sT}, v{WL}
    s_lshl_b32 s{sKF}, s{sH}, 7
    s_add_u32 s{sKF}, s{sKF}, {WS_KVF}
    s_mov_b32 s{sRdy}, 1
    """)
    kvl = f"buffer_load_dword v0, v{SMR}, {srd}, s{sKF} offen sc1"
    for n in range(NS):
        st = STG[n]; buf = LDS_W + (n % 4)*32768
        wait(n)
        if n <= 12: A("s_barrier")
        if stamps: A(f"s_memrealtime s[84:85]\ns_waitcnt lgkmcnt(0)\nv_writelane_b32 v7, s84, {n}")
        if n == 3:
            A(f"""
            s_cmp_lg_u32 s{sW}, 0
            s_cbranch_scc1 Lann
            v_mov_b32 v5, {dbg_team_off}
            s_mov_b64 exec, 1
            global_atomic_add v5, v{PUB}, s[8:9]
            s_mov_b64 exec, -1
            """)
            A.label("Lann")
        if n == 9:
            A(f"v_mov_b32 v5, {dbg_team_off}")
            VM("global_load_dword v0, v5, s[8:9] sc1", "team"); VM(f"global_load_dword v{SENT+3}, v5, s[8:9] offset:8 sc1", "team")
        if bal and n + 3 < NS and n <= bal[1]:
            ix = [i for i, t in enumerate(vm) if t in (n + 1, n + 2)][bal[0] - 1]
            A(f"s_and_b32 s{sT}, s{sH}, 3\ns_cmp_eq_u32 s{sT}, 1\ns_cbranch_scc1 Lbal{n}\ns_waitcnt vmcnt({len(vm) - 1 - ix})")
            A.label(f"Lbal{n}")
        if n + 3 < NS: issue(n + 3)
        if n == 3:
            A(f"s_add_u32 s{sT}, s{sW12}, 147456\nv_add_u32 v5, s{sT}, v3\nv_add_u32 v6, s{sW12}, v3")
            oread(("O", 2, 1), 5, 0); wr(("O", 2, 1)); oread(("O", 3, 1), 6, 0)
        if n == 12:
            wr(("V", 7)); wr(("O", 3, 1))
            A(f"v_mov_b32 v5, {dbg_team_off}")
            A.label("Lteam")
            A(f"""
            v_readfirstlane_b32 s{sT}, v0
            v_readfirstlane_b32 s{sT+1}, v{SENT+3}
            s_add_u32 s{sT}, s{sT}, s{sT+1}
            s_cmp_ge_u32 s{sT}, {32 + nzero}
            s_cbranch_scc1 Lteamx
            global_load_dword v0, v5, s[8:9] sc1
            global_load_dword v{SENT+3}, v5, s[8:9] offset:8 sc1
            s_sub_u32 s{sSpin}, s{sSpin}, 1
            s_waitcnt vmcnt(0)
            s_cbranch_scc0 Lteam
            s_mov_b32 s{sSpin}, 0
            """)
            A.label("Lteamx")
            A("s_waitcnt lgkmcnt(0)")
            VM(f"global_load_dwordx4 {v(PB,4)}, v4, s[56:57]", "m0"); VM(f"global_load_dwordx4 {v(PB+4,4)}, v4, s[56:57] offset:512", "m0")
        if n == fn:
            A(f"""
            v_mbcnt_lo_u32_b32 v1, -1, 0
            v_mbcnt_hi_u32_b32 v1, -1, v1
            v_lshrrev_b32 v2, 4, v1
            v_min_u32 v2, 2, v2
            v_mul_u32_u24 v2, {RS}, v2
            v_and_b32 v1, 15, v1
            v_lshl_add_u32 v1, v1, 7, v2
            s_lshl_b32 s{sT}, s{sW}, 11
            s_add_u32 s{sT}, s{sT}, {WS_P + PM_OFF}
            """)
            VM(f"buffer_load_dword v{KX}, v1, {srd}, s{sT} offen sc1", "rt")
            for x in rt:
                A(f"""
                s_xor_b32 s{sT}, s{sH}, {x}
                s_lshl_b32 s{sT+1}, s{sW}, 5
                s_add_u32 s{sT}, s{sT}, s{sT+1}
                s_lshl_b32 s{sT}, s{sT}, 11
                s_add_u32 s{sT}, s{sT}, {WS_P}
                """)
                VM(f"buffer_load_dword v{KX}, v1, {srd}, s{sT} offen sc1", "rt")
        if n == 13 and full:
            A(f"s_mov_b64 exec, {NWM}"); VM(kvl, "kv"); A("s_mov_b64 exec, -1")
        if st[0] == "O":
            A(f"s_add_u32 s{sT}, s{sW13}, {buf}\nv_add_u32 v5, s{sT}, v3")
            if n >= 13: A("s_waitcnt lgkmcnt(0)")
            for jj in range(2): oread(("O", st[2] + jj, st[1]), 5, jj*4096)
            for ch in {12: [("V", 6), ("K", 6)], 13: [("K", 2), ("Q", 3)], 14: [("Q", 2), ("O", 1, 1)]}[n]: wr(ch)
        else:
            for j in range(4):
                A(f"""
                s_xor_b32 s{sT}, s{sW}, {j}
                s_lshl_b32 s{sT}, s{sT}, 13
                s_add_u32 s{sT}, s{sT}, {buf}
                v_add_u32 v{5 + (j & 1)}, s{sT}, v2
                """)
                ch = (st[0], 2*j + st[1])
                for t in range(2):
                    kind, r0 = dest(ch, t)
                    for u in range(2):
                        A(f"ds_read_b64_tr_b16 {R(kind, r0 + 4*st[2] + 2*u, 2)}, v{5 + (j & 1)} offset:{u*1024 + 8*t}")
                if j == 1: A("s_waitcnt lgkmcnt(0)")
            A("s_waitcnt lgkmcnt(0)")
    if stamps:
        A(f"""
        s_memrealtime s[84:85]
        s_waitcnt lgkmcnt(0)
        v_writelane_b32 v7, s84, 15
        s_lshl_b32 s84, s2, 8
        s_add_u32 s84, s84, {WS_DBG + 65536}
        v_mbcnt_lo_u32_b32 v5, -1, 0
        v_mbcnt_hi_u32_b32 v5, -1, v5
        v_lshlrev_b32 v5, 2, v5
        buffer_store_dword v7, v5, {srd}, s84 offen
        """)
    A(f"""
    s_add_u32 s{SRDW}, s{SRD}, s{sKF}
    s_addc_u32 s{SRDW+1}, s{SRD+1}, 0
    s_cmp_eq_u32 s{sW}, 0
    s_cselect_b32 s{SRDW+2}, {16*NW}, 0
    """)
    if stamps: vm.append("st")
    wait("kv" if full else "m0")
    if full:
        A(f"s_mov_b64 exec, {NWM}")
        A.label("LkvA")
        A(f"""
        v_cmp_ge_u32 vcc, s{sRdy}, v0
        s_cbranch_vccz LkvAx
        {kvl}
        s_sub_u32 s{sSpin}, s{sSpin}, 1
        s_waitcnt vmcnt(0)
        s_cbranch_scc0 LkvA
        s_mov_b32 s{sSpin}, 0
        """)
        A.label("LkvAx")
        A("s_mov_b64 exec, -1")
    for k in range(0, 8, 2): A(f"v_mov_b64 {v(k,2)}, {v(PB+k,2)}")
    A("s_waitcnt lgkmcnt(0)")


def ldsw_reads(ch, dst):
    return [f"ds_read_b128 {v(dst + 4*k, 4)}, v{SLOT[ch][0]} offset:{SLOT[ch][1] + 1024*k}" for k in range(4)]

MARKS = []
STREAM = {("Q", 2): S0_, ("Q", 3): S0_ + 16, ("K", 2): PB, ("K", 6): PB, ("V", 6): S0_, ("V", 7): S0_ + 16,
          ("O", 1, 1): S0_, ("O", 2, 1): S0_ + 16, ("O", 3, 1): M0_}

def emit_chain_loop(A, nsteps=63, diag=False, nvown=4, barpos=6, nopub=0, kvfix=0, trace=None, timing=0, full=0, steplog=0, tstep=31,
                    d0=18, d1=37, d2=51, d3=54, g0=36, g1=22, g2=15, g3=23, e0=25, e1=36, e2=27, e3=23, h0=36, h1=42, h2=40, h3=33,
                    j0=7, j1=7, j2=0, j3=11, i0=2, i1=8, i2=1, i3=11, nsp=1, bar=1, vp=(0, 2), mpos=16, zpos=18, mex=0, pex=1, cpos=0, rwid=1, rp=(20, 22),
                    fine=0, kpos=9, kr=2, rgap=16, srn=1, srs=2, nwv=0, npb=4, kp=(0, 2), vs=7, psh=1, zskip=0, zpre=1, zpost=0, zgap=0, nob=1, inc=1, ndef=3, wslots=(2, 3, 4, 5, 6, 7, 9), w6=0, kvt=None, pad=None, sa=1, sds=(1, 2, 5, 6, 10, 11, 12, 13, 14, 15, 17, 19), scv=(19, 21, 23, 23, 23, 23), sg0=0, svp=(0, 4), ssl=(3, 7, 21), nb1=0, nb2=0, dl=1):
    if sa: vp = svp
    px, k2, early3 = None, 2, 0
    assert nvown == 4
    npre = 0
    srd = f"s[{SRD}:{SRD+3}]"
    def stamp(k):
        MARKS.append(k)
        if diag and diag[0] == k: A(f"s_memtime s[{sTM}:{sTM+1}]")
        if diag and diag[1] == k: A(f"s_memtime s[{sTM+2}:{sTM+3}]")
        if trace and k in trace:
            r = 64 + 2*trace.index(k)
            A(f"s_memtime s[{r}:{r+1}]")
    def lg(n): A(f"s_waitcnt lgkmcnt({n})")
    del MARKS[:]
    def rd(ch):
        if sa and ch == ("K", 2): return ldsw_reads(("K", 2), PB)[:2] + ldsw_reads(("K", 6), PB + 8)[:2]
        if sa and ch == ("K", 6): return ldsw_reads(("K", 2), PB - 8)[2:] + ldsw_reads(("K", 6), PB)[2:]
        return ldsw_reads(ch, STREAM[ch])
    cv = lambda d, a, b: A(f"v_cvt_pk_bf16_f32 v{d}, v{a}, v{b}")
    pk = lambda op, d, a, b: A(f"v_pk_{op}_f32 {v(d,2)}, {v(a,2)}, {v(b,2)}")
    def junk():
        for x in rd(("Q", 2)) + rd(("Q", 3)) + rd(("K", 2)): A(x)
        for k in range(0, 24, 2): A(f"v_mov_b64 {v(PA+k,2)}, 0")
    def jz_():
        for k in range(0, 24, 2): A(f"v_mov_b64 {v(PA+k,2)}, 0")
    def rladder(xs, to):
        for k in range(3):
            if any(xs[k:]):
                A(f"s_cmp_eq_u32 s{sW}, {3 - k}\ns_cbranch_scc1 {to}")
                A.nop(xs[k])
        A.label(to)
    def rotate():
        A(f"""
        s_mov_b32 s{sT}, s{sA}
        s_mov_b32 s{sA}, s{sB}
        s_mov_b32 s{sB}, s{sCc}
        s_mov_b32 s{sCc}, s{sT}
        """)
    def mload(r):
        A(f"""
        buffer_load_dwordx4 {v(r,4)}, v{MOWN}, {srd}, s{sAM} offen sc1
        buffer_load_dwordx4 {v(r+4,4)}, v{MOWN}, {srd}, s{sAM} offen offset:1024 sc1
        """)
    def mcheck(r, t0, t1):
        A(f"""
        v_max3_u32 v{t0}, v{r}, v{r+1}, v{r+2}
        v_max3_u32 v{t1}, v{r+3}, v{r+4}, v{r+5}
        v_max3_u32 v{t0}, v{t0}, v{r+6}, v{r+7}
        v_max_u32 v{t0}, v{t0}, v{t1}
        v_cmp_eq_u32 vcc, -1, v{t0}
        """)
    def kvpoll(tag, ret):
        A.label(f"Lkv{tag}")
        A(f"""
        s_mov_b64 exec, {NWM}
        buffer_load_dword v16, v{SMR}, s[{SRDW}:{SRDW+3}], 0 offen sc1
        s_waitcnt vmcnt(0)
        v_cmp_ge_u32 vcc, s{sRdy}, v16
        s_mov_b64 exec, -1
        s_cbranch_vccz {ret}
        s_sleep 1
        s_sub_u32 s{sSpin}, s{sSpin}, 1
        s_cbranch_scc0 Lkv{tag}
        s_mov_b32 s{sSpin}, 0
        """)
    def pub_all():
        A(f"""
        s_add_u32 s{sT}, s{sMH}, {PM_OFF}
        buffer_store_dwordx4 {v(0,4)}, v{MOWN}, {srd}, s{sT} offen sc1
        buffer_store_dwordx4 {v(4,4)}, v{MOWN}, {srd}, s{sT} offen offset:1024 sc1
        """)
    if diag: A("s_mov_b32 s70, 0")
    if steplog: A("s_memrealtime s[86:87]")
    A(f"""
    s_cmp_lg_u32 s{sH}, 0
    s_cbranch_scc1 Lnopub
    """)
    pub_all()
    A.label("Lnopub")
    A(f"""
    buffer_load_dwordx4 {v(KX,4)}, v{MOWN}, {srd}, s{sKV} offen sc1
    buffer_load_dwordx4 {v(KX+4,4)}, v{MOWN}, {srd}, s{sKV} offen offset:1024 sc1
    """)
    junk()
    assert psh and nsp == 1
    A(f"s_nop 0\nv_smfmac_f32_16x16x64_bf16 {v(AQ[0],4)}, {v(0,4)}, {reg_of(('Q', 0), 0)[0]}, v{IDX}\ns_branch Lp2cont")

    A(".p2align 6" if pad is None else f".p2align 11\n.fill {pad//4}, 4, 0xbf800000")
    A.label("Lp2a")
    A(f"s_waitcnt vmcnt({2*k2 - 1})")
    if trace: stamp("p2_w")
    A.label("Lstep")
    A(f"""
    v_max3_u32 v8, v0, v1, v2
    v_max_u32 v8, v8, v3
    s_waitcnt vmcnt({2*k2 - 2})
    v_max3_u32 v8, v8, v4, v5
    v_max3_u32 v8, v8, v6, v7
    v_cmp_le_u32 vcc, 0xffc00000, v8
    """)
    if nsp == 0: A("s_cbranch_vccnz Lp2r\nLp2cont:")
    stamp("m_in")
    def B(ch, t):
        if sa and ch in (("K", 2), ("K", 6)): return v(PB + 2*(ch[1] - 2), 8)
        if ch in STREAM: return v(STREAM[ch] + 8*t, 8)
        return reg_of(ch, t)[0]
    def QK(i): return [(AQ[0], 4*i, B(("Q", i), 0)), (AQ[1], 4*i, B(("Q", i), 1)), (AK[0], 4*i, B(("K", i), 0)), (AK[1], 4*i, B(("K", i), 1))]
    def VV(i): return [(AV[0], 4*i, B(("V", i), 0)), (AV[1], 4*i, B(("V", i), 1))]
    vown = VV(0) + VV(1)
    seq = QK(0) + QK(1) + vown[:nvown]
    if sa: seq = [seq[k] for k in (0, 4, 1, 5, 3, 7, 8, 10, 9, 11, 2, 6)]
    mreads = [f"ds_read_b128 {v(8*j + 4*ii, 4)}, v{MX[j]} offset:{1024*ii}" for j in (1, 2, 3) for ii in range(2)]
    fill = {k: [] for k in range(40)}
    if nsp: fill[nsp - 1] += ["s_cbranch_vccnz Lp2r", "Lp2cont:"]
    fill[max(nsp - 1, 0)] += [f"ds_write_b128 v{MOWN}, {v(0,4)}"]
    fill[max(nsp, 1)] += [f"ds_write_b128 v{MOWN}, {v(4,4)} offset:1024"]
    if not dl: fill[3] += [f"s_cmp_ge_u32 s{sStep}, {nsteps}", "s_cbranch_scc1 Lexit"]
    fill[barpos] += ["s_waitcnt lgkmcnt(0)", "s_barrier", mreads[0]]
    kstep = 0 if kvfix else 32*4*4096
    vl = [f"buffer_load_dwordx4 {v(VX,4)}, v{MOWN}, {srd}, s{sKV} offen offset:2048 sc1",
          f"buffer_load_dwordx4 {v(VX+4,4)}, v{MOWN}, {srd}, s{sKV} offen offset:3072 sc1", f"s_add_u32 s{sKV}, s{sKV}, {kstep}"]
    nA = len(seq)
    fb = {(i, k): [] for i in range(2, 8) for k in range(4)}
    FB = lambda x: fb[2 + x//4, x % 4] if x >= 0 else fill[nA + x]
    ex = lambda x, m: [f"s_mov_b64 exec, {m}", x, "s_mov_b64 exec, -1"] if mex else [x]
    FB(vp[0]).append(vl[0]); FB(vp[1]).extend(vl[1:])
    if not nopub: FB(mpos).extend(ex(f"buffer_store_dword v{PUB}, v{MST}, {srd}, s{sMP} offen sc1", f"s[{sEx1}:{sEx1+1}]"))
    if full:
        FB(kpos).extend(ex(f"buffer_load_dword v7, v{SMR}, s[{SRDW}:{SRDW+3}], 0 offen sc1", str(NWM)))
        FB(ssl[0] if sa else 19).append(f"s_add_u32 s{sRdy}, s{sRdy}, 1")
        assert kpos >= 0
    FB(zpos).extend(ex(f"buffer_store_dword v{SENT}, v{MST}, {srd}, s{sB} offen", f"s[{sEx1}:{sEx1+1}]"))
    assert mpos >= 0
    if kvt is not None:
        assert kvt > vp[1] + 1
        FB(vp[1] + 1).extend([f"s_sub_u32 s{sT+3}, s{sKV}, s{sK6}", f"v_lshlrev_b32 v{KT}, 2, v{MOWN}"])
        FB(kvt).append(f"buffer_load_dword v{KT}, v{KT}, {srd}, s{sT+3} offen sc1")
    lastld = max([vp[1]] + ([kpos] if full else []) + (list(pp) if px is not None else []) + [-99])
    nyoung = 2 + sum(x > lastld for x in (zpos, rp[0], rp[1]) + (() if nopub else (mpos,)) + (() if kvt is None else (kvt,)))
    for k in range(1, 6): fill[min(barpos + k, nA - 1)] += [mreads[k]]
    if px is not None:
        fill[5] += [f"s_add_u32 s{sT}, s{sStep}, 1", f"v_mov_b32 v31, s{sT}"]
        fill[px] = [f"s_mov_b64 exec, s[{sExF}:{sExF+1}]", f"buffer_store_dword v31, v{MOWN}, {srd}, s{sFW} offen", "s_mov_b64 exec, -1"] + fill[px]
    for k, x in enumerate(seq):
        if fine and k: stamp(f"a{k}")
        sm(A, *x)
        for y in fill[k]: A(y)
    if not (trace and trace[0] == "A_end"): stamp("A_end")
    if trace: A(f"s_cmp_eq_u32 s{sStep}, {tstep}\ns_cbranch_scc1 Lexit2")
    if trace and trace[0] == "A_end": stamp("A_end")
    strm = {3: rd(("K", 6)), 4: rd(("V", 6)), 5: rd(("V", 7))}
    waits = {2: 5, 3: 4, 4: 7, 5: 10, 6: 8}
    if sa:
        st = strm[3] + strm[4][:2] + strm[5][:2] + strm[4][2:] + strm[5][2:]
        for x, y in zip(sds, st): FB(x).append(y)
        cvs = [(PB+2, AK[0]), (PB+3, AK[0]+2), (PB+0, AQ[0]), (PB+1, AQ[0]+2), (PB+4, AQ[1]), (PB+5, AQ[1]+2)]
        for x, (d, a) in zip(scv, cvs): FB(x).append(f"v_cvt_pk_bf16_f32 v{d}, v{a}, v{a+1}")
    else:
        for i in strm:
            for k in range(4): fb[i, k] += [strm[i][k]]
    fb[6, 2] += [f"s_add_u32 s{sAM}, s{sA}, {PM_OFF}"]
    if sa: FB(ssl[2])[:0] = [f"s_add_u32 s{sMH}, s{sMH}, {MHS}", f"s_mov_b32 s{sMP}, s{sMH}"]; assert ssl[2] > mpos
    else: FB(max(mpos + 1, 1)).extend([f"s_add_u32 s{sMH}, s{sMH}, {MHS}", f"s_mov_b32 s{sMP}, s{sMH}"])
    rw = f"dword v{SENT}"
    FB(rp[0]).append(f"buffer_store_{rw}, v{PLD}, {srd}, s{sCc} offen")
    FB(rp[1]).append(f"buffer_store_{rw}, v{PLD}, {srd}, s{sCc} offen offset:1024")
    FB(ssl[1] if sa else 23).append(f"s_add_u32 s{sStep}, s{sStep}, 1")
    if px is not None:
        for q, x in enumerate(pp):
            assert x < 16
            fb[2 + x//4, x % 4] = [f"buffer_load_dword v{q}, v{SMR}, {srd}, s{sFR} offen sc1"] + fb[2 + x//4, x % 4]
    if psh:
        FB(9).append(f"s_waitcnt vmcnt({sum(x <= 9 for x in list(vp) + list(rp) + [zpos] + ([kpos] if full else []) + ([] if nopub else [mpos]) + ([] if kvt is None else [kvt]))})")
        for k, x in enumerate([f"v_lshrrev_b32 v4, 1, v{MOWN}", "v_and_b32 v4, 128, v4", f"v_xor_b32 v0, v4, v{MOWN}"] +
                              [f"v_and_or_b32 v{j}, v{MX[j]}, s{sM7}, v4" for j in (1, 2, 3)]): FB(10 + k).append(x)
    if sa:
        for x in range(24):
            i = 2 + x % 6
            if x < 6: lg(5 - x + sum(y < x for y in sds))
            if x == 18: lg(sum(y < x for y in sds) - 4)
            if x == 0: stamp("B_start")
            if fine and x % 2 == 0: stamp(f"b{2 + x//4}{x % 4}")
            sm(A, *QK(i)[(2, 0, 1, 3)[x//6]])
            for y in FB(x): A(y)
    for i in range(2, 8) if not sa else ():
        if i in waits: A(f"s_waitcnt lgkmcnt({waits[i]})")
        if i == 2: stamp("B_start")
        for k, x in enumerate(QK(i)):
            if fine and k % 2 == 0: stamp(f"b{i}{k}")
            sm(A, *x)
            for y in fb[i, k]: A(y)
    stamp("QK_end")
    vq = VV(6) + VV(7) + VV(4) + VV(5) + VV(2) + VV(3) + vown[nvown:]
    if sa: vq = [vq[k] for k in (1, 3, 0, 2, 4, 6, 8, 10, 5, 7, 9, 11)]
    def vf(*after):
        sm(A, *vq.pop(0))
        for y in after: A(y)
    T = PB + 8
    if sa:
        A(f"v_mfma_f32_16x16x32_bf16 {v(PA,4)}, {v(PB,4)}, {v(SELT,4)}, 0")
        A.nop(sg0)
        cv(PB+6, AK[1], AK[1]+1); cv(PB+7, AK[1]+2, AK[1]+3)
        A("s_waitcnt lgkmcnt(0)\ns_nop 0")
        A(f"v_mfma_f32_16x16x32_bf16 {v(PA+4,4)}, {v(PB+4,4)}, {v(SELT,4)}, 0")
        vf()
        stamp("T_mfma")
        cv(T, PA, PA+1); cv(T+1, PA+2, PA+3); cv(T+2, PA+4, PA+5); cv(T+3, PA+6, PA+7)
    else:
        cv(PB+0, AQ[0], AQ[0]+1); cv(PB+1, AQ[0]+2, AQ[0]+3); cv(PB+4, AQ[1], AQ[1]+1); cv(PB+5, AQ[1]+2, AQ[1]+3)
        cv(PB+2, AK[0], AK[0]+1); cv(PB+3, AK[0]+2, AK[0]+3); cv(PB+6, AK[1], AK[1]+1); cv(PB+7, AK[1]+2, AK[1]+3)
        A(f"v_mfma_f32_16x16x32_bf16 {v(PA,4)}, {v(PB,4)}, {v(SELT,4)}, 0")
        A("s_waitcnt lgkmcnt(0)")
        A(f"v_mfma_f32_16x16x32_bf16 {v(PA+4,4)}, {v(PB+4,4)}, {v(SELT,4)}, 0")
        vf()
        T = PB + 8
        stamp("T_mfma")
        cv(T, PA, PA+1); cv(T+1, PA+2, PA+3); cv(T+2, PA+4, PA+5); cv(T+3, PA+6, PA+7)
    A.nop(2)
    wo = rd(("O", 1, 1))[:2] + rd(("O", 2, 1))[:2] + rd(("O", 1, 1))[2:] + rd(("O", 2, 1))[2:]
    nw = 0
    def W():
        nonlocal nw
        nw += 1
        return wo[nw - 1] if nw <= 8 - ndef else ""
    A(f"v_mfma_f32_16x16x32_bf16 {v(PA,4)}, {v(KX,4)}, {v(T,4)}, 0")
    if npre >= 1: A(W())
    A(f"v_mfma_f32_16x16x32_bf16 {v(PA+4,4)}, {v(KX+4,4)}, {v(T,4)}, 0")
    if npre >= 2: A(W())
    A(f"v_mfma_f32_16x16x32_bf16 {v(PA+8,4)}, {v(T,4)}, {v(T,4)}, 0")
    stamp("S_mfma")
    kl = [f"buffer_load_dwordx4 {v(KX,4)}, v{MOWN}, {srd}, s{sKV} offen sc1", f"buffer_load_dwordx4 {v(KX+4,4)}, v{MOWN}, {srd}, s{sKV} offen offset:1024 sc1"]
    if vs & 1: vf()
    else: A.nop(4)
    for g in range(4): A(f"v_mov_b32_dpp v{PA+g}, v{PA+4+g} row_ror:8 row_mask:0xf bank_mask:0xc")
    if vs & 2: vf()
    A(f"ds_write_b128 v{MOWN}, {v(PA,4)} offset:{LDS_SC}")
    for g in range(2): A(f"v_mov_b32_dpp v{PA+8+g}, v{PA+10+g} row_ror:8 row_mask:0xf bank_mask:0xc")
    if vs & 4: vf()
    A(f"ds_write_b64 v{SMW}, {v(PA+8,2)} offset:{LDS_SC+1024}")
    stamp("S_written")
    n0 = nw
    zs = [24, 26, 28, 30, 16, 18, 20, 22]
    def Z():
        done = 16 - nvown - len(vq)
        need = {24: 4, 26: 4, 28: 5, 30: 5, 16: 10, 18: 10, 20: 11, 22: 11} if sa else {24: 3, 26: 3, 28: 5, 30: 5, 16: 7, 18: 7, 20: 9, 22: 9}
        if zs and done >= need[zs[0]]: return f"v_mov_b64 {v(zs.pop(0),2)}, 0"
        return ""
    for k in range(npb):
        vf(*[kl[q] for q in range(2) if kp[q] == k])
        if zpre and k not in kp and k < npb - 1: A(Z())
    stamp("preB2")
    lg(nw - n0)
    A("s_barrier")
    stamp("B2")
    xr = [f"ds_read_b128 {v(PA+4*j,4)}, v{MX[j]} offset:{LDS_SC}" for j in (1, 2, 3)]
    mr = [f"ds_read_b128 {v(PB+4*pr,4)}, v{SMR} offset:{LDS_SC+2048*pr+1024}" for pr in range(2)]
    WA = [16, 20, 24, 28]
    sr = [xr[0], xr[1], xr[2], mr[0], mr[1]]
    for x in sr[:srn]: A(x)
    sr = sr[srn:]
    n0 = nw
    nz = 0
    while vq:
        nz += 1
        if sr: vf(*sr[:srs]); sr = sr[srs:]
        elif len(vq) <= nwv: vf(W())
        else: vf()
        if nz > zskip: A(Z())
    for k in range(zpost): A(Z())
    stamp("V_end")
    nl = nw - n0
    if inc == 0:
        lg(nl)
        stamp("S_read")
        pk("add", PA, PA, PA+4); pk("add", PA+2, PA+2, PA+6); pk("add", PB, PB, PB+2)
        pk("add", PA+8, PA+8, PA+12); pk("add", PA+10, PA+10, PA+14); pk("add", PB+4, PB+4, PB+6)
        pk("add", PA, PA, PA+8); pk("add", PA+2, PA+2, PA+10); pk("add", PB, PB, PB+4)
    elif inc == 1:
        lg(nl + 2)
        stamp("S_read")
        pk("add", PA, PA, PA+4); pk("add", PA+2, PA+2, PA+6)
        pk("add", PA+8, PA+8, PA+12); pk("add", PA+10, PA+10, PA+14)
        pk("add", PA, PA, PA+8); pk("add", PA+2, PA+2, PA+10)
        lg(nl)
        pk("add", PB, PB, PB+2); pk("add", PB+4, PB+4, PB+6); pk("add", PB, PB, PB+4)
    else:
        lg(nl + 4)
        stamp("S_read")
        pk("add", PA, PA, PA+4); pk("add", PA+2, PA+2, PA+6)
        lg(nl + 3)
        pk("add", PA, PA, PA+8); pk("add", PA+2, PA+2, PA+10)
        lg(nl + 2)
        pk("add", PA, PA, PA+12); pk("add", PA+2, PA+2, PA+14)
        lg(nl)
        pk("add", PB, PB, PB+2); pk("add", PB+4, PB+4, PB+6); pk("add", PB, PB, PB+4)
    stamp("adds")
    X, Y = PB+2, PB+3
    ON, SU = PA + 4, PA + 8
    VM = PB + 12
    A(f"""
    v_max3_f32 v{X}, v{PA}, v{PA+1}, v{PA+2}
    v_max3_f32 v{Y}, v{PA+3}, v{PB}, v{PB+1}
    v_max_f32 v{X}, v{X}, v{Y}
    """)
    cv(VM, AV[0], AV[0]+1); cv(VM+1, AV[0]+2, AV[0]+3)
    A(f"""
    v_max_f32_dpp v{Y}, v{X}, v{X} row_ror:8 row_mask:0xf bank_mask:0xf
    v_max_f32_dpp v{X}, v{X}, v{X} row_ror:8 row_mask:0xf bank_mask:0xf
    """)
    cv(VM+2, AV[1], AV[1]+1); cv(VM+3, AV[1]+2, AV[1]+3)
    A(f"""
    v_permlane16_swap_b32 v{X}, v{Y}
    v_max_f32 v{PB+4}, v{X}, v{Y}
    v_max_f32 v{PB+5}, v{X}, v{Y}
    v_pk_mov_b32 {v(ON+2*psh,2)}, s[{sOne}:{sOne+1}], s[{sOne}:{sOne+1}] op_sel:[0,0]
    v_pk_mov_b32 {v(ON+2-2*psh,2)}, s[{sOne}:{sOne+1}], s[{sOne}:{sOne+1}] op_sel:[1,1]
    v_permlane32_swap_b32 v{PB+4}, v{PB+5}
    v_max_f32 v{X}, v{PB+4}, v{PB+5}
    v_mul_f32 v{X}, s{sC}, v{X}
    """)
    stamp("max")
    for r in (PA, PA+2, PB):
        A(f"v_pk_fma_f32 {v(r,2)}, {v(r,2)}, s[{sC}:{sC+1}], {v(X,2)} op_sel_hi:[1,0,0] neg_lo:[0,0,1] neg_hi:[0,0,1]")
    for r in [PB, PB+1, PA, PA+1, PA+2, PA+3]: A(f"v_exp_f32 v{r}, v{r}")
    stamp("exp")
    if psh:
        PM, PX = PB + 4, PB + 6
        cv(PM, PB, PB+1); cv(PX, PA, PA+1); cv(PX+1, PA+2, PA+3)
        A(f"""
        v_mov_b32_dpp v{PM+1}, v{PM} row_ror:8 row_mask:0xf bank_mask:0xf
        v_mov_b32_dpp v{PX+2}, v{PX} row_ror:8 row_mask:0xf bank_mask:0xf
        v_mov_b32_dpp v{PX+3}, v{PX+1} row_ror:8 row_mask:0xf bank_mask:0xf
        v_mfma_f32_16x16x32_bf16 {v(SU,4)}, {v(ON,4)}, {v(PM,4)}, 0
        {W() if nw < 5 else ""}
        s_waitcnt vmcnt({nyoung})
        """)
    else:
        PX, PM = PB + 4, PB + 8
        cv(PM, PB, PB+1); cv(PM+1, PB, PB+1); cv(PX+2, PA, PA+1); cv(PX+3, PA+2, PA+3); cv(PX, PA, PA+1); cv(PX+1, PA+2, PA+3)
        A(f"""
        v_mfma_f32_16x16x32_bf16 {v(SU,4)}, {v(ON,4)}, {v(PX+2,4)}, 0
        {W() if nw < 4 else ""}
        s_waitcnt vmcnt({nyoung})
        v_mov_b32_dpp v{PX+2}, v{PX+2} row_ror:8 row_mask:0xf bank_mask:0x3
        v_mov_b32_dpp v{PX+3}, v{PX+3} row_ror:8 row_mask:0xf bank_mask:0x3
        v_mov_b32_dpp v{PX}, v{PX} row_ror:8 row_mask:0xf bank_mask:0xc
        v_mov_b32_dpp v{PX+1}, v{PX+1} row_ror:8 row_mask:0xf bank_mask:0xc
        v_mov_b32_dpp v{PM}, v{PM} row_ror:8 row_mask:0xf bank_mask:0xc
        v_mov_b32_dpp v{PM+1}, v{PM+1} row_ror:8 row_mask:0xf bank_mask:0x3
        """)
    stamp("Pcvt")
    sadd = f"v_add_f32_dpp v{X}, v{SU}, v{SU} row_ror:8 row_mask:0xf bank_mask:0xf"
    srcp = f"v_rcp_f32 v{X}, v{X}"
    OA = 0
    pvf = [[Z()], [sadd], [srcp]] if psh else [[sadd], [srcp], []]
    A(f"""
    v_mfma_f32_16x16x32_bf16 {v(AV[0],4)}, {v(VX,4)}, {v(PX,4)}, 0
    {W()}
    {"".join(pvf[0])}
    v_mfma_f32_16x16x32_bf16 {v(AV[1],4)}, {v(VX+4,4)}, {v(PX,4)}, 0
    {W()}
    {"".join(pvf[1])}
    v_mfma_f32_16x16x16_bf16 {v(AV[0],4)}, {v(VM,2)}, {v(PM,2)}, {v(AV[0],4)}
    {W()}
    {"".join(pvf[2])}
    v_mfma_f32_16x16x16_bf16 {v(AV[1],4)}, {v(VM+2,2)}, {v(PM,2)}, {v(AV[1],4)}
    """)
    left = max(0, 8 - ndef - nw)
    for k in range(left): A(W())
    nzz = min(len(zs), 4 - max(left, 1))
    A.nop(4 - left - nzz)
    for k in range(nzz): A(Z())
    zm = [Z() for k in range(len(zs))]
    assert nw >= 8 - ndef
    OF = [PB+4, VX, VX+4, PB+8]
    for k in range(2):
        A(f"v_pk_mul_f32 {v(AV[0]+2*k,2)}, {v(AV[0]+2*k,2)}, {v(X,2)} op_sel_hi:[1,0]")
    cv(OF[0], AV[0], AV[0]+1); cv(OF[0]+1, AV[0]+2, AV[0]+3)
    stamp("rcp")
    for k in range(2):
        A(f"v_pk_mul_f32 {v(AV[1]+2*k,2)}, {v(AV[1]+2*k,2)}, {v(X,2)} op_sel_hi:[1,0]")
    cv(OF[0]+2, AV[1], AV[1]+1); cv(OF[0]+3, AV[1]+2, AV[1]+3)
    A(f"ds_write_b128 v{OA if psh else MOWN}, {v(OF[0],4)}")
    stamp("o_written")
    if psh:
        for k in range(4): A(f"v_mov_b32_dpp v{OF[0]+k}, v{OF[0]+k} row_ror:8 row_mask:0xf bank_mask:0xc")
    for z in zm: A(z)
    if full: A(f"v_cmp_ge_u32 s[{sKM}:{sKM+1}], s{sRdy}, v7")
    if px is not None:
        for q in range(len(pp)): A(f"v_cmp_ne_u32 s[{sPM+2*q}:{sPM+2*q+1}], s{sStep}, v{q}")
    A.nop(2 - len(zm) - (1 if full else 0))
    def OO(j, i): return [(WA[2*i+t], OF[j], B(("O", j, i), t)) for t in range(2)]
    OG = lambda j, g: OO(j, g >> 1)[g & 1]
    own = [OG(0, 2), OG(0, 3), OG(0, 1), OG(0, 0)]
    for x in own[:nob]: sm(A, *x)
    A("s_waitcnt lgkmcnt(0)")
    A("s_barrier")
    stamp("B3")
    dsq = []
    def DS(x):
        A(x); dsq.append(set(parse_operand(x.split()[1].rstrip(","))))
    for j in (1, 2, 3): DS(f"ds_read_b128 {v(OF[j],4)}, v{OA + j if psh else MX[j]}")
    wo3 = rd(("O", 3, 1))
    PK = AV[0]
    wseq = [None]*(nob - 1) + own[nob:] + [OG(j, g) for g in range(4) for j in (1, 2, 3)]
    cvs = lambda g: [f"v_cvt_pk_bf16_f32 v{PK+2*g+q}, v{WA[g]+2*q}, v{WA[g]+2*q+1}" for q in range(2)]
    sG = [sA, sT, sT+1, sT+2]
    gst = lambda g: f"buffer_store_dwordx2 {v(PK+2*g,2)}, v{PST}, {srd}, s{sG[g]} offen"
    fw = {k: [] for k in range(16)}
    fw[0] += [f"s_add_u32 s{sT}, s{sA}, 65536"]; fw[1] += [f"s_add_u32 s{sT+1}, s{sA}, 131072"]
    fw[2] += [f"s_add_u32 s{sT+2}, s{sA}, 196608"]
    if w6: fw[6] += ["s_waitcnt vmcnt(2)"]
    for k, x in zip(wslots, wo3[:2] + wo[8 - ndef:] + wo3[2:]): fw[k] = [x] + fw[k]
    assert len(wslots) >= 4 + ndef
    for g in range(3):
        k = 3 + 3*g + 4
        if cpos == 0: fw[k] += cvs(g); fw[k+1] += [gst(g)]
        if cpos == 1: fw[k] += cvs(g) + [gst(g)]
        if cpos == 2: fw[k] += cvs(g)[:1]; fw[k+1] += cvs(g)[1:]; fw[k+2] = [gst(g)] + fw[k+2]
    got = [0]
    def ready(k):
        x = wseq[k]
        if not x: return
        use = set(parse_operand(v(x[1], 4))) | set(parse_operand(x[2]))
        need_ = max([i + 1 for i, d in enumerate(dsq) if d & use] + [0])
        if need_ > got[0]:
            if k >= 9: need_ = max(need_, len(dsq) - sum(q >= k - 4 and q < k for q in wslots[:4 + ndef]))
            lg(len(dsq) - need_); got[0] = need_
    for k, x in enumerate(wseq):
        if k == 3: stamp("o_read")
        if k == 9: stamp("early_end")
        if x: sm(A, *x)
        nv = next((i for i, y in enumerate(fw[k]) if y.startswith("v_")), len(fw[k]))
        for i, y in enumerate(fw[k] + [None]):
            if i == nv and k + 1 < len(wseq): ready(k + 1)
            if y is None: break
            if y.startswith("ds_read"): DS(y)
            else: A(y)
            if y == gst(0) and trace: stamp("est")
    stamp("late_end")
    tail = fw[15] + ([f"s_and_b32 s{sKM}, s{sKM}, s{sExK}", "s_cbranch_scc1 LkvB", "LkvBret:"] if 0 else [])
    for y in tail: A(y)
    if px is not None: A(f"s_cmp_eq_u64 s[{sPM}:{sPM+1}], 0")
    A.nop(8 - len(fw[14]) - len(tail) - (px is not None) - (2 if any(y.startswith("v_") for y in fw[14]) else 0))
    for y in cvs(3): A(y)
    A(gst(3))
    stamp("stored")
    RA = VX
    def pload(r):
        for k in range(2): A(f"buffer_load_dwordx4 {v(r+4*k,4)}, v{PLD}, {srd}, s{sA} offen offset:{1024*k} sc1")
    dacc = f"s_waitcnt lgkmcnt(0)\ns_sub_u32 s{sT+2}, s{sTM+2}, s{sTM}\ns_add_u32 s70, s70, s{sT+2}"
    if px is not None:
        for q in range(len(pp)):
            A("s_cbranch_scc1 Lsync")
            A.nop(eps[q])
            if q + 1 < len(pp): A(f"s_cmp_eq_u64 s[{sPM+2*q+2}:{sPM+2*q+3}], 0")
        A.label("Lsync")
    if bar: A("s_barrier")
    if trace: stamp("lbar")
    if diag: A(dacc)
    if timing: A(f"s_cmp_eq_u32 s{sStep}, 3\ns_cbranch_scc1 Ltm\nLtmret:")
    A(f"""
    s_cmp_eq_u32 s{sW}, 1
    s_cbranch_scc1 Lh1
    s_cmp_eq_u32 s{sW}, 2
    s_cbranch_scc1 Lh2
    s_cmp_eq_u32 s{sW}, 3
    s_cbranch_scc1 Lh3
    """)
    jr = rd(("Q", 2)) + rd(("Q", 3)) + rd(("K", 2))
    def pproc(r, base):
        for k in range(2):
            A(f"s_waitcnt vmcnt({base + 1 - k})")
            A(f"v_mfma_f32_16x16x32_bf16 {v(RA,4)}, {v(SELR,4)}, {v(r+4*k,4)}, {v(RA,4) if k else 0}")
        if trace: stamp("p1_data")
        A(f"""
        s_nop 7
        v_add_f32_dpp v{RA}, v{RA}, v{RA} row_ror:4 row_mask:0xf bank_mask:0xf
        v_add_f32_dpp v{RA+1}, v{RA+1}, v{RA+1} row_ror:4 row_mask:0xf bank_mask:0xf
        s_nop 0
        v_add_f32_dpp v{RA}, v{RA}, v{RA} row_ror:8 row_mask:0xf bank_mask:0xf
        v_add_f32_dpp v{RA+1}, v{RA+1}, v{RA+1} row_ror:8 row_mask:0xf bank_mask:0xf
        {f"s_mov_b64 exec, s[{sEx1}:{sEx1+1}]" if pex else ""}
        v_cvt_pk_bf16_f32 v{PUB}, v{RA}, v{RA+1}
        buffer_store_dword v{PUB}, v{MST}, {srd}, s{sA} offen
        """)
        if trace: stamp("pub")
        A(f"""
        v_cmp_u_f32 vcc, v{RA+1}, v{RA+1}
        {"s_mov_b64 exec, -1" if pex else ""}
        """)
    for w in range(4):
        d, g, e, h, jl = [(d0, g0, e0, h0, j0), (d1, g1, e1, h1, j1), (d2, g2, e2, h2, j2), (d3, g3, e3, h3, j3)][w]
        A.label(f"Lh{w}")
        ni = [i0, i1, i2, i3][w]; jl = min(12, ni + jl)
        for x in jr[:ni]: A(x); A.nop(2)
        A.nop(max(0, d - 3*ni - (3 if timing else 0) - [6, 8, 10, 12][w]))
        if trace: stamp("p1_first")
        pload(0)
        jz_()
        n1 = nb1 >> w & 1
        if not n1: A.nop(g); pload(8)
        for x in jr[ni:jl]: A(x)
        A.label(f"Lp1w{w}")
        pproc(0, 0 if n1 else 2)
        A(f"s_cbranch_vccnz Lp1r{w}")
        A.label(f"Lp1done{w}")
        if dl: A(f"s_cmp_ge_u32 s{sStep}, {nsteps}\ns_cbranch_scc1 Lexit"); e -= 2
        for x in jr[jl:]: A(x)
        if full and w == 0:
            A(f"s_and_b32 s{sKM}, s{sKM}, {NWM}\ns_cbranch_scc1 LkvB")
        A.nop(e - (3 if full and w == 0 else 0))
        A.label(f"Lp2_{w}")
        if trace: stamp("p2_first")
        mload(0)
        if steplog and w == 0: A(f"s_memrealtime s[80:81]\ns_memtime s[82:83]\ns_cmp_eq_u32 s{sHW}, 0\ns_cbranch_scc1 Llog\nLlogret:")
        rotate()
        if nb2 >> w & 1:
            A("s_mov_b64 exec, 1"); mload(0); A("s_mov_b64 exec, -1")
        else:
            A.nop(h - 4); mload(0)
        A("s_branch Lp2a")
        A.label(f"Lp1r{w}")
        if n1: pload(0)
        else:
            pproc(8, 1)
            A(f"s_cbranch_vccz Lp1done{w}")
            pload(0); A.nop(24); pload(8)
        A(f"s_sub_u32 s{sSpin}, s{sSpin}, 1\ns_cbranch_scc0 Lp1w{w}")
        A(f"""
        s_mov_b32 s{sSpin}, 0
        v_mov_b32 v{PUB}, 0x7fc07fc0
        s_waitcnt vmcnt(0)
        buffer_store_dword v{PUB}, v{MST}, {srd}, s{sA} offen
        s_branch Lp1done{w}
        """)
    def chk2(n):
        A(f"""
        s_waitcnt vmcnt({n + 1})
        v_max3_u32 v8, v0, v1, v2
        v_max_u32 v8, v8, v3
        s_waitcnt vmcnt({n})
        v_max3_u32 v8, v8, v4, v5
        v_max3_u32 v8, v8, v6, v7
        v_cmp_le_u32 vcc, 0xffc00000, v8
        """)
        for k in range(0, 4*nsp, 2): A(f"v_mov_b64 {v(PA+k,2)}, 0")
        if nsp: A("s_nop 1")
        for x in seq[:nsp]: sm(A, *x)
        A("s_cbranch_vccz Lp2cont")
    def relook():
        A("s_mov_b64 exec, vcc")
        mload(0)
        A("s_mov_b64 exec, -1")
    A(".p2align 4")
    A.label("Lp2r")
    if early3: relook()
    for q in range(k2 - 1): chk2(2*(k2 - 2 - q) + (2 if early3 else 0))
    for q in range(kr - 1 - (1 if early3 else 0)):
        relook(); A.nop(rgap)
    A.label("Lp2q")
    relook()
    A(f"s_sub_u32 s{sSpin}, s{sSpin}, 1\ns_cbranch_scc1 Lp2giveup")
    chk2(2*(kr - 1))
    A("s_branch Lp2q")
    A.label("Lp2giveup")
    A(f"""
    s_mov_b32 s{sSpin}, 0
    s_waitcnt vmcnt(0)
    s_branch Lp2cont
    """)
    if timing:
        A.label("Ltm")
        A(f"s_memtime s[96:97]\ns_mov_b32 s98, s{sSpin}\ns_branch Ltmret")
    if steplog:
        A.label("Llog")
        A(f"""
        s_lshl_b32 s84, s{sStep}, 3
        s_add_u32 s84, s84, {WS_DBG + 8192 - 8}
        s_waitcnt lgkmcnt(0)
        v_mov_b32 v16, s80
        v_mov_b32 v17, s82
        s_mov_b64 exec, 1
        buffer_store_dwordx2 v[16:17], off, {srd}, s84
        s_mov_b64 exec, -1
        s_branch Llogret
        """)
    if full:
        kvpoll("B", "Lp2_0"); A("s_branch Lp2_0")
    A.label("Lexit")
    if dl:
        A(f"buffer_store_dword v{PUB}, v{MST}, {srd}, s{sMP} offen sc1\ns_waitcnt vmcnt(0) lgkmcnt(0)")
        if trace: A.label("Lexit2")
        return
    L = A.newlabel("Lfin")
    A(f"""
    s_cmp_lg_u32 s{sH}, 0
    s_cbranch_scc1 {L}
    """)
    pub_all()
    A(f"""
    buffer_store_dword v{PUB}, v{MST}, {srd}, s{sMH} offen sc1
    s_add_u32 s{sMH}, s{sMH}, {MHS}
    s_waitcnt vmcnt(0)
    s_barrier
    s_mov_b64 exec, 16
    buffer_store_dword v{PUB}, v{MST}, {srd}, s{sMH} offen sc1
    """)
    A.label(L)
    A("s_mov_b64 exec, -1")
    if trace: A.label("Lexit2")
```

```python
from asmlib import *
from layout import *
import struct, math
def fbits(x): return struct.unpack("<I", struct.pack("<f", x))[0]

SRD = 4; sH, sW, sI, sS = 10, 11, 12, 13
sCnt, sSpin, sKV, sQ, sC, sXB = 14, 18, 16, 17, 26, 19
SRDW = 28; sT = 36; sKF = 22
sMask = 60
L16 = 1
def KW(ks, t): return a_((ks*2 + t)*4, 4)
def VW(ks, t): return a_(128 + (ks*2 + t)*4, 4)
def QW(ks, t): return v(128 + (ks*2 + t)*4, 4)
XB0 = 131072
XB1 = 98304

def emit_head_worker(A, stamps=False, slq=1, slp=2, LA=3):
    srd = f"s[{SRD}:{SRD+3}]"; srw = f"s[{SRDW}:{SRDW+3}]"
    cv = lambda d, a, b: A(f"v_cvt_pk_bf16_f32 v{d}, v{a}, v{b}")
    A(f"""
    s_load_dwordx2 s[{SRD}:{SRD+1}], s[0:1], {KA['ws']}
    s_load_dwordx2 s[8:9], s[0:1], {KA['dbg']}
    s_load_dwordx4 s[48:51], s[0:1], {KA['Wq']}
    s_load_dwordx2 s[52:53], s[0:1], {KA['Wv']}
    s_load_dwordx2 s[56:57], s[0:1], {KA['x']}
    v_lshrrev_b32 v5, 6, v0
    v_and_b32 v2, 63, v0
    v_readfirstlane_b32 s{sW}, v5
    v_and_b32 v3, 15, v2
    v_lshrrev_b32 v4, 4, v2
    v_lshlrev_b32 v{L16}, 4, v2
    s_mov_b32 s{SRD+2}, {WS_SIZE}
    s_mov_b32 s{SRD+3}, 0x00020000
    s_mov_b32 s{SRDW+2}, {4*MB}
    s_mov_b32 s{SRDW+3}, 0x00020000
    s_mov_b32 s58, {2*MB}
    s_mov_b32 s59, 0x00020000
    s_mov_b32 s{sSpin}, {SPIN}
    s_mov_b32 s{sC}, {fbits(128**-0.5 * math.log2(math.e))}
    """)
    A(f"""
    v_lshlrev_b32 v5, 2, v4
    v_xor_b32 v5, v5, v3
    v_lshlrev_b32 v5, 4, v5
    v_lshl_add_u32 v5, v4, 13, v5
    s_lshl_b32 s{sT}, s{sH}, 8
    s_lshl_b32 s{sT+1}, s{sW}, 18
    s_add_u32 s{sT}, s{sT}, s{sT+1}
    v_add_u32 v10, s{sT}, v5
    v_lshrrev_b32 v5, 2, v3
    v_lshl_add_u32 v12, v4, 3, v5
    v_lshlrev_b32 v12, 8, v12
    v_xor_b32 v5, s{sW}, v5
    v_and_b32 v11, 3, v3
    v_lshl_add_u32 v5, v5, 2, v11
    v_lshl_add_u32 v12, v5, 4, v12
    v_add_u32 v13, 65536, v12
    v_xor_b32 v5, v4, v3
    v_lshlrev_b32 v11, 10, v3
    v_add_u32 v11, {XB0}, v11
    """)
    for b in range(4):
        A(f"v_xor_b32 v14, {4*b}, v5\nv_lshl_add_u32 v{6+b}, v14, 4, v11")
    A(f"""
    s_lshl_b32 s{sT+2}, s{sW}, 13
    s_mov_b32 s{sS}, s{sI}
    s_mov_b32 s{sXB}, {XB0}
    s_waitcnt lgkmcnt(0)
    """)
    def xdma(sseg):
        A(f"""
        s_lshl_b32 s{sT}, s{sseg}, 15
        s_and_b32 s{sT+1}, s{sW}, 1
        s_lshl_b32 s{sT+3}, s{sT+1}, 14
        s_add_u32 s{sT}, s{sT}, s{sT+3}
        s_lshr_b32 s{sT+3}, s{sW}, 1
        s_lshl_b32 s{sT+3}, s{sT+3}, 12
        s_add_u32 s{sT}, s{sT}, s{sT+3}
        s_lshl_b32 s{sT+1}, s{sT+1}, 7
        s_add_u32 s{sT+4}, s{sXB}, s{sT+2}
        """)
        for q in range(8):
            A(f"""
            s_xor_b32 s{sT+3}, s{sT+1}, {q*16}
            v_xor_b32 v14, s{sT+3}, v{L16}
            s_add_u32 m0, s{sT+4}, {q*1024}
            s_add_u32 s{sT+3}, s{sT}, {(8*(q >> 2) + (q & 3))*1024}
            buffer_load_dwordx4 v14, s[56:59], s{sT+3} offen lds
            """)
    A(f"""
    v_mul_u32_u24 v14, {32*NW*OFS}, v2
    s_mul_i32 s{sT}, s{sI}, {32*OFS}
    s_mul_i32 s{sT+1}, s{sH}, {OFS}
    s_add_u32 s{sT}, s{sT}, s{sT+1}
    v_add_u32 v14, s{sT}, v14
    s_lshl_b32 s{sKF}, s{sH}, 7
    s_lshl_b32 s{sT+1}, s{sI}, 4
    s_add_u32 s{sKF}, s{sKF}, s{sT+1}
    s_add_u32 s{sKF}, s{sKF}, {2048*OFS}
    v_mov_b32 v15, s{sKF}
    v_cmp_gt_u32 vcc, {2048*OFS}, v14
    s_add_u32 s{sKF}, s{sKF}, {WS_FL}
    s_mov_b32 s{sT}, {WS_FL}
    v_cndmask_b32 v14, v15, v14, vcc
    v_mov_b32 v15, s{sI}
    v_cndmask_b32 v15, v15, 0, vcc
    s_cmp_lg_u32 s{sW}, 0
    s_cbranch_scc1 Hnz
    s_mov_b64 exec, 0x1ffff
    buffer_store_dword v15, v14, {srd}, s{sT} offen sc1
    s_mov_b64 exec, -1
    """)
    A.label("Hnz")
    xdma(sS)
    base = [50, 52, 48]
    dst = [lambda ks, t: ("a", (ks*2 + t)*4), lambda ks, t: ("a", 128 + (ks*2 + t)*4), lambda ks, t: ("v", 128 + (ks*2 + t)*4)]
    def wdma(n):
        if n % 4 == 0: A(f"s_mov_b32 s{SRDW}, s{base[n//4]}\ns_mov_b32 s{SRDW+1}, s{base[n//4]+1}")
        for q in range(8):
            A(f"""
            s_add_u32 m0, s{sT+2}, {(n % 4)*32768 + q*1024}
            s_mov_b32 s{sT+1}, {(128*(n % 4) + 4*q)*8192}
            buffer_load_dwordx4 v10, {srw}, s{sT+1} offen lds
            """)
    for n in range(3): wdma(n)
    for n in range(12):
        A(f"s_waitcnt vmcnt({8*(min(n + 3, 12) - n - 1)})")
        A("s_barrier")
        if stamps: A(f"s_memrealtime s[84:85]\ns_waitcnt lgkmcnt(0)\nv_writelane_b32 v116, s84, {n}")
        if n == 0:
            A(f"""
            s_cmp_lg_u32 s{sW}, 0
            s_cbranch_scc1 Hna
            v_mov_b32 v14, {DBG_ZERO}
            v_mov_b32 v15, 1
            s_mov_b64 exec, 1
            global_atomic_add v14, v15, s[8:9]
            s_mov_b64 exec, -1
            """)
            A.label("Hna")
        if n + 3 < 12: wdma(n + 3)
        for kk in range(4):
            for t in range(2):
                k, r0 = dst[n//4](4*(n % 4) + kk, t)
                for u in range(2):
                    A(f"ds_read_b64_tr_b16 {R(k, r0 + 2*u, 2)}, v{12 + ((n % 4) >> 1)} offset:{(n & 1)*32768 + kk*8192 + u*1024 + 8*t}")
            if kk == 1: A("s_waitcnt lgkmcnt(0)")
        A("s_waitcnt lgkmcnt(0)")
    if stamps:
        A(f"""
        s_memrealtime s[80:81]
        s_lshl_b32 s84, s2, 8
        s_add_u32 s84, s84, {WS_DBG + 65536}
        v_lshlrev_b32 v117, 2, v2
        buffer_store_dword v116, v117, {srd}, s84 offen
        """)
    sP, sPr, sRW, sRR = 15, 14, 20, 21
    EX = 73728; SLOT = 24576
    XF, ACC, PK = 20, 44, 92
    QF, AK_, AV_, SX, SM, KF, MF = 20, 36, 44, 52, 60, 64, 64
    VF, KM, VMr, PX, PM, OA, OP = 64, 80, 96, 104, 108, 36, 112
    X, Y, Z0, Z1 = 16, 17, 18, 19
    A(f"""
    v_lshrrev_b32 v5, 2, v3
    v_sub_u32 v5, v5, v4
    v_lshlrev_b32 v5, 3, v5
    v_and_b32 v11, 3, v3
    v_add_u32 v5, v5, v11
    s_and_b32 s{sT}, s{sW}, 1
    s_lshl_b32 s{sT}, s{sT}, 2
    v_add_u32 v5, s{sT}, v5
    """)
    for k in range(8): A(f"v_cmp_le_i32 s[{sMask+2*k}:{sMask+2*k+1}], {k}, v5")
    A(f"""
    v_cmp_gt_u32 s[76:77], 2, v4
    v_and_b32 v2, 7, v3
    v_lshl_add_u32 v2, v4, 3, v2
    v_lshlrev_b32 v2, 4, v2
    s_lshl_b32 s{sT}, s{sW}, 11
    v_add_u32 v3, s{sT}, v{L16}
    v_add_u32 v3, {EX}, v3
    v_add_u32 v4, {EX}, v{L16}
    s_lshr_b32 s{sT}, s{sW}, 1
    s_lshl_b32 s{sT}, s{sT}, 12
    v_add_u32 v5, s{sT}, v4
    v_mov_b32 v10, {DBG_TEAM}
    v_mov_b32 v11, 0xff800000
    s_mov_b32 s{sP}, s{sI}
    s_mov_b32 s{sPr}, 0
    s_mov_b32 s{sRW}, 0
    s_mov_b32 s{sRR}, 0
    s_barrier
    """)
    def flag(tag, soff, val):
        A(f"""
        s_waitcnt vmcnt(0) lgkmcnt(0)
        s_barrier
        s_cmp_lg_u32 s{sW}, 0
        s_cbranch_scc1 Hnf{tag}
        v_mov_b32 v14, {val}
        s_mov_b64 exec, 1
        buffer_store_dword v14, off, {srd}, s{soff} sc1
        s_mov_b64 exec, -1
        """)
        A.label(f"Hnf{tag}")
    A.label("H1top")
    if stamps:
        A(f"""
        s_memrealtime s[84:85]
        s_lshl_b32 s86, s2, 4
        s_and_b32 s87, s{sPr}, 15
        s_add_u32 s86, s86, s87
        s_lshl_b32 s86, s86, 2
        s_add_u32 s86, s86, {WS_DBG + 16384}
        s_waitcnt lgkmcnt(0)
        v_mov_b32 v14, s84
        buffer_store_dword v14, off, {srd}, s86
        """)
    A(f"""
    s_lshl_b32 s{sKV}, s{sP}, 5
    s_add_u32 s{sKV}, s{sKV}, s{sH}
    s_lshl_b32 s{sKV}, s{sKV}, 2
    s_add_u32 s{sKV}, s{sKV}, s{sW}
    s_lshl_b32 s{sKV}, s{sKV}, 12
    s_add_u32 s{sP}, s{sP}, {NW}
    s_xor_b32 s{sXB}, s{sXB}, {XB0 ^ XB1}
    s_cmp_ge_u32 s{sP}, 64
    s_cbranch_scc1 H1nx
    """)
    xdma(sP)
    A.label("H1nx")
    def xread(ks):
        for kt in range(2):
            A(f"ds_read_b128 {v(XF + (ks % 3)*8 + 4*kt, 4)}, v{6 + (ks & 3)} offset:{(ks >> 2)*256 + kt*16384}")
    xread(0); xread(1)
    for ks in range(16):
        if ks + 2 < 16:
            xread(ks + 2); A("s_waitcnt lgkmcnt(4)")
        else: A(f"s_waitcnt lgkmcnt({2*(15 - ks)})")
        for kt in range(2):
            xf = v(XF + (ks % 3)*8 + 4*kt, 4)
            for t in range(2):
                for m in range(3):
                    d = v(ACC + m*16 + (kt*2 + t)*4, 4)
                    c = d if ks else "0"
                    if m == 0: A(f"v_mfma_f32_16x16x32_bf16 {d}, {KW(ks,t)}, {xf}, {c}")
                    if m == 1: A(f"v_mfma_f32_16x16x32_bf16 {d}, {xf}, {VW(ks,t)}, {c}")
                    if m == 2: A(f"v_mfma_f32_16x16x32_bf16 {d}, {QW(ks,t)}, {xf}, {c}")
    for b in range(4): A(f"v_xor_b32 v{6+b}, {XB0 ^ XB1}, v{6+b}")
    A(f"""
    s_mul_i32 s{sT}, s{sW}, 6144
    s_add_u32 s{sT}, s{sT}, s{sRW}
    v_add_u32 v12, s{sT}, v{L16}
    s_nop 1
    """)
    ac = lambda m, kt, t: ACC + m*16 + (kt*2 + t)*4
    for kt in range(2):
        for t in range(2):
            cv(PK + kt*4 + 2*t, ac(0,kt,t), ac(0,kt,t)+1); cv(PK + kt*4 + 2*t + 1, ac(0,kt,t)+2, ac(0,kt,t)+3)
        A(f"buffer_store_dwordx4 {v(PK + kt*4, 4)}, v{L16}, {srd}, s{sKV} offen offset:{kt*1024} sc1")
    for t in range(2):
        for kt in range(2):
            cv(PK + 8 + t*4 + 2*kt, ac(1,kt,t), ac(1,kt,t)+1); cv(PK + 8 + t*4 + 2*kt + 1, ac(1,kt,t)+2, ac(1,kt,t)+3)
        A(f"buffer_store_dwordx4 {v(PK + 8 + t*4, 4)}, v{L16}, {srd}, s{sKV} offen offset:{2048 + t*1024} sc1")
    for kt in range(2):
        for t in range(2):
            cv(PK + 16 + kt*4 + 2*t, ac(2,kt,t), ac(2,kt,t)+1); cv(PK + 16 + kt*4 + 2*t + 1, ac(2,kt,t)+2, ac(2,kt,t)+3)
    for k in range(6): A(f"ds_write_b128 v12, {v(PK + 4*k, 4)} offset:{1024*k}")
    A(f"""
    s_add_u32 s{sRW}, s{sRW}, {SLOT}
    s_cmp_eq_u32 s{sRW}, {3*SLOT}
    s_cselect_b32 s{sRW}, 0, s{sRW}
    s_add_u32 s{sPr}, s{sPr}, 1
    s_cmp_ge_u32 s{sP}, 64
    s_cselect_b32 s{sPr}, 15, s{sPr}
    """)
    A(f"s_cselect_b32 s{sT}, 99, s{sP}")
    flag("1", sKF, f"s{sT}")
    A(f"""
    s_cmp_lt_u32 s{sPr}, {LA}
    s_cbranch_scc1 H1top
    """)
    A.label("H3top")
    A(f"""
    s_lshl_b32 s{sQ}, s{sS}, 5
    s_add_u32 s{sQ}, s{sQ}, s{sH}
    s_lshl_b32 s{sQ}, s{sQ}, 13
    s_and_b32 s{sT}, s{sW}, 1
    s_lshl_b32 s{sT}, s{sT}, 10
    s_add_u32 s{sQ}, s{sQ}, s{sT}
    s_add_u32 s{sT}, s{sT}, s{sRR}
    v_add_u32 v12, s{sRR}, v{L16}
    v_add_u32 v13, s{sT}, v{L16}
    s_lshr_b32 s{sT}, s{sW}, 1
    s_lshl_b32 s{sT+1}, s{sT}, 12
    s_add_u32 s{sQ}, s{sQ}, s{sT+1}
    s_add_u32 s{sQ}, s{sQ}, {WS_O}
    s_mul_i32 s{sT}, s{sT}, 12288
    """)
    for sl in range(4):
        A(f"ds_read_b128 {v(QF + 4*sl, 4)}, v13 offset:{sl*6144 + 4096}")
        for kt in range(2): A(f"ds_read_b128 {v(KF + 8*sl + 4*kt, 4)}, v12 offset:{sl*6144 + kt*1024}")
    A(f"v_add_u32 v12, s{sT}, v12")
    A("s_waitcnt lgkmcnt(0)")
    for sl in range(4):
        for kt in range(2):
            d = v(SX + 4*kt, 4)
            A(f"v_mfma_f32_16x16x32_bf16 {d}, {v(KF + 8*sl + 4*kt, 4)}, {v(QF + 4*sl, 4)}, {d if sl else 0}")
    A.nop(8)
    for k in range(8): A(f"v_cndmask_b32 v{SX+k}, v11, v{SX+k}, s[{sMask+2*k}:{sMask+2*k+1}]")
    A(f"""
    v_max3_f32 v{X}, v{SX}, v{SX+1}, v{SX+2}
    v_max3_f32 v{X}, v{X}, v{SX+3}, v{SX+4}
    v_max3_f32 v{X}, v{X}, v{SX+5}, v{SX+6}
    v_max_f32 v{X}, v{X}, v{SX+7}
    v_add_u32 v13, {EX + 8192}, v2
    s_cmp_lg_u32 s{sW}, 0
    s_cbranch_scc1 H3go
    s_cmp_ge_u32 s{sS}, {Q0}
    s_cbranch_scc1 H3go
    """)
    A(f"s_cmp_lg_u32 s{sS}, s{sI}\ns_cbranch_scc1 Htd")
    A.label("Htw")
    A(f"""
    global_load_dword v14, v10, s[8:9] sc1
    s_sub_u32 s{sSpin}, s{sSpin}, 1
    s_cbranch_scc1 Htg
    s_waitcnt vmcnt(0)
    v_readfirstlane_b32 s{sT}, v14
    s_cmp_ge_u32 s{sT}, 32
    s_cbranch_scc1 Htd
    s_sleep 16
    s_branch Htw
    """)
    A.label("Htg")
    A(f"s_mov_b32 s{sSpin}, 0")
    A.label("Htd")
    A(f"""
    s_mul_i32 s{sT+1}, s{sS}, {MHS}
    s_add_u32 s{sT+1}, s{sT+1}, {WS_MH + MHS + 8192}
    """)
    A.label("H3poll")
    A(f"""
    buffer_load_dword v14, off, {srd}, s{sT+1} sc1
    s_sub_u32 s{sSpin}, s{sSpin}, 1
    s_cbranch_scc1 H3gv
    s_waitcnt vmcnt(0)
    v_readfirstlane_b32 s{sT}, v14
    s_cmp_lg_u32 s{sT}, -1
    s_cbranch_scc1 H3go
    s_sleep {slp}
    s_branch H3poll
    """)
    A.label("H3gv")
    A(f"s_mov_b32 s{sSpin}, 0")
    A.label("H3go")
    A(f"""
    s_barrier
    s_mul_i32 s{sT}, s{sS}, {MHS}
    s_lshl_b32 s{sT+1}, s{sW}, 11
    s_add_u32 s{sT}, s{sT}, {WS_MH}
    s_add_u32 s{sT}, s{sT}, s{sT+1}
    """)
    A.label("H3q")
    A(f"""
    buffer_load_dwordx4 {v(MF, 4)}, v{L16}, {srd}, s{sT} offen sc1
    buffer_load_dwordx4 {v(MF + 4, 4)}, v{L16}, {srd}, s{sT} offen offset:1024 sc1
    s_cmp_lt_u32 s{sS}, {Q0}
    s_waitcnt vmcnt(0)
    s_cbranch_scc1 H3d
    v_max3_u32 v14, v{MF}, v{MF+1}, v{MF+2}
    v_max3_u32 v14, v14, v{MF+3}, v{MF+4}
    v_max3_u32 v14, v14, v{MF+5}, v{MF+6}
    v_max_u32 v14, v14, v{MF+7}
    v_cmp_eq_u32 vcc, -1, v14
    s_cbranch_vccz H3d
    s_sleep {slq}
    s_sub_u32 s{sSpin}, s{sSpin}, 1
    s_cbranch_scc0 H3q
    s_mov_b32 s{sSpin}, 0
    """)
    A.label("H3d")
    A(f"""
    ds_write_b128 v3, {v(MF, 4)} offset:8192
    ds_write_b128 v3, {v(MF + 4, 4)} offset:9216
    s_waitcnt lgkmcnt(0)
    s_barrier
    """)
    if stamps: A("s_memrealtime s[82:83]\ns_waitcnt lgkmcnt(0)")
    for ks in range(16): A(f"ds_read_b128 {v(MF + 4*ks, 4)}, v13 offset:{ks_off(ks)}")
    for ks in range(16):
        if ks < 9: A(f"s_waitcnt lgkmcnt({15 - ks if ks < 8 else 0})")
        mf = v(MF + 4*ks, 4)
        for t in range(2):
            d = v(AK_ + 4*t, 4); A(f"v_mfma_f32_16x16x32_bf16 {d}, {KW(ks,t)}, {mf}, {d if ks else 0}")
        for t in range(2):
            d = v(AV_ + 4*t, 4); A(f"v_mfma_f32_16x16x32_bf16 {d}, {mf}, {VW(ks,t)}, {d if ks else 0}")
        if 8 <= ks < 12:
            sl, t = (ks - 8) >> 1, ks & 1
            A(f"ds_read_b128 {v(VF + 8*sl + 4*t, 4)}, v12 offset:{sl*6144 + 2048 + t*1024}")
    if stamps: A("s_memrealtime s[88:89]")
    A.nop(4)
    for k in range(4): cv(KM + k, AK_ + 2*k, AK_ + 2*k + 1)
    for k in range(4): cv(KM + 4 + k, AV_ + 2*k, AV_ + 2*k + 1)
    A(f"""
    ds_write_b128 v3, {v(KM,4)}
    ds_write_b128 v3, {v(KM+4,4)} offset:1024
    s_waitcnt lgkmcnt(0)
    s_barrier
    """)
    for sl in range(4): A(f"ds_read_b128 {v(KM + 4*sl, 4)}, v4 offset:{2048*sl}")
    for sl in range(2): A(f"ds_read_b128 {v(VMr + 4*sl, 4)}, v5 offset:{2048*sl + 1024}")
    for sl in range(4):
        A(f"s_waitcnt lgkmcnt({5 - sl})")
        A(f"v_mfma_f32_16x16x32_bf16 {v(SM,4)}, {v(KM + 4*sl, 4)}, {v(QF + 4*sl, 4)}, {v(SM,4) if sl else 0}")
    A.nop(8)
    for k in range(4): A(f"v_cndmask_b32 v{SM+k}, v11, v{SM+k}, s[76:77]")
    A(f"""
    v_max3_f32 v{X}, v{X}, v{SM}, v{SM+1}
    v_max3_f32 v{Y}, v{X}, v{SM+2}, v{SM+3}
    v_max3_f32 v{X}, v{X}, v{SM+2}, v{SM+3}
    s_nop 1
    v_permlane16_swap_b32 v{X}, v{Y}
    v_max_f32 v{Z0}, v{X}, v{Y}
    v_max_f32 v{Z1}, v{X}, v{Y}
    s_nop 1
    v_permlane32_swap_b32 v{Z0}, v{Z1}
    v_max_f32 v{X}, v{Z0}, v{Z1}
    v_mul_f32 v{X}, s{sC}, v{X}
    """)
    for k in range(12): A(f"v_fma_f32 v{SX+k}, v{SX+k}, s{sC}, -v{X}")
    for k in range(12): A(f"v_exp_f32 v{SX+k}, v{SX+k}")
    for k in range(6): cv(PX + k, SX + 2*k, SX + 2*k + 1)
    A("s_waitcnt lgkmcnt(0)\ns_nop 0")
    for sl in range(2):
        for t in range(2):
            A(f"v_mfma_f32_16x16x32_bf16 {v(OA + 8*sl + 4*t, 4)}, {v(VF + 8*sl + 4*t, 4)}, {v(PX,4)}, 0")
    for sl in range(2):
        for t in range(2):
            d = v(OA + 8*sl + 4*t, 4)
            A(f"v_mfma_f32_16x16x16_bf16 {d}, {v(VMr + 4*sl + 2*t, 2)}, {v(PM,2)}, {d}")
    for k in range(0, 12, 2): A(f"v_add_f32 v{SX+k}, v{SX+k}, v{SX+k+1}")
    for k in range(0, 12, 4): A(f"v_add_f32 v{SX+k}, v{SX+k}, v{SX+k+2}")
    A(f"""
    v_add_f32 v{X}, v{SX}, v{SX+4}
    v_add_f32 v{Y}, v{X}, v{SX+8}
    v_add_f32 v{X}, v{X}, v{SX+8}
    s_nop 1
    v_permlane16_swap_b32 v{X}, v{Y}
    v_add_f32 v{Z0}, v{X}, v{Y}
    v_add_f32 v{Z1}, v{X}, v{Y}
    s_nop 1
    v_permlane32_swap_b32 v{Z0}, v{Z1}
    v_add_f32 v{X}, v{Z0}, v{Z1}
    v_rcp_f32 v{X}, v{X}
    s_nop 0
    """)
    for k in range(16): A(f"v_mul_f32 v{OA+k}, v{OA+k}, v{X}")
    for k in range(8): cv(OP + k, OA + 2*k, OA + 2*k + 1)
    for sl in range(2):
        A(f"buffer_store_dwordx4 {v(OP + 4*sl, 4)}, v{L16}, {srd}, s{sQ} offen offset:{2048*sl} sc1")
    if stamps: A("s_memrealtime s[80:81]")
    A(f"""
    s_add_u32 s{sRR}, s{sRR}, {SLOT}
    s_cmp_eq_u32 s{sRR}, {3*SLOT}
    s_cselect_b32 s{sRR}, 0, s{sRR}
    s_lshl_b32 s{sT}, s{sS}, 5
    s_add_u32 s{sT}, s{sT}, s{sH}
    s_mul_i32 s{sT}, s{sT}, {OFS}
    s_add_u32 s{sT}, s{sT}, {WS_OFL}
    s_add_u32 s{sS}, s{sS}, {NW}
    """)
    flag("3", sT, "1")
    A(f"""
    s_cmp_lt_u32 s{sP}, 64
    s_cbranch_scc1 H1top
    s_cmp_lt_u32 s{sS}, 64
    s_cbranch_scc1 H3top
    s_branch Lend
    """)

if __name__ == "__main__":
    A = Asm(); emit_head_worker(A); A.label("Lend")
    for e in check(A.lines): print("HAZARD", e)
    print(len(A.lines))
```

```python
import sys
from asmlib import *
from layout import *
import chain, headw, convout
NAME = "gated_mix__memory_aug_recurrent_mem_tr__ssm_conv_h3__prompt"
CHAIN_CFG = dict()
def prefetch_code(A, tag, end, n=1):
    A(f"s_getpc_b64 s[40:41]")
    A.label(f"Lpc{tag}")
    for k in range(n):
        A(f"""
        v_lshlrev_b32 v255, 7, v0
        v_add_u32 v255, {k*32768}, v255
        v_min_u32 v255, {end}-Lpc{tag}-4, v255
        global_load_dword v254, v255, s[40:41]
        """)
def body(stamps=False, roles="CHO", pf=1, slp=2, LA=3, spread=1, nt=1, bal=0, tc=0, th=0, fn=14, rt=(2, 0, 3), osc='', na=14, slo=2, tm=0, slq=1, hx=0, cx=(1, 6, 5, 0, 2, 7, 3, 4), **kw):
    A = Asm()
    A(f"""
    s_cmp_ge_u32 s2, 256
    s_cbranch_scc1 Lend2
    s_load_dwordx2 s[8:9], s[0:1], {KA['dbg']}
    s_load_dwordx4 s[48:51], s[0:1], {KA['Wq']}
    s_load_dwordx4 s[52:55], s[0:1], {KA['Wv']}
    s_getreg_b32 s3, hwreg(HW_REG_XCC_ID, 0, 3)
    """)
    assert sorted(cx) == list(range(8))
    A(f"s_lshl_b32 s3, s3, 2\ns_lshr_b32 s3, {hex(sum(r << 4*i for i, r in enumerate(cx)))}, s3\ns_and_b32 s3, s3, 7")
    if stamps: A("s_memrealtime s[78:79]")
    if spread: A(f"""
    s_lshl_b32 s4, s3, 2
    s_add_u32 s5, s3, 2
    s_mul_i32 s5, s5, 86
    s_lshr_b32 s5, s5, 8
    s_lshl_b32 s5, s5, 6
    s_add_u32 s4, s4, s5
    """)
    else: A("s_lshl_b32 s4, s3, 2")
    A(f"""
    v_mov_b32 v1, s4
    v_mov_b32 v2, 1
    v_mov_b32 v4, 0
    s_lshr_b32 s5, s2, 3
    s_sub_u32 s6, s3, 1
    s_mul_i32 s6, s6, 1639
    s_lshr_b32 s6, s6, 8
    s_min_u32 s6, s6, 24
    s_lshl_b32 s6, s6, 8
    s_lshl_b32 s7, s5, 17
    s_add_u32 s7, s7, s6
    s_lshl_b32 s5, s5, 15
    v_lshlrev_b32 v5, 7, v0
    v_add_u32 v5, s5, v5
    v_lshrrev_b32 v6, 4, v0
    v_and_b32 v7, 15, v0
    v_lshlrev_b32 v7, 7, v7
    v_lshl_add_u32 v6, v6, 13, v7
    v_add_u32 v6, s7, v6
    v_cmp_eq_u32 vcc, 0, v0
    s_waitcnt lgkmcnt(0)
    s_and_saveexec_b64 s[20:21], vcc
    s_cbranch_execz Lnoat
    global_atomic_add v3, v1, v2, s[8:9] sc0
    """)
    A.label("Lnoat")
    A("s_mov_b64 exec, s[20:21]\ns_cmp_lg_u32 s3, 0\ns_cbranch_scc1 Lnt0")
    for k in range(tc): A(f"global_load_dword v253, v5, s[48:49]\nv_add_u32 v5, {MB}, v5")
    A(f"s_waitcnt vmcnt({tc})\ns_branch Lnt2")
    A.label("Lnt0")
    A("s_cmp_ge_u32 s3, 6\ns_cbranch_scc1 Lnt1")
    for k in range(th): A(f"global_load_dword v253, v6, s[{[50, 52, 48][k]}:{[51, 53, 49][k]}]")
    A(f"s_waitcnt vmcnt({th})\ns_branch Lnt2")
    A.label("Lnt1")
    A("s_waitcnt vmcnt(0)")
    A.label("Lnt2")
    A(f"""
    s_and_saveexec_b64 s[20:21], vcc
    ds_write_b32 v4, v3
    s_waitcnt lgkmcnt(0)
    """)
    assert all(min(((x - 1)*1639) >> 8, 24) == min(32*(x - 1)//5, 24) for x in range(1, 6))
    A(f"""
    s_mov_b64 exec, s[20:21]
    s_barrier
    ds_read_b32 v3, v4
    s_waitcnt lgkmcnt(0)
    v_readfirstlane_b32 s10, v3
    s_barrier
    {"s_memrealtime s[88:89]" if stamps else ""}
    s_cmp_ge_u32 s10, 32
    s_cbranch_scc1 Lend2
    s_lshl_b32 s2, s3, 5
    s_add_u32 s2, s2, s10
    s_cmp_eq_u32 s3, 0
    s_cbranch_scc1 Rchain
    s_sub_u32 s10, s2, 32
    s_cmp_ge_u32 s10, 160
    s_cbranch_scc1 Rconv
    s_cmp_ge_u32 s10, {32*NW}
    s_cbranch_scc1 Lend2
    s_mul_i32 s4, s10, {205 if NW == 5 else 256}
    s_lshr_b32 s4, s4, 10
    s_mul_i32 s5, s4, {NW}
    s_sub_u32 s12, s10, s5
    s_mov_b32 s10, s4
    """)
    assert all((r*205) >> 10 == r//5 for r in range(160))
    if pf: prefetch_code(A, "H", "Rconv")
    if "H" in roles: headw.emit_head_worker(A, stamps, slq, slp, LA)
    else: A("s_branch Lend2")
    A.label("Rconv")
    A("s_sub_u32 s10, s10, 160")
    if pf: prefetch_code(A, "O", "Rchain")
    if "O" in roles: convout.emit_conv_out(A, stamps, slo, osc, na)
    else: A("s_branch Lend2")
    A.label("Rchain")
    if hx: A(f"s_xor_b32 s10, s10, {hx}")
    if pf: prefetch_code(A, "C", "Lend2")
    if "C" in roles:
        chain.emit_chain_init(A, nzero=32*NW, stamps=stamps, full=1, have_w=True, nt=nt, bal=bal, fn=fn, rt=rt)
        if stamps: A("s_memrealtime s[76:77]")
        chain.emit_chain_loop(A, full=1, steplog=stamps and not tm, timing=tm, **dict(CHAIN_CFG, **kw))
        if tm: A('s_memtime s[94:95]\ns_waitcnt lgkmcnt(0)\ns_sub_u32 s80, s94, s96')
    else: A("s_branch Lend2")
    A.label("Lend")
    if stamps:
        A(f"""
        s_memrealtime s[74:75]
        s_waitcnt vmcnt(0) lgkmcnt(0)
        s_nop 15
        s_lshl_b32 s36, s2, 4
        s_add_u32 s36, s36, {WS_DBG}
        v_mov_b32 v0, s78
        v_mov_b32 v1, s76
        v_mov_b32 v2, s74
        v_mov_b32 v3, s18
        buffer_store_dwordx4 v[0:3], off, s[4:7], s36
        v_mov_b32 v4, s80
        v_mov_b32 v5, s82
        s_add_u32 s36, s36, 4096
        v_mov_b32 v6, s86
        v_mov_b32 v7, s88
        buffer_store_dwordx4 v[4:7], off, s[4:7], s36
        """)
    A.label("Lend2")
    errs = check(A.lines)
    for e in errs: print("HAZARD", e, file=sys.stderr)
    return A.text()
def full_file(**kw):
    ref = open(f"cdna_kernels/{NAME}.s.ref").read() if len(sys.argv) < 0 else None
    hdr = open("header.txt").read()
    return hdr + f"""; @launch grid=(256,1,1) block=(256,1,1) lds=163840
.amdgcn_target "amdgcn-amd-amdhsa--gfx950"
.text
.globl {NAME}_kernel
.p2align 8
.type {NAME}_kernel,@function
{NAME}_kernel:
""" + body(**kw) + f"""s_endpgm
.section .rodata,"a"
.p2align 6
.amdhsa_kernel {NAME}_kernel
  .amdhsa_next_free_vgpr 512
  .amdhsa_next_free_sgpr 102
  .amdhsa_accum_offset 256
  .amdhsa_group_segment_fixed_size 0
  .amdhsa_kernarg_size 136
  .amdhsa_user_sgpr_count 2
  .amdhsa_user_sgpr_kernarg_segment_ptr 1
  .amdhsa_system_sgpr_workgroup_id_x 1
  .amdhsa_float_denorm_mode_32 3
.end_amdhsa_kernel
"""
if __name__ == "__main__":
    out = sys.argv[1] if len(sys.argv) > 1 else f"cdna_kernels/{NAME}.s"
    open(out, "w").write(full_file())
    print("written", out)
```

```python
import sys
from asmlib import *
from layout import *
import chain, headw, convout
NAME = "gated_mix__memory_aug_recurrent_mem_tr__ssm_conv_h3__prompt"
CHAIN_CFG = dict()
def prefetch_code(A, tag, end, n=1):
    A(f"s_getpc_b64 s[40:41]")
    A.label(f"Lpc{tag}")
    for k in range(n):
        A(f"""
        v_lshlrev_b32 v255, 7, v0
        v_add_u32 v255, {k*32768}, v255
        v_min_u32 v255, {end}-Lpc{tag}-4, v255
        global_load_dword v254, v255, s[40:41]
        """)
def body(stamps=False, roles="CHO", pf=1, slp=2, LA=3, spread=1, nt=1, bal=0, tc=0, th=0, fn=14, rt=(2, 0, 3), osc='', na=14, slo=2, tm=0, slq=1, hx=0, cx=(1, 6, 5, 0, 2, 7, 3, 4), **kw):
    A = Asm()
    A(f"""
    s_cmp_ge_u32 s2, 256
    s_cbranch_scc1 Lend2
    s_load_dwordx2 s[8:9], s[0:1], {KA['dbg']}
    s_load_dwordx4 s[48:51], s[0:1], {KA['Wq']}
    s_load_dwordx4 s[52:55], s[0:1], {KA['Wv']}
    s_getreg_b32 s3, hwreg(HW_REG_XCC_ID, 0, 3)
    """)
    assert sorted(cx) == list(range(8))
    A(f"s_lshl_b32 s3, s3, 2\ns_lshr_b32 s3, {hex(sum(r << 4*i for i, r in enumerate(cx)))}, s3\ns_and_b32 s3, s3, 7")
    if stamps: A("s_memrealtime s[78:79]")
    if spread: A(f"""
    s_lshl_b32 s4, s3, 2
    s_add_u32 s5, s3, 2
    s_mul_i32 s5, s5, 86
    s_lshr_b32 s5, s5, 8
    s_lshl_b32 s5, s5, 6
    s_add_u32 s4, s4, s5
    """)
    else: A("s_lshl_b32 s4, s3, 2")
    A(f"""
    v_mov_b32 v1, s4
    v_mov_b32 v2, 1
    v_mov_b32 v4, 0
    v_cmp_eq_u32 vcc, 0, v0
    s_waitcnt lgkmcnt(0)
    s_and_saveexec_b64 s[20:21], vcc
    s_cbranch_execz Lnoat
    global_atomic_add v3, v1, v2, s[8:9] sc0
    """)
    A.label("Lnoat")
    A("s_mov_b64 exec, s[20:21]\ns_waitcnt vmcnt(0)")
    A(f"""
    s_and_saveexec_b64 s[20:21], vcc
    ds_write_b32 v4, v3
    s_waitcnt lgkmcnt(0)
    """)
    assert all(min(((x - 1)*1639) >> 8, 24) == min(32*(x - 1)//5, 24) for x in range(1, 6))
    A(f"""
    s_mov_b64 exec, s[20:21]
    s_barrier
    ds_read_b32 v3, v4
    s_waitcnt lgkmcnt(0)
    v_readfirstlane_b32 s10, v3
    s_barrier
    {"s_memrealtime s[88:89]" if stamps else ""}
    s_cmp_ge_u32 s10, 32
    s_cbranch_scc1 Lend2
    s_lshl_b32 s2, s3, 5
    s_add_u32 s2, s2, s10
    s_cmp_eq_u32 s3, 0
    s_cbranch_scc1 Rchain
    s_sub_u32 s10, s2, 32
    s_cmp_ge_u32 s10, 160
    s_cbranch_scc1 Rconv
    s_cmp_ge_u32 s10, {32*NW}
    s_cbranch_scc1 Lend2
    s_mul_i32 s4, s10, {205 if NW == 5 else 256}
    s_lshr_b32 s4, s4, 10
    s_mul_i32 s5, s4, {NW}
    s_sub_u32 s12, s10, s5
    s_mov_b32 s10, s4
    """)
    assert all((r*205) >> 10 == r//5 for r in range(160))
    if pf: prefetch_code(A, "H", "Rconv")
    if "H" in roles: headw.emit_head_worker(A, stamps, slq, slp, LA)
    else: A("s_branch Lend2")
    A.label("Rconv")
    A("s_sub_u32 s10, s10, 160")
    if pf: prefetch_code(A, "O", "Rchain")
    if "O" in roles: convout.emit_conv_out(A, stamps, slo, osc, na)
    else: A("s_branch Lend2")
    A.label("Rchain")
    if hx: A(f"s_xor_b32 s10, s10, {hx}")
    if pf: prefetch_code(A, "C", "Lend2")
    if "C" in roles:
        chain.emit_chain_init(A, nzero=32*NW, stamps=stamps, full=1, have_w=True, nt=nt, bal=bal, fn=fn, rt=rt)
        if stamps: A("s_memrealtime s[76:77]")
        chain.emit_chain_loop(A, full=1, steplog=stamps and not tm, timing=tm, **dict(CHAIN_CFG, **kw))
        if tm: A('s_memtime s[94:95]\ns_waitcnt lgkmcnt(0)\ns_sub_u32 s80, s94, s96')
    else: A("s_branch Lend2")
    A.label("Lend")
    if stamps:
        A(f"""
        s_memrealtime s[74:75]
        s_waitcnt vmcnt(0) lgkmcnt(0)
        s_nop 15
        s_lshl_b32 s36, s2, 4
        s_add_u32 s36, s36, {WS_DBG}
        v_mov_b32 v0, s78
        v_mov_b32 v1, s76
        v_mov_b32 v2, s74
        v_mov_b32 v3, s18
        buffer_store_dwordx4 v[0:3], off, s[4:7], s36
        v_mov_b32 v4, s80
        v_mov_b32 v5, s82
        s_add_u32 s36, s36, 4096
        v_mov_b32 v6, s86
        v_mov_b32 v7, s88
        buffer_store_dwordx4 v[4:7], off, s[4:7], s36
        """)
    A.label("Lend2")
    errs = check(A.lines)
    for e in errs: print("HAZARD", e, file=sys.stderr)
    return A.text()
def full_file(**kw):
    ref = open(f"cdna_kernels/{NAME}.s.ref").read() if len(sys.argv) < 0 else None
    hdr = open("header.txt").read()
    return hdr + f"""; @launch grid=(256,1,1) block=(256,1,1) lds=163840
.amdgcn_target "amdgcn-amd-amdhsa--gfx950"
.text
.globl {NAME}_kernel
.p2align 8
.type {NAME}_kernel,@function
{NAME}_kernel:
""" + body(**kw) + f"""s_endpgm
.section .rodata,"a"
.p2align 6
.amdhsa_kernel {NAME}_kernel
  .amdhsa_next_free_vgpr 512
  .amdhsa_next_free_sgpr 102
  .amdhsa_accum_offset 256
  .amdhsa_group_segment_fixed_size 0
  .amdhsa_kernarg_size 136
  .amdhsa_user_sgpr_count 2
  .amdhsa_user_sgpr_kernarg_segment_ptr 1
  .amdhsa_system_sgpr_workgroup_id_x 1
  .amdhsa_float_denorm_mode_32 3
.end_amdhsa_kernel
"""
if __name__ == "__main__":
    out = sys.argv[1] if len(sys.argv) > 1 else f"cdna_kernels/{NAME}.s"
    open(out, "w").write(full_file())
    print("written", out)
```
